```python
import torch

def _softmax(x, axis=-1):
    return torch.softmax(x, dim=axis)
def _gelu(x):
    return torch.nn.functional.gelu(x, approximate="tanh")
def _silu(x):
    return torch.nn.functional.silu(x)
def _sigmoid(x):
    return torch.sigmoid(x)
def _layernorm(x, axis=-1, eps=1e-5):
    m = x.mean(dim=axis, keepdim=True)
    v = x.var(dim=axis, keepdim=True, unbiased=False)
    return (x - m) / torch.sqrt(v + eps)
def _scatter_add(tgt, idx, src, axis=0):
    return tgt.clone().index_add_(axis, idx, src)
def _segment_sum(src, seg, n):
    out = torch.zeros((n,) + src.shape[1:], dtype=src.dtype)
    return out.index_add_(0, seg, src)
def _pad(x, pw):
    flat = tuple(v for pair in reversed(pw) for v in pair)
    return torch.nn.functional.pad(x, flat)

kernel_name = 'gated_mix__ssm_conv_h3__glu_gated_bilinear__prompt'

def setup_inputs():

    _w = (lambda a: (lambda t: t.to(torch.bfloat16) if t.is_floating_point() else t)(torch.as_tensor(a)))
    def _A_setup():
        B, S, D = 1, 2048, 640
        ks = 4
        return {
            "q": _w((lambda *s: torch.randn(*s, dtype=torch.bfloat16) * 0.05)(B, S, D)),
            "k": _w((lambda *s: torch.randn(*s, dtype=torch.bfloat16) * 0.05)(B, S, D)),
            "v": _w((lambda *s: torch.randn(*s, dtype=torch.bfloat16) * 0.05)(B, S, D)),
            "shift_k": _w((lambda *s: torch.randn(*s, dtype=torch.bfloat16) * 0.05)(D, ks) * 0.5),
            "ssm_k": _w((lambda *s: torch.randn(*s, dtype=torch.bfloat16) * 0.1)(D, S) * (1.0 / S ** 0.5)),
            "ssm_D": _w((lambda *s: torch.randn(*s, dtype=torch.bfloat16) * 0.05)(D)),
        }
    _A_in = _A_setup()

    def _B_setup():
        B, S, D, F = 1, 2048, 640, 1536
        return {
            "x": _w((lambda *s: torch.randn(*s, dtype=torch.bfloat16) * 0.05)(B, S, D)),
            "w_gate": _w((lambda *s: torch.randn(*s, dtype=torch.bfloat16) * 0.1)(D, F) * (D ** -0.5)),
            "w_up": _w((lambda *s: torch.randn(*s, dtype=torch.bfloat16) * 0.1)(D, F) * (D ** -0.5)),
            "w_down": _w((lambda *s: torch.randn(*s, dtype=torch.bfloat16) * 0.1)(F, D) * (F ** -0.5)),
        }
    _B_in = _B_setup()

    return {
        "A_q": _A_in["q"],
        "A_k": _A_in["k"],
        "A_v": _A_in["v"],
        "A_shift_k": _A_in["shift_k"],
        "A_ssm_k": _A_in["ssm_k"],
        "A_ssm_D": _A_in["ssm_D"],
        "B_x": _B_in["x"],
        "B_w_gate": _B_in["w_gate"],
        "B_w_up": _B_in["w_up"],
        "B_w_down": _B_in["w_down"],
        "gate_w": _w((lambda *s: torch.randn(*s, dtype=torch.bfloat16) * 0.05)(640) * 16.0),
    }

def reference(A_q, A_k, A_v, A_shift_k, A_ssm_k, A_ssm_D, B_x, B_w_gate, B_w_up, B_w_down, gate_w):
    def _A_ref(q, k, v, shift_k, ssm_k, ssm_D):
        B, S, D = q.shape
        ks = shift_k.shape[-1]
        k_pad = _pad(k, ((0, 0), (ks - 1, 0), (0, 0)))
        k_shift = torch.zeros_like(k)
        for t in range(ks):
            k_shift = k_shift + k_pad[:, t:t + S, :] * shift_k[:, ks - 1 - t][None, None, :]
        kv = k_shift * v
        L = 2 * S
        kv_pad = _pad(kv, ((0, 0), (0, S), (0, 0)))
        kf_pad = _pad(ssm_k, ((0, 0), (0, S)))
        kv_f = (lambda x, axes=(-2,-1): torch.fft.rfft2(x.float(), dim=axes))(kv_pad[:, None, :, :], axes=(1, 2))
        kf_f = (lambda x, axes=(-2,-1): torch.fft.rfft2(x.float(), dim=axes))(kf_pad[:, None, :], axes=(1, 2))
        kf_f = (lambda x, *d: x.permute(*d))(kf_f, 1, 2, 0)
        y_f = kv_f * kf_f[None, :, :, :]
        y = (lambda x, s, axes=(-2,-1): torch.fft.irfft2(x, s=s, dim=axes).to(torch.bfloat16))(y_f, (1, L), axes=(1, 2))[:, 0, :S, :]
        y = y + kv * ssm_D[None, None, :]
        return q * y

    def _B_ref(x, w_gate, w_up, w_down):
        g = torch.einsum("bsd,df->bsf", x, w_gate)
        u = torch.einsum("bsd,df->bsf", x, w_up)
        h = g * u
        return torch.einsum("bsf,fd->bsd", h, w_down)

    x = A_q
    g = _sigmoid((x * gate_w).sum(-1, keepdims=True))
    a = _A_ref(x, A_k, A_v, A_shift_k, A_ssm_k, A_ssm_D)
    b = _B_ref(x, B_w_gate, B_w_up, B_w_down)
    return g * a + (1 - g) * b
```

```python
NAME = 'gated_mix__ssm_conv_h3__glu_gated_bilinear__prompt'
HDR = open('cdna_kernels/' + NAME + '.s.ref').read().split('; Override launch')[0]

class Asm:
    def __init__(self):
        self.lines = []
        self.nlab = 0
    def __call__(self, s):
        for l in s.strip('\n').split('\n'):
            self.lines.append('    ' + l.strip() if not l.strip().endswith(':') else l.strip())
    def label(self, base='L'):
        self.nlab += 1
        return f'{base}_{self.nlab}'
    def text(self):
        return '\n'.join(self.lines)

def wrap(body, grid=256, block=512, lds=0, vgpr=256, accum=256, sgpr=102):
    k = NAME + '_kernel'
    return f'''{HDR}; @launch grid=({grid},1,1) block=({block},1,1) lds={lds}
.amdgcn_target "amdgcn-amd-amdhsa--gfx950"
.text
.globl {k}
.p2align 8
.type {k},@function
{k}:
{body}
.section .rodata,"a"
.p2align 6
.amdhsa_kernel {k}
  .amdhsa_next_free_vgpr {vgpr}
  .amdhsa_next_free_sgpr {sgpr}
  .amdhsa_accum_offset {accum}
  .amdhsa_group_segment_fixed_size 0
  .amdhsa_kernarg_size 112
  .amdhsa_user_sgpr_count 2
  .amdhsa_user_sgpr_kernarg_segment_ptr 1
  .amdhsa_system_sgpr_workgroup_id_x 1
.end_amdhsa_kernel
'''

def srd(a, d, lo, nbytes):
    a(f'''s_mov_b32 s{d}, s{lo}
    s_and_b32 s{d+1}, s{lo+1}, 0xffff
    s_mov_b32 s{d+2}, {nbytes}
    s_mov_b32 s{d+3}, 0x20000''')
```

```python
import sys
from asmlib import *

OPT = dict(ts=0, f1early=1, fl=3, ysig=7, wpl=1, gpf=0, map2=1, pd=4, l2pf=0, rot2=1, pfit=1, f1k=6, prio=1, cprio=3, bpre=1, pro=2, pfs=99, wdpf=1, sta9=0, nrot=10, xnop=0, hpf=1)
for x in sys.argv[1:]:
    k, v = x.split('='); OPT[k] = int(v)
TS = OPT['ts']

EPOCH = 0; F1 = 0x1000; F3 = 0x9000; F2 = 0x20000; GATE = 0x40000; DIAG = 0x80000
UT = 0x100000; Y2T = 0x380000; HB = 0x600000; WDP = 0xC00000; WS_SIZE = 0xE00000
STAGE = 40960
PRE = 3 * STAGE
LDS_TOTAL = 163840
CS = 4160
TSZ = 4 * CS
TREG = [STAGE, STAGE + TSZ, PRE]
SREG = [PRE + TSZ + i * 4608 for i in range(3)]
Y2L = SREG[2] + 4608
assert Y2L + 10240 <= LDS_TOTAL and TREG[1] + TSZ + 16 <= 2 * STAGE
LFLAG = TREG[1] + TSZ
STA = 2 * STAGE
STB = 0
S_X, S_WG, S_WU, S_WS, S_A, S_B, S_C = 4, 8, 12, 16, 20, 24, 28
P_Q, P_K, P_V, P_SHK, P_SSM, P_SSMD, P_WG, P_WU, P_WD, P_GW, P_OUT, P_WS = 32, 34, 36, 38, 40, 42, 46, 48, 50, 52, 54, 58
S_WAVE, S_TAG, S_MT, S_NT = 60, 61, 62, 63
a = Asm()
def ts(i):
    if TS == 1: a(f's_memrealtime s[{80+2*i}:{81+2*i}]')
    if TS == 2: a(f's_memtime s[{80+2*i}:{81+2*i}]')
def ts_dump():
    if not TS: return
    a('s_waitcnt lgkmcnt(0)')
    a(f's_lshl_b32 s64, s2, 3\ns_add_u32 s64, s64, s{S_WAVE}\ns_lshl_b32 s64, s64, 6\ns_add_u32 s64, s64, {DIAG}')
    for i in range(10): a(f'v_mov_b32 v{2+i}, s{80+2*i}')
    a('v_mov_b32 v1, 0\ns_mov_b64 exec, 1')
    a(f'buffer_store_dwordx4 v[2:5], v1, s[{S_WS}:{S_WS+3}], s64 offen')
    a(f'buffer_store_dwordx4 v[6:9], v1, s[{S_WS}:{S_WS+3}], s64 offen offset:16')
    a(f'buffer_store_dwordx2 v[10:11], v1, s[{S_WS}:{S_WS+3}], s64 offen offset:32')
def sr(s): return f's[{s}:{s+3}]'
def vr(v, n=4): return f'v[{v}:{v+n-1}]'

class Q:
    def __init__(self, name, cap): self.q = []; self.name = name; self.cap = cap
    def issue(self, tag, ins=None):
        if ins: a(ins)
        self.q.append(tag)
    def need(self, tags):
        if not isinstance(tags, set): tags = {tags}
        idx = max([i for i, t in enumerate(self.q) if t in tags], default=-1)
        if idx >= 0:
            n = len(self.q) - 1 - idx
            a(f's_waitcnt {self.name}({min(n, self.cap)})')
            self.q = self.q[idx+1:]
    def drain(self):
        a(f's_waitcnt {self.name}(0)'); self.q = []

def poll(addr_regs, tmp, slp=1):
    L = a.label('L_poll'); D = a.label('L_pdone')
    a('s_mov_b32 s64, 0')
    a(f'{L}:')
    for i, r in enumerate(addr_regs):
        a(f'buffer_load_dword v{tmp+i}, v{r}, {sr(S_WS)}, 0 offen sc1')
    a('s_waitcnt vmcnt(0)')
    for i in range(len(addr_regs)): a(f'v_xor_b32 v{tmp+i}, s{S_TAG}, v{tmp+i}')
    for i in range(1, len(addr_regs)): a(f'v_or_b32 v{tmp}, v{tmp}, v{tmp+i}')
    a(f'''v_cmp_ne_u32 vcc, 0, v{tmp}
    s_add_u32 s64, s64, 1
    s_cmp_eq_u64 vcc, 0
    s_cbranch_scc1 {D}
    s_sleep {slp}
    s_cmp_lt_u32 s64, 0x8000
    s_cbranch_scc1 {L}
    {D}:''')
def lds_wait(vaddr, vt, off, val, slp=0):
    L = a.label('L_lw')
    a(f'''s_mov_b32 s64, 0
    {L}:
    ds_read_b32 v{vt}, v{vaddr} offset:{off}
    s_add_u32 s64, s64, 1
    {"s_sleep %d" % slp if slp else ""}
    s_waitcnt lgkmcnt(0)
    v_readfirstlane_b32 s65, v{vt}
    s_cmp_ge_u32 s64, 0x100000
    s_cselect_b32 s65, {val}, s65
    s_cmp_lg_u32 s65, {val}
    s_cbranch_scc1 {L}''')
def flag_store(soff_reg, vt0, vt1):
    a(f'''v_mov_b32 v{vt0}, s{S_TAG}
    v_mov_b32 v{vt1}, 0
    s_mov_b64 exec, 1
    buffer_store_dword v{vt0}, v{vt1}, {sr(S_WS)}, s{soff_reg} offen sc1
    s_mov_b64 exec, -1''')
def make_tag():
    a(f's_mul_i32 s{S_TAG}, s{S_TAG}, 1664525\ns_add_u32 s{S_TAG}, s{S_TAG}, 1013904223')
def g2_roles(sa, sj, sstart, sinc, t0):
    if OPT['map2']:
        a(f'''s_and_b32 s{sa}, s2, 7
        s_lshl_b32 s{sa}, s{sa}, 2
        s_bfe_u32 s{t0}, s2, 0x20003
        s_add_u32 s{sa}, s{sa}, s{t0}
        s_lshr_b32 s{sj}, s2, 5
        s_lshl_b32 s{t0}, s{t0}, 1
        s_add_u32 s{t0}, s{t0}, s{sj}''')
    else:
        a(f'''s_and_b32 s{sa}, s2, 1
        s_lshl_b32 s{sa}, s{sa}, 4
        s_and_b32 s{t0}, s2, 2
        s_lshl_b32 s{t0}, s{t0}, 2
        s_add_u32 s{sa}, s{sa}, s{t0}
        s_bfe_u32 s{t0}, s2, 0x30003
        s_add_u32 s{sa}, s{sa}, s{t0}
        s_and_b32 s{sj}, s2, 4
        s_lshr_b32 s{sinc}, s2, 6
        s_add_u32 s{sj}, s{sj}, s{sinc}
        s_lshl_b32 s{sinc}, s{sinc}, 1
        s_add_u32 s{t0}, s{t0}, s{sinc}''')
    a(f'''    s_and_b32 s{sstart}, s{t0}, 3
    s_mul_i32 s{sstart}, s{sstart}, {3 if OPT['rot2'] else 0}
    s_bitcmp1_b32 s{t0}, 2
    s_cselect_b32 s{t0}, {2 if OPT['rot2'] else 0}, 0
    s_cselect_b32 s{sinc}, {11 if OPT['rot2'] else 1}, 1
    s_add_u32 s{sstart}, s{sstart}, s{t0}''')
def step12(cur, inc, tmp):
    a(f'''s_add_u32 s{cur}, s{cur}, s{inc}
    s_cmp_ge_u32 s{cur}, 12
    s_cselect_b32 s{tmp}, 12, 0
    s_sub_u32 s{cur}, s{cur}, s{tmp}''')

a(f'''s_cmp_ge_u32 s2, 256
s_cbranch_scc1 L_end
s_load_dwordx16 s[32:47], s[0:1], 0
s_load_dwordx8 s[48:55], s[0:1], 64
s_load_dwordx4 s[56:59], s[0:1], 96''')
ts(0)
a(f'''v_lshrrev_b32 v1, 6, v0
v_and_b32 v0, 63, v0
s_and_b32 s64, s2, 7
s_lshr_b32 s65, s2, 3
v_readfirstlane_b32 s{S_WAVE}, v1
s_and_b32 s{S_MT}, s64, 1
s_lshl_b32 s{S_MT}, s{S_MT}, 3
s_and_b32 s66, s65, 7
s_add_u32 s{S_MT}, s{S_MT}, s66
s_lshr_b32 s{S_NT}, s64, 1
s_lshl_b32 s{S_NT}, s{S_NT}, 2
s_lshr_b32 s67, s65, 3
s_add_u32 s{S_NT}, s{S_NT}, s67
s_cmp_ge_u32 s{S_WAVE}, 4
s_cbranch_scc1 L_loader''')

a(f'''s_lshl_b32 s74, s64, 3
s_add_u32 s74, s74, s66
s_lshr_b32 s75, s2, 6
s_mul_i32 s76, s{S_WAVE}, 10752
s_add_u32 s76, s76, {PRE + 512}
s_cmp_eq_u32 s{S_WAVE}, 0
s_cselect_b32 s76, {PRE}, s76
v_lshrrev_b32 v1, 2, v0
v_and_b32 v2, 3, v0
v_mul_u32_u24 v12, 1280, v1
v_lshl_add_u32 v12, v2, 4, v12
s_lshl_b32 s67, s74, 5
s_sub_u32 s67, s67, 4
s_mul_i32 s67, s67, 1280
s_mul_i32 s77, s75, 160
s_lshl_b32 s71, s{S_WAVE}, 5
s_add_u32 s77, s77, s71
s_lshl_b32 s71, s77, 1
s_add_u32 s67, s67, s71
v_add_u32 v3, s67, v12
v_add_u32 v4, {16*1280}, v3
v_add_u32 v5, {32*1280}, v3
v_and_b32 v6, 31, v0
v_add_lshl_u32 v7, v6, s77, 3
s_waitcnt lgkmcnt(0)
s_load_dword s{S_TAG}, s[{P_WS}:{P_WS+1}], {EPOCH}''')
z = 0 if OPT['xnop'] & 1 else 1
srd(a, S_A, P_K, 2048*1280*z); srd(a, S_B, P_V, 2048*1280*z); srd(a, S_C, P_SHK, 640*8)
if OPT['bpre'] == 2: a('s_barrier')
def kv_dma(lds_off, voffs):
    for i, vo in enumerate(voffs):
        if i == 2: a('s_mov_b64 exec, 0xffff')
        a(f's_add_u32 m0, s76, {lds_off + i*1024}\ns_nop 0')
        a(f'buffer_load_dwordx4 v{vo}, {sr(S_A)}, 0 offen lds')
        a(f's_add_u32 m0, s76, {lds_off + 2304 + i*1024}\ns_nop 0')
        a(f'buffer_load_dwordx4 v{vo}, {sr(S_B)}, 0 offen lds')
        if i == 2: a('s_mov_b64 exec, -1')
kv_dma(0, [3, 4, 5])
a(f'buffer_load_dwordx2 v[10:11], v7, {sr(S_C)}, 0 offen')
a(f'v_lshlrev_b32 v8, 4, v0\nv_lshlrev_b32 v9, 2, v0')
a(f's_cmp_eq_u32 s{S_WAVE}, 3\ns_cbranch_scc1 L_ldC\ns_cmp_lg_u32 s{S_WAVE}, 0\ns_cbranch_scc1 L_ldB')
a('v_add_u32 v13, 256, v3\nv_add_u32 v14, 256, v4\nv_add_u32 v15, 256, v5')
kv_dma(4608, [13, 14, 15])
a(f'buffer_load_dwordx2 v[16:17], v7, {sr(S_C)}, 0 offen offset:1024')
a('s_branch L_ld_done\nL_ldB:')
srd(a, S_A, P_WD, 1536*1280*(0 if OPT['xnop'] & 2 else 1))
a(f'''s_mul_i32 s64, s2, 13108
s_lshr_b32 s64, s64, 16
s_mul_i32 s66, s64, 5
s_sub_u32 s66, s2, s66
s_lshl_b32 s66, s66, 3
s_lshl_b32 s67, s{S_WAVE}, 2
s_add_u32 s66, s66, s67
s_sub_u32 s66, s66, 4
s_lshl_b32 s67, s66, 5
s_mul_i32 s71, s64, {32*1280}
s_add_u32 s67, s67, s71
s_add_u32 s71, s67, {16*1280}''')
for p in range(2):
    for hh in range(2):
        a(f's_add_u32 m0, s76, {4608 + 2048*p + 1024*hh - 64*p}\ns_nop 0')
        a(f'buffer_load_dwordx4 v12, {sr(S_A)}, s{67 if hh == 0 else 71} offen offset:{64*p} lds')
a('s_branch L_ld_done\nL_ldC:')
srd(a, S_C, P_GW, 1280)
srd(a, S_X, P_Q, 2048*1280*(0 if OPT['xnop'] & 4 else 1))
a(f'''s_and_b32 s66, s64, 1
s_lshl_b32 s66, s66, 7
s_lshr_b32 s67, s64, 1
s_lshl_b32 s67, s67, 5
s_add_u32 s66, s66, s67
s_add_u32 s66, s66, s65
s_mul_i32 s67, s66, {8*1280}
buffer_load_dwordx4 v[20:23], v8, {sr(S_C)}, 0 offen
buffer_load_dword v24, v9, {sr(S_C)}, 0 offen offset:1024''')
GX = 104
for i in range(8):
    if i in (3, 6): a(f's_add_u32 s67, s67, {3*1280}')
    o = 1280 * (i % 3)
    a(f'buffer_load_dwordx4 {vr(GX+6*i)}, v8, {sr(S_X)}, s67 offen offset:{o}')
    a(f'buffer_load_dword v{GX+6*i+4}, v9, {sr(S_X)}, s67 offen offset:{o+1024}')
a('L_ld_done:')
PCNT = PRE + 39424
if OPT['f1early']:
    assert OPT['bpre'] == 1
    a(f'v_mov_b32 v38, {PCNT}\nv_mov_b32 v39, 0\nds_write_b32 v38, v39\ns_waitcnt lgkmcnt(0)')
NPF = 1 if OPT['gpf'] else 0
if OPT['gpf']:
    a(f'''s_cmp_eq_u32 s{S_WAVE}, 2
    s_cselect_b32 s40, s{P_WG}, s{P_WU}
    s_cselect_b32 s41, s{P_WG+1}, s{P_WU+1}
    s_cmp_lt_u32 s{S_WAVE}, 2
    s_cselect_b32 s40, s{P_Q}, s40
    s_cselect_b32 s41, s{P_Q+1}, s41
    s_cselect_b32 s67, 39, 59
    s_cselect_b32 s71, 80, 60
    s_mul_i32 s71, s71, s2
    s_cmp_eq_u32 s{S_WAVE}, 1
    s_cselect_b32 s72, 40, 0
    s_add_u32 s71, s71, s72
    v_min_u32 v25, s67, v0
    v_add_lshl_u32 v25, v25, s71, 7
    global_load_dword v33, v25, s[40:41]''')
if OPT['bpre'] == 1: a('s_barrier')
srd(a, S_X, P_Q, 2048*1280)
srd(a, S_WS, P_WS, WS_SIZE)
a(f'''v_lshrrev_b32 v1, 5, v0              ; half
v_lshlrev_b32 v2, 10, v1
v_bfe_u32 v18, v0, 2, 2
v_lshl_add_u32 v2, v18, 6, v2
v_bfe_u32 v18, v0, 4, 1
v_lshl_add_u32 v2, v18, 5, v2
v_and_b32 v18, 3, v0
v_lshl_add_u32 v2, v18, 3, v2
v_add_u32 v2, s76, v2
v_sub_u32 v1, 1, v1
v_lshlrev_b32 v1, 1, v1
v_bfe_u32 v19, v6, 1, 2
v_xor_b32 v1, v1, v19
v_lshlrev_b32 v1, 4, v1
v_lshl_add_u32 v19, v6, 6, v1
v_add_u32 v35, s76, v19
v_xor_b32 v19, 16, v35
v_lshrrev_b32 v1, 2, v0               ; ch
v_bfe_u32 v36, v1, 1, 2
v_xor_b32 v36, v36, v18
v_lshlrev_b32 v36, 4, v36
v_lshl_add_u32 v36, v1, 6, v36
v_add_u32 v36, s76, v36
v_lshlrev_b32 v37, 12, v1
v_lshl_add_u32 v37, v18, 4, v37
s_sub_u32 s78, 63, s74
s_lshl_b32 s78, s78, 6
s_add_u32 s78, s78, {UT}
s_lshl_b32 s67, s77, 12
s_add_u32 s78, s78, s67
s_lshl_b32 s79, s2, 7
s_add_u32 s79, s79, {F1}''')
ACC = 160; XF = [128, 144]; WF = 104; XA = [98, 99]; WA = [100, 101, 102]
def acc1(mat, b, mb): return ACC + 4 * ((mat * 3 + b) * 4 + mb)
for i in range(96): a(f'v_mov_b32 v{ACC+i}, 0')
def do_pass(lds_off, wreg, sadd, TRO):
    for n in range(5): a(f'ds_read_b64_tr_b16 v[{40+2*n}:{41+2*n}], v2 offset:{lds_off+256*n}')
    for n in range(1, 5): a(f'ds_read_b64_tr_b16 v[{50+2*(n-1)}:{51+2*(n-1)}], v2 offset:{lds_off+2304+256*n}')
    a(f'v_alignbit_b32 v{wreg}, v{wreg}, v{wreg}, 16\nv_alignbit_b32 v{wreg+1}, v{wreg+1}, v{wreg+1}, 16')
    a('s_waitcnt lgkmcnt(4)')
    for e in range(1, 10): a(f'v_alignbit_b32 v{57+e}, v{40+e}, v{40+e-1}, 16')
    for e in range(8):
        a(f'v_dot2_f32_bf16 v{68+2*e}, v{57+e+1}, v{wreg+1}, 0')
        a(f'v_dot2_f32_bf16 v{69+2*e}, v{40+e+1}, v{wreg+1}, 0')
    for e in range(8):
        a(f'v_dot2_f32_bf16 v{68+2*e}, v{57+e+2}, v{wreg}, v{68+2*e}')
        a(f'v_dot2_f32_bf16 v{69+2*e}, v{40+e+2}, v{wreg}, v{69+2*e}')
    a('s_waitcnt lgkmcnt(0)')
    for e in range(8):
        a(f'v_lshlrev_b32 v{40+e}, 16, v{50+e}')
        a(f'v_and_b32 v{58+e}, 0xffff0000, v{50+e}')
    for e in range(8):
        a(f'v_mul_f32 v{68+2*e}, v{68+2*e}, v{40+e}')
        a(f'v_mul_f32 v{69+2*e}, v{69+2*e}, v{58+e}')
    for o in range(8):
        e = 7 - o
        a(f'v_cvt_pk_bf16_f32 v{40+o}, v{69+2*e}, v{68+2*e}')
    a(f'ds_write_b128 v35, v[40:43] offset:{TRO}\nds_write_b128 v19, v[44:47] offset:{TRO}')
    a('s_waitcnt lgkmcnt(0)')
    a(f'ds_read_b128 v[48:51], v36 offset:{TRO}\nds_read_b128 v[52:55], v36 offset:{TRO+1024}')
    a(f's_add_u32 s67, s78, {sadd}\ns_add_u32 s71, s78, {sadd + 16*4096}')
    a('s_waitcnt lgkmcnt(1)')
    a(f'buffer_store_dwordx4 v[48:51], v37, {sr(S_WS)}, s67 offen sc1')
    a('s_waitcnt lgkmcnt(0)')
    a(f'buffer_store_dwordx4 v[52:55], v37, {sr(S_WS)}, s71 offen sc1')
a(f's_waitcnt lgkmcnt(0)')
make_tag()
a(f's_cmp_eq_u32 s{S_WAVE}, 3\ns_cbranch_scc1 L_preC\ns_cmp_lg_u32 s{S_WAVE}, 0\ns_cbranch_scc1 L_preB')
a(f's_waitcnt vmcnt({7+NPF})')
do_pass(0, 10, 0, 9216)
a(f's_waitcnt vmcnt({2+NPF})')
do_pass(4608, 16, 128 * 4096, 9216)
a('s_branch L_pre_done\nL_preB:')
a(f's_waitcnt vmcnt({4+NPF})')
do_pass(0, 10, 0, 8704)
a(f'''v_lshrrev_b32 v1, 2, v0
v_lshlrev_b32 v1, 6, v1
v_lshl_add_u32 v1, v18, 3, v1
v_add_u32 v1, s76, v1
s_waitcnt vmcnt({2+NPF})''')
for i in range(4):
    o = 4608 + 2048 * (i >> 1) + 32 * (i & 1)
    a(f'ds_read_b64_tr_b16 {vr(104+4*i,2)}, v1 offset:{o}')
    a(f'ds_read_b64_tr_b16 {vr(106+4*i,2)}, v1 offset:{o+1024}')
for i in range(4):
    a(f'''s_add_u32 s71, s66, {i}
    s_mul_i32 s72, s71, 13108
    s_lshr_b32 s72, s72, 16
    s_mul_i32 s73, s72, 5
    s_sub_u32 s71, s71, s73
    s_mul_i32 s72, s72, 48
    s_add_u32 s72, s72, s64
    s_mul_i32 s72, s72, 5
    s_add_u32 s72, s72, s71
    s_lshl_b32 s72, s72, 10
    s_add_u32 s72, s72, {WDP}
    s_cmp_ge_u32 s2, 240
    s_cselect_b32 s72, {WS_SIZE}, s72
    s_waitcnt lgkmcnt({6-2*i})
    buffer_store_dwordx4 {vr(104+4*i)}, v8, {sr(S_WS)}, s72 offen sc1''')
a('s_branch L_pre_done\nL_preC:')
a(f's_waitcnt vmcnt({18+NPF})')
do_pass(0, 10, 0, 4608)
G = 84
a(f's_waitcnt vmcnt({2+NPF})')
for k in range(5):
    for i in range(8):
        a(f'v_dot2_f32_bf16 v{G+i}, v{GX+6*i+k}, v{20+k}, ' + ('0' if k == 0 else f'v{G+i}'))
for sh in ('row_shr:1', 'row_shr:2', 'row_shr:4', 'row_shr:8'):
    for i in range(8): a(f'v_add_f32_dpp v{G+i}, v{G+i}, v{G+i} {sh} row_mask:0xf bank_mask:0xf bound_ctrl:0')
for sh in ('row_bcast:15 row_mask:0xa', 'row_bcast:31 row_mask:0xc'):
    for i in range(8): a(f'v_add_f32_dpp v{G+i}, v{G+i}, v{G+i} {sh} bank_mask:0xf')
a('s_nop 0')
for i in range(8): a(f'v_readlane_b32 s{40+i}, v{G+i}, 63')
a('s_nop 1')
for i in range(8): a(f'v_writelane_b32 v{G}, s{40+i}, {i}')
for op in ('v_cvt_pk_bf16_f32 v{0}, v{0}, v{0}', 'v_and_b32 v{0}, 0xffff0000, v{0}', 'v_mul_f32 v{0}, 0xbfb8aa3b, v{0}', 'v_exp_f32 v{0}, v{0}', 's_nop 0',
           'v_add_f32 v{0}, 1.0, v{0}', 'v_rcp_f32 v{0}, v{0}', 's_nop 0', 'v_cvt_pk_bf16_f32 v{0}, v{0}, v{0}', 'v_and_b32 v{0}, 0xffff0000, v{0}'):
    a(op.format(G))
a(f'''s_lshl_b32 s67, s66, 7
s_add_u32 s67, s67, {GATE}
s_mov_b64 exec, 0xff
buffer_store_dword v{G}, v9, {sr(S_WS)}, s67 offen sc1
s_mov_b64 exec, -1''')
a('L_pre_done:')
ts(2)

a(f'''s_and_b32 s64, s{S_WAVE}, 1        ; wm
s_lshr_b32 s65, s{S_WAVE}, 1        ; wn
v_and_b32 v1, 15, v0
s_lshl_b32 s66, s64, 6
v_add_u32 v1, s66, v1
v_lshrrev_b32 v2, 4, v0
v_bfe_u32 v3, v1, 1, 3
v_lshlrev_b32 v1, 7, v1
v_xor_b32 v4, v2, v3
v_lshl_add_u32 v{XA[0]}, v4, 4, v1
v_xor_b32 v4, 4, v4
v_lshl_add_u32 v{XA[1]}, v4, 4, v1
v_mul_u32_u24 v5, 1536, v2
v_bfe_u32 v7, v0, 2, 2
v_lshl_add_u32 v5, v7, 6, v5
v_and_b32 v8, 3, v0
v_lshl_add_u32 v5, v8, 3, v5
v_add_u32 v5, 16384, v5
v_and_b32 v4, 1, v2
s_mul_i32 s66, s65, 3''')
for b in range(3):
    a(f'''s_add_u32 s67, s66, {b}
    s_lshr_b32 s68, s67, 1
    s_lshl_b32 s68, s68, 8
    s_and_b32 s67, s67, 1
    v_xor_b32 v6, s67, v4
    v_lshlrev_b32 v6, 5, v6
    v_add3_u32 v{WA[b]}, v5, v6, s68''')
srd(a, S_A, P_OUT, 2048*1280)
S_A2, S_J2, S_INC = 69, 70, 78
g2_roles(S_A2, S_J2, 76, S_INC, 66)
VL16, VL16B, VQO, VGO, VF2 = 4, 5, 3, 6, 7
a(f'''s_lshl_b32 s66, s{S_MT}, 1
s_add_u32 s66, s66, s64
s_mul_i32 s66, s66, 48
s_mul_i32 s67, s{S_NT}, 3
s_add_u32 s66, s66, s67
s_lshl_b32 s66, s66, 12
s_add_u32 s66, s66, {HB}
s_lshl_b32 s67, s65, 13
s_add_u32 s71, s66, s67
s_lshl_b32 s67, s65, 10
s_add_u32 s72, s66, s67
s_add_u32 s72, s72, 4096
s_lshl_b32 s66, s{S_MT}, 4
s_add_u32 s66, s66, s{S_NT}
s_lshl_b32 s66, s66, 2
s_add_u32 s66, s66, s{S_WAVE}
s_lshl_b32 s66, s66, 7
s_add_u32 s73, s66, {F2}
s_mul_i32 s74, s{S_A2}, {48*4096}
s_mul_i32 s66, s{S_WAVE}, {12*4096}
s_add_u32 s74, s74, s66
s_add_u32 s74, s74, {HB}
s_mul_i32 s75, s{S_J2}, {48*5120}
s_mul_i32 s66, s{S_WAVE}, {12*5120}
s_add_u32 s75, s75, s66
s_add_u32 s75, s75, {WDP}
s_mov_b32 s77, s76
v_and_b32 v1, 15, v0
s_lshl_b32 s66, s{S_A2}, 6
s_lshl_b32 s67, s{S_WAVE}, 4
s_add_u32 s66, s66, s67
v_add_u32 v8, s66, v1
v_mul_u32_u24 v{VQO}, 1280, v8
v_lshl_add_u32 v{VQO}, v2, 3, v{VQO}
s_mul_i32 s67, s{S_J2}, 160
v_add_u32 v{VQO}, s67, v{VQO}
v_lshrrev_b32 v9, 3, v8
v_lshlrev_b32 v9, 7, v9
v_and_b32 v8, 7, v8
v_lshl_add_u32 v9, v8, 2, v9
v_add_u32 v{VGO}, {GATE}, v9
v_and_b32 v1, 7, v0
v_lshlrev_b32 v1, 1, v1
s_lshr_b32 s66, s{S_A2}, 1
s_lshl_b32 s66, s66, 4
s_lshl_b32 s67, s{S_WAVE}, 2
s_add_u32 s66, s66, s67
s_lshl_b32 s66, s66, 2
s_and_b32 s67, s{S_A2}, 1
s_add_u32 s66, s66, s67
v_add_lshl_u32 v1, v1, s66, 7
v_add_u32 v{VF2}, {F2}, v1
v_lshlrev_b32 v{VL16}, 4, v0
v_add_u32 v{VL16B}, 4096, v{VL16}''')
def rdX(st, fs, mb): return (f'X{mb}{fs}', f'ds_read_b128 {vr(XF[fs]+4*mb)}, v{XA[st]} offset:{mb*2048}')
def rdW(st, w):
    mat, b = w // 3, w % 3
    o = st * 6144 + mat * 12288
    return [(f'W{w}', f'ds_read_b64_tr_b16 {vr(WF+4*w,2)}, v{WA[b]} offset:{o}'),
            (f'W{w}', f'ds_read_b64_tr_b16 {vr(WF+4*w+2,2)}, v{WA[b]} offset:{o+768}')]
WORD = [0, 3, 1, 4, 2, 5]
if OPT['f1early']:
    a(f'''v_mov_b32 v39, 1
    s_waitcnt vmcnt(0)
    s_mov_b64 exec, 1
    ds_add_rtn_u32 v39, v38, v39
    s_mov_b64 exec, -1
    s_waitcnt lgkmcnt(0)
    v_readfirstlane_b32 s66, v39
    s_nop 0
    s_cmp_lg_u32 s66, 3
    s_cbranch_scc1 L_nof1''')
    flag_store(79, 1, 2)
    a('L_nof1:')
    ts(1)
if OPT['cprio']: a(f's_setprio {OPT["cprio"]}')
a('s_barrier')
ts(3)
lq = Q('lgkmcnt', 15)
init = [rdX(0, 0, 0)] + rdW(0, WORD[0]) + [rdX(0, 0, m) for m in (1, 2, 3)]
for w in WORD[1:]: init += rdW(0, w)
for tag, ins in init: lq.issue(tag, ins)
a(f's_mov_b32 s64, 0\ns_mov_b32 s65, 0\ns_mov_b32 s67, {-2*STAGE & 0xffffffff}\ns_mov_b32 s68, {STAGE}')
a('.p2align 3\nL_g1_loop:')
for st in range(2):
    pend = []
    for wi, w in enumerate(WORD):
        for mb in range(4):
            lq.need({f'W{w}', f'X{mb}{st}'})
            acc = acc1(w // 3, w % 3, mb)
            a(f'v_mfma_f32_16x16x32_bf16 {vr(acc)}, {vr(WF+4*w)}, {vr(XF[st]+4*mb)}, {vr(acc)}')
            n = wi * 4 + mb
            if st == 0:
                if n == 0: pend += [rdX(1, 1, m) for m in range(4)]
                if mb == 3: pend += rdW(1, w)
            else:
                if n == 0 and not OPT['f1early']:
                    a(f's_cmp_lg_u32 s64, {OPT["pfit"]}\ns_cbranch_scc1 L_g1_nw\ns_waitcnt vmcnt(0)\nL_g1_nw:')
                if n == 1:
                    a('s_add_u32 s65, s65, 1\ns_cmp_eq_u32 s65, 3\ns_cselect_b32 s66, s67, s68\ns_cselect_b32 s65, 0, s65')
                if n in (2, 3, 4, 5, 6):
                    r = (XA + WA)[n - 2]
                    a(f'v_add_u32 v{r}, s66, v{r}')
                if n == 7:
                    lq.drain(); a('s_barrier')
                    pend += [rdX(0, 0, 0)] + rdW(0, WORD[0]) + [rdX(0, 0, m) for m in (1, 2, 3)] + rdW(0, WORD[1])
                if n > 7 and mb == 3: pend += rdW(0, w)
                if n == 17 and not OPT['f1early']:
                    a(f's_lshl_b32 s66, s{S_WAVE}, 4\ns_add_u32 s66, s66, s64\ns_cmp_lg_u32 s66, {OPT["pfit"]}\ns_cbranch_scc1 L_g1_nf')
                    flag_store(79, 1, 2)
                    a('L_g1_nf:')
            if pend and not (st == 1 and n < 7):
                tag, ins = pend.pop(0); lq.issue(tag, ins)
    for tag, ins in pend: lq.issue(tag, ins)
a('s_add_u32 s64, s64, 1\ns_cmp_lt_u32 s64, 10\ns_cbranch_scc1 L_g1_loop')
ts(4)
a('s_waitcnt lgkmcnt(0)\ns_nop 4')
def hprod(b, mb, dst):
    g = acc1(0, b, mb); u = acc1(1, b, mb)
    for i in range(4): a(f'v_mul_f32 v{g+i}, v{g+i}, v{u+i}')
    a(f'v_cvt_pk_bf16_f32 v{dst}, v{g}, v{g+1}\nv_cvt_pk_bf16_f32 v{dst+1}, v{g+2}, v{g+3}')
for wn in range(2):
    L = a.label('L_hep')
    a(f's_cmp_{"ge" if wn == 0 else "lt"}_u32 s{S_WAVE}, 2\ns_cbranch_scc1 {L}')
    bA, bB, bS = (0, 1, 2) if wn == 0 else (1, 2, 0)
    for mb in range(4):
        d = 128 + 4 * mb
        hprod(bA, mb, d); hprod(bB, mb, d + 2)
        a(f'buffer_store_dwordx4 {vr(d)}, v{VL16}, {sr(S_WS)}, s71 offen offset:{mb*1024} sc1')
    for mp in range(2):
        d = 144 + 4 * mp
        hprod(bS, 2 * mp, d); hprod(bS, 2 * mp + 1, d + 2)
        a(f'buffer_store_dwordx4 {vr(d)}, v{VL16}, {sr(S_WS)}, s72 offen offset:{mp*2048} sc1')
    a(f'{L}:')
DH = 4
WR = 8; WT = 88; HR = 108; ACC2 = 176
a(f'''v_mov_b32 v173, {LFLAG}
v_mov_b32 v1, 1
s_mov_b64 exec, 1
ds_add_u32 v173, v1 offset:4
s_mov_b64 exec, -1''')
for i in range(80): a(f'v_mov_b32 v{ACC2+i}, 0')
a(f'''s_mul_i32 s66, s{S_WAVE}, 10240
v_add_u32 v172, s66, v{VL16}
v_add_u32 v174, {STA}, v172
s_waitcnt vmcnt(0)''')
flag_store(73, 1, 2)
if OPT['cprio']: a('s_setprio 0')
ts(5)
vq = Q('vmcnt', 63)
def ld_wd(s):
    r = WR + 20 * (s % 4)
    a(f's_mul_i32 s79, s77, 5120\ns_add_u32 s79, s79, s75')
    for _ in range(5 if s == 3 else 1): step12(77, S_INC, 66)
    for db in range(4): vq.issue(('w', s), f'buffer_load_dwordx4 {vr(r+4*db)}, v{VL16}, {sr(S_WS)}, s79 offen offset:{db*1024} sc1')
    vq.issue(('w', s), f'buffer_load_dwordx4 {vr(r+16)}, v{VL16B}, {sr(S_WS)}, s79 offen sc1')
def ld_h(s):
    r = HR + 16 * (s % DH)
    a(f's_lshl_b32 s79, s76, 12\ns_add_u32 s79, s79, s74')
    step12(76, S_INC, 66)
    for mb in range(4): vq.issue(('h', s), f'buffer_load_dwordx4 {vr(r+4*mb)}, v{VL16}, {sr(S_WS)}, s79 offen offset:{mb*1024} sc1')
for s in range(4): ld_wd(s)
a(f's_or_b32 s66, s2, s{S_WAVE}\ns_cmp_lg_u32 s66, 0\ns_cbranch_scc1 L_noepoch\ns_mov_b32 s66, {EPOCH}')
flag_store(66, 1, 2)
a('L_noepoch:')
poll([VF2], 1)
vq.q = []
ts(7)
if OPT['hpf']:
    a(f'''v_min_u32 v1, 47, v0
    s_and_b32 s66, s{S_J2}, {7 if OPT['map2'] else 3}
    s_mul_i32 s66, s66, {(48 if OPT['map2'] else 96)*128}
    v_lshl_add_u32 v1, v1, 7, s66''')
    vq.issue('pf', f'buffer_load_dword v175, v1, {sr(S_WS)}, s74 offen sc1')
    if not OPT['map2']:
        a(f'v_add_u32 v1, {48*128}, v1')
        vq.issue('pf', f'buffer_load_dword v175, v1, {sr(S_WS)}, s74 offen sc1')
for s in range(DH): ld_h(s)
def rd_st(s, db):
    base = 174 if s < 6 else 172
    return f'ds_read_b128 {vr(WT+4*db)}, v{base} offset:{(s & 1) * 5120 + db*1024}'
lq = Q('lgkmcnt', 15)
QR = HR
for s in range(12):
    vq.need({('h', s), ('w', s)})
    r = HR + 16 * (s % DH); w = WT if 4 <= s < 8 else WR + 20 * (s % 4)
    if s % 3 == 1:
        a(f'''v_swap_b32 v{r+2}, v{r+4}
        v_swap_b32 v{r+3}, v{r+5}
        v_swap_b32 v{r+10}, v{r+12}
        v_swap_b32 v{r+11}, v{r+13}
        s_nop 1''')
    if s == 3:
        lds_wait(173, 1, 0, 1)
        for db in range(5): lq.issue(('t', 4, db), rd_st(4, db))
    for db in range(5):
        if 4 <= s < 8: lq.need(('t', s, db))
        for mb in range(4):
            acc = ACC2 + 4 * (db * 4 + mb)
            a(f'v_mfma_f32_16x16x32_bf16 {vr(acc)}, {vr(w+4*db)}, {vr(r+4*mb)}, {vr(acc)}')
        if 4 <= s < 7: lq.issue(('t', s + 1, db), rd_st(s + 1, db))
    if s + DH < 12: ld_h(s + DH)
    if s < 4: ld_wd(s + 8)
    if s == OPT['ysig']:
        a('v_mov_b32 v1, 1\ns_mov_b64 exec, 1')
        lq.issue('sig', 'ds_add_u32 v173, v1 offset:4')
        a('s_mov_b64 exec, -1')
    if s == 8:
        vq.issue('q', f'buffer_load_dword v{QR+10}, v{VGO}, {sr(S_WS)}, 0 offen sc1')
        for db in range(5): vq.issue('q', f'buffer_load_dwordx2 {vr(QR+2*db,2)}, v{VQO}, {sr(S_X)}, 0 offen offset:{32*db}')
ts(8)
a('s_nop 7')
for w in range(4):
    L = a.label('L_red')
    a(f's_cmp_lg_u32 s{S_WAVE}, {w}\ns_cbranch_scc1 {L}')
    for k in range(3):
        o = (w + 1 + k) & 3
        for db in range(5):
            a(f'ds_write_b128 v{174 if k < 2 else 172}, {vr(ACC2+4*(db*4+o))} offset:{(k & 1)*5120 + db*1024}')
    for db in range(5):
        for i in range(4): a(f'v_mov_b32 v{8+4*db+i}, v{ACC2+4*(db*4+w)+i}')
    for k in range(3):
        sw = (w - 1 - k) & 3
        a(f'v_add_u32 v{88+k}, {(STA if k < 2 else STB) + sw*10240 + (k & 1)*5120}, v{VL16}')
    a(f'{L}:')
a(f'''v_lshrrev_b32 v2, 2, v0
v_bfe_u32 v1, v2, 1, 2
v_xor_b32 v1, s{S_WAVE}, v1
v_lshlrev_b32 v1, 5, v1
v_lshl_add_u32 v2, v2, 7, v1
v_and_b32 v1, 3, v0
v_lshl_add_u32 v2, v1, 3, v2
v_add_u32 v2, {Y2L}, v2
s_waitcnt vmcnt(0)
v_sub_f32 v{QR+11}, 1.0, v{QR+10}
s_waitcnt lgkmcnt(0)
s_barrier''')
ts(6)
YR = 92
for db in range(5): a(f'ds_read_b64_tr_b16 {vr(YR+2*db,2)}, v2 offset:{db*2048}')
for k in range(3):
    for db in range(5): a(f'ds_read_b128 {vr(28+20*k+4*db)}, v{88+k} offset:{db*1024}')
a('s_waitcnt lgkmcnt(15)')
PR = 132
for db in range(5):
    for h in range(2):
        q = QR + 2*db + h; y = YR + 2*db + h; p = PR + 4*db + 2*h
        a(f'''v_lshlrev_b32 v124, 16, v{q}
        v_and_b32 v125, 0xffff0000, v{q}
        v_lshlrev_b32 v126, 16, v{y}
        v_and_b32 v127, 0xffff0000, v{y}
        v_mul_f32 v124, v124, v126
        v_mul_f32 v125, v125, v127
        v_mul_f32 v{p}, v{QR+10}, v124
        v_mul_f32 v{p+1}, v{QR+10}, v125''')
for k in range(3):
    a(f's_waitcnt lgkmcnt({10-5*k})')
    for i in range(20): a(f'v_add_f32 v{8+i}, v{8+i}, v{28+20*k+i}')
for db in range(5):
    for i in range(4): a(f'v_fma_f32 v{PR+4*db+i}, v{QR+11}, v{8+4*db+i}, v{PR+4*db+i}')
    a(f'v_cvt_pk_bf16_f32 v{152+2*db}, v{PR+4*db}, v{PR+1+4*db}\nv_cvt_pk_bf16_f32 v{153+2*db}, v{PR+2+4*db}, v{PR+3+4*db}')
    a(f'buffer_store_dwordx2 {vr(152+2*db,2)}, v{VQO}, {sr(S_A)}, 0 offen offset:{32*db}')
ts(9)
ts_dump()
a('s_endpgm')

a('L_loader:')
LW = 66
a(f's_sub_u32 s{LW}, s{S_WAVE}, 4')
a(f'''v_lshrrev_b32 v3, 3, v0
s_lshl_b32 s67, s{LW}, 5
v_add_u32 v3, s67, v3
v_bfe_u32 v4, v3, 1, 3
v_and_b32 v5, 7, v0
v_xor_b32 v4, v4, v5
s_lshl_b32 s67, s{S_MT}, 7
v_add_u32 v3, s67, v3
v_mul_u32_u24 v3, 1280, v3
v_lshl_add_u32 v200, v4, 4, v3
v_xor_b32 v4, 4, v4
v_lshl_add_u32 v201, v4, 4, v3
v_add_u32 v201, {8*1280}, v201
v_add_u32 v202, {16*1280}, v200
v_add_u32 v203, {16*1280}, v201''')
for n in range(3):
    a(f'''v_lshrrev_b32 v3, 4, v0
    v_add_u32 v3, {4*n}, v3
    v_mul_u32_u24 v4, 86, v3
    v_lshrrev_b32 v4, 8, v4
    v_mul_u32_u24 v5, 3, v4
    v_sub_u32 v5, v3, v5
    v_and_b32 v7, 2, v4
    v_bfe_u32 v6, v0, 2, 2
    v_lshl_add_u32 v4, v4, 2, v6
    s_lshl_b32 s67, s{LW}, 4
    v_add_u32 v4, s67, v4
    v_mul_u32_u24 v4, 3072, v4
    v_lshl_add_u32 v4, v5, 6, v4
    s_mul_i32 s67, s{S_NT}, 192
    v_add_u32 v4, s67, v4
    v_and_b32 v6, 3, v0
    v_xor_b32 v6, v6, v7
    v_lshl_add_u32 v{204+n}, v6, 4, v4''')
a(f'''s_add_u32 s68, s{S_MT}, s{S_NT}
s_mul_i32 s69, s68, 6554
s_lshr_b32 s69, s69, 16
s_mul_i32 s69, s69, 10
s_sub_u32 s68, s68, s69''')
if OPT['nrot'] == 5: a('s_and_b32 s68, s68, 14')
if OPT['nrot'] == 1: a('s_mov_b32 s68, 0')
if OPT['nrot'] == 2: a('s_and_b32 s68, s68, 1')
a(f'''s_lshl_b32 s69, s{LW}, 12
s_mul_i32 s70, s{LW}, 3072
s_add_u32 s70, s70, 16384
s_mov_b32 s71, 0
s_waitcnt lgkmcnt(0)
s_load_dword s{S_TAG}, s[{P_WS}:{P_WS+1}], {EPOCH}''')
srd(a, S_X, P_Q, 2048*1280)
srd(a, S_WG, P_WG, 640*3072)
srd(a, S_WU, P_WU, 640*3072)
def g1_issue():
    a(f's_lshl_b32 s72, s68, 7\ns_mul_i32 s73, s68, {64*3072}\ns_add_u32 s74, s71, s69\ns_add_u32 s75, s71, s70')
    for j in range(4):
        a(f's_add_u32 m0, s74, {j*1024}\n' + ('s_add_u32 s68, s68, 1' if j == 0 else 's_nop 0'))
        a(f'buffer_load_dwordx4 v{200+j}, {sr(S_X)}, s72 offen lds')
    for n in range(3):
        a(f's_add_u32 m0, s75, {n*1024}\ns_nop 0')
        a(f'buffer_load_dwordx4 v{204+n}, {sr(S_WG)}, s73 offen lds')
        a(f's_add_u32 m0, s75, {12288 + n*1024}\ns_nop 0')
        a(f'buffer_load_dwordx4 v{204+n}, {sr(S_WU)}, s73 offen lds')
    a(f'''s_cmp_ge_u32 s68, 10
    s_cselect_b32 s68, 0, s68
    s_add_u32 s71, s71, {STAGE}
    s_cmp_eq_u32 s71, {3*STAGE}
    s_cselect_b32 s71, 0, s71''')
if OPT['bpre'] == 1: a('s_barrier')
g1_issue()
if OPT['bpre'] == 2: a('s_barrier')
srd(a, S_WS, P_WS, WS_SIZE)
srd(a, S_A, P_SSM, 640*4096)
PD = OPT['pd']
if OPT['l2pf']:
    a(f'''s_and_b32 s72, s2, 7
    s_lshr_b32 s73, s2, 3
    s_and_b32 s67, s72, 1
    s_lshl_b32 s67, s67, 10
    s_lshl_b32 s74, s73, 5
    s_add_u32 s67, s67, s74
    v_add_u32 v25, s67, v0
    v_mul_u32_u24 v25, 1280, v25
    s_mul_i32 s74, s73, 24
    s_sub_u32 s74, s74, 32
    v_add_u32 v26, s74, v0
    v_cmp_le_u32 vcc, 384, v26
    v_subrev_u32 v27, 384, v26
    v_mov_b32 v28, s{P_WG}
    v_cndmask_b32 v26, v26, v27, vcc
    v_mov_b32 v29, s{P_WG+1}
    v_mov_b32 v30, s{P_WU}
    v_mov_b32 v31, s{P_WU+1}
    v_cndmask_b32 v28, v28, v30, vcc
    v_cndmask_b32 v29, v29, v31, vcc
    v_mul_u32_u24 v27, 10923, v26
    v_lshrrev_b32 v27, 16, v27
    v_mul_u32_u24 v30, 6, v27
    v_sub_u32 v26, v26, v30
    v_mul_u32_u24 v27, 3072, v27
    v_lshl_add_u32 v27, v26, 7, v27
    s_lshr_b32 s74, s72, 1
    s_mul_i32 s74, s74, 768
    v_add_u32 v27, s74, v27
    v_cmp_gt_u32 vcc, 32, v0
    v_mov_b32 v30, s{P_Q}
    v_mov_b32 v31, s{P_Q+1}
    v_mov_b32 v212, {64*3072}
    v_mov_b32 v26, 128
    v_cndmask_b32 v28, v28, v30, vcc
    v_cndmask_b32 v29, v29, v31, vcc
    v_cndmask_b32 v27, v27, v25, vcc
    v_cndmask_b32 v212, v212, v26, vcc
    s_sub_u32 s74, s{LW}, 2
    s_and_b32 s74, s74, 3
    s_add_u32 s74, s74, 2
    v_mul_lo_u32 v26, v212, s74
    v_add_u32 v27, v27, v26
    v_add_co_u32 v210, vcc, v28, v27
    v_lshlrev_b32 v212, 2, v212
    s_mov_b32 s79, s74
    v_addc_co_u32 v211, vcc, 0, v29, vcc''')
def l2pf(limit_expr):
    if not OPT['l2pf']: return
    L = a.label('L_nl2')
    a(f'''s_cmp_gt_u32 s79, {limit_expr}
    s_cbranch_scc1 {L}
    s_mov_b32 exec_hi, 0xffffff
    global_load_dword v213, v[210:211], off
    s_mov_b32 exec_hi, -1
    v_add_co_u32 v210, vcc, v210, v212
    s_add_u32 s79, s79, 4
    s_nop 0
    v_addc_co_u32 v211, vcc, 0, v211, vcc
    {L}:''')
a(f'''v_lshlrev_b32 v15, 7, v0
v_add_u32 v16, {F1 + 0x2000}, v15
v_add_u32 v17, {F1 + 0x4000}, v15
v_add_u32 v18, {F1 + 0x6000}, v15
s_mul_i32 s67, s2, 3
s_add_u32 s67, s67, s{LW}
s_lshl_b32 s67, s67, 12
v_and_b32 v19, 0xf80, v15
v_add_u32 v19, s67, v19
v_add_u32 v15, {F1}, v15
s_lshr_b32 s72, s2, 3
s_lshl_b32 s72, s72, 2
s_add_u32 s72, s72, s{LW}
s_mul_i32 s72, s72, {(120 if OPT['map2'] else 60)*128}
s_and_b32 s73, s2, {0 if OPT['map2'] else 4}
s_mul_i32 s73, s73, {48*5120}
s_add_u32 s72, s72, s73
s_add_u32 s72, s72, {WDP}
v_min_u32 v3, 59, v0
v_lshl_add_u32 v214, v3, 7, s72
v_add_u32 v215, {60*128}, v214
s_waitcnt lgkmcnt(0)''')
make_tag()
if OPT['pro'] == 1:
    a('s_waitcnt vmcnt(0)\ns_barrier')
    g1_issue()
    a('s_mov_b32 s76, 0\ns_branch L_ld_after_bar')
else:
    g1_issue()
    l2pf(PD - 1)
    a('s_mov_b32 s76, 0')
ts(1)
a('L_ld_loop:\ns_waitcnt vmcnt(10)')
if OPT['wpl']:
    a(f's_lshl_b32 s77, s{LW}, 4\ns_add_u32 s77, s77, s76\ns_cmp_lg_u32 s77, {48 + OPT["fl"] + 2}\ns_cbranch_scc1 L_nochk1')
    for i in range(4): a(f'v_xor_b32 v{20+i}, s{S_TAG}, v{20+i}')
    a('v_or3_b32 v20, v20, v21, v22\nv_or_b32 v20, v20, v23\nv_cmp_ne_u32 vcc, 0, v20\ns_cmp_eq_u64 vcc, 0\ns_cbranch_scc1 L_nochk1')
    poll([15, 16, 17, 18], 20)
    a('L_nochk1:')
a('s_barrier')
a('L_ld_after_bar:')
if TS == 1: a('s_memrealtime s[100:101]\ns_waitcnt lgkmcnt(0)\ns_mov_b32 m0, s76\ns_nop 0\nv_writelane_b32 v220, s100, m0')
g1_issue()
a(f's_add_u32 s78, s76, {PD}\ns_min_u32 s78, s78, 9')
l2pf('s78')
if OPT['wpl']:
    a(f's_cmp_lg_u32 s77, {48 + OPT["fl"]}\ns_cbranch_scc1 L_nofl')
    for i in range(4): a(f'buffer_load_dword v{20+i}, v{15+i}, {sr(S_WS)}, 0 offen sc1')
    a('L_nofl:')
    a(f's_sub_u32 s78, s76, {OPT["fl"] + 2}\ns_cmp_lg_u32 s78, s{LW}\ns_cbranch_scc1 L_nowp')
    a(f'buffer_load_dword v213, v214, {sr(S_WS)}, 0 offen sc1')
    if OPT['map2']: a(f'buffer_load_dword v213, v215, {sr(S_WS)}, 0 offen sc1')
    a('L_nowp:')
a(f's_cmp_lg_u32 s76, {OPT["pfs"]}\ns_cbranch_scc1 L_nopf')
a(f'buffer_load_dword v24, v19, {sr(S_A)}, 0 offen')
a('L_nopf:')
a('s_add_u32 s76, s76, 1\ns_cmp_lt_u32 s76, 8\ns_cbranch_scc1 L_ld_loop')
def wdpf():
    if OPT['wdpf'] and not OPT['wpl']:
        a(f'buffer_load_dword v213, v214, {sr(S_WS)}, 0 offen sc1\nbuffer_load_dword v213, v215, {sr(S_WS)}, 0 offen sc1')
a(f'''s_cmp_eq_u32 s{LW}, 3
s_cbranch_scc1 L_w7
s_waitcnt vmcnt(10)
s_barrier''')
ts(2)
a(f'''s_mul_i32 s67, s2, 3
s_add_u32 s67, s67, s{LW}
s_lshl_b32 s69, s67, 12
s_mov_b32 s68, {TREG[0]}
s_cmp_eq_u32 s{LW}, 1
s_cselect_b32 s68, {TREG[1]}, s68
s_cmp_eq_u32 s{LW}, 2
s_cselect_b32 s68, {TREG[2]}, s68
s_mul_i32 s70, s{LW}, 4608
s_add_u32 s70, s70, {SREG[0]}
v_lshlrev_b32 v10, 4, v0
s_cmp_ge_u32 s67, 640
s_cbranch_scc1 L_noT''')
srd(a, S_B, P_SSMD, 1280)
for phi in (0, 2):
    a(f's_add_u32 s71, s69, {2*phi}')
    a(f's_add_u32 m0, s68, {phi*CS + 32}\ns_nop 0')
    for i in range(4): a(f'buffer_load_dwordx4 v10, {sr(S_A)}, s71 offen offset:{i*1024} lds')
CACC = 32; CA = [64, 128]; CB = [96, 160]
a(f'''v_lshrrev_b32 v1, 4, v0
v_and_b32 v2, 15, v0
v_add3_u32 v3, v1, v2, -16
v_lshlrev_b32 v4, 1, v3
v_add_u32 v4, s69, v4
v_cmp_gt_i32 vcc, 0, v3
s_lshl_b32 s71, s67, 1
v_mov_b32 v7, s71
v_cndmask_b32 v4, v4, -1, vcc
buffer_load_ushort v5, v4, {sr(S_A)}, 0 offen
buffer_load_ushort v7, v7, {sr(S_B)}, 0 offen''')
a(f'''v_mul_u32_u24 v8, {CS}, v1
v_add_u32 v8, s68, v8
v_lshl_add_u32 v9, v2, 1, v8
v_add_u32 v11, s68, v10
v_mov_b32 v12, 0
v_mov_b32 v13, 0
v_lshl_add_u32 v14, v0, 3, s70
ds_write_b64 v14, v[12:13] offset:4096
v_add_u32 v3, 1, v2
v_and_b32 v4, 3, v3
v_sub_u32 v3, v3, v4
v_lshl_add_u32 v3, v1, 3, v3
v_mul_u32_u24 v4, {CS}, v4
v_lshl_add_u32 v20, v3, 1, v4
v_add_u32 v20, s68, v20
v_lshlrev_b32 v3, 4, v1
v_lshlrev_b32 v4, 5, v2
v_sub_u32 v3, v3, v4
v_add_u32 v3, {2*(2032-1792)}, v3
v_add_u32 v21, s70, v3''')
for i in range(32): a(f'v_mov_b32 v{CACC+i}, 0')
a(f's_waitcnt vmcnt(10)\ns_barrier')
ts(5)
a(f's_add_u32 s71, s69, {UT}\ns_mov_b32 m0, s70\ns_nop 0')
for i in range(4): a(f'buffer_load_dwordx4 v10, {sr(S_WS)}, s71 offen offset:{i*1024} sc1 lds')
wdpf()
NW = 2 if OPT['wdpf'] and not OPT['wpl'] else 0
a('s_barrier')
ts(4)
a(f's_waitcnt vmcnt({4+NW})')
for i in range(4):
    b = 64 + 16 * i
    a(f'''ds_read_b128 {vr(b)}, v11 offset:{32 + i*1024}
    ds_read_b128 {vr(b+4)}, v11 offset:{2*CS + 32 + i*1024}
    ds_read_b64 {vr(b+10,2)}, v11 offset:{32 + i*1024 + 16}''')
a('ds_write_b16 v9, v5\nv_lshlrev_b32 v7, 16, v7')
for i in range(4):
    b = 64 + 16 * i
    a(f's_waitcnt lgkmcnt({min(15, 3*(3-i) + 1 + 2*i)})')
    for k in range(4): a(f'v_alignbit_b32 v{b+12+k}, v{b+4+k}, v{b+k}, 16')
    C = [b+2, b+3, b+10, b+11]
    for k in range(4): a(f'v_alignbit_b32 v{b+4+k}, v{C[k]}, v{b+4+k}, 16')
    a(f'ds_write_b128 v11, {vr(b+12)} offset:{CS + 32 + i*1024}\nds_write_b128 v11, {vr(b+4)} offset:{3*CS + 32 + i*1024}')
a(f's_waitcnt vmcnt({NW})')
ts(6)
if OPT['prio']: a(f's_setprio {OPT["prio"]}')
def conv_reads(fs):
    r = []
    def A(k): return [(f'A{k}{fs}', f'ds_read_b64 {vr(CA[fs]+4*k,2)}, v20 offset:{k*512}'), (f'A{k}{fs}', f'ds_read_b64 {vr(CA[fs]+4*k+2,2)}, v20 offset:{k*512+8}')]
    def B(d): return [(f'B{d}{fs}', f'ds_read_b128 {vr(CB[fs]+4*d)}, v21 offset:{(7-d)*512}')]
    r += A(0)
    for d in range(8): r += B(d)
    for k in range(1, 8): r += A(k)
    return r
lq = Q('lgkmcnt', 15)
for tag, ins in conv_reads(0): lq.issue(tag, ins)
a('s_mov_b32 s71, 0\n.p2align 3\nL_conv_loop:')
for fs in range(2):
    nxt = conv_reads(fs ^ 1)
    a('v_add_u32 v20, 64, v20\nv_add_u32 v21, 64, v21')
    n = 0
    for k in range(8):
        for q in range(k, 8):
            lq.need({f'A{k}{fs}', f'B{q-k}{fs}'})
            a(f'v_mfma_f32_16x16x32_bf16 {vr(CACC+4*q)}, {vr(CA[fs]+4*k)}, {vr(CB[fs]+4*(q-k))}, {vr(CACC+4*q)}')
            n += 1
            if n >= 9 and nxt:
                tag, ins = nxt.pop(0); lq.issue(tag, ins)
    assert not nxt
a('s_add_u32 s71, s71, 1\ns_cmp_lt_u32 s71, 4\ns_cbranch_scc1 L_conv_loop')
ts(7)
a(f'''s_waitcnt lgkmcnt(0)
v_lshlrev_b32 v3, 3, v1
v_lshl_add_u32 v3, v2, 5, v3
v_sub_u32 v4, {2*(2044-1792)}, v3
v_add_u32 v4, s70, v4
v_add_u32 v3, s68, v3''')
for q in range(8): a(f'ds_read_b64 {vr(64+2*q,2)}, v4 offset:{(7-q)*512}')
for q in range(8):
    u = 64 + 2*q; y = CACC + 4*q; t = 96 + 4*q
    a(f'''s_waitcnt lgkmcnt(7)
    v_and_b32 v{t}, 0xffff0000, v{u+1}
    v_lshlrev_b32 v{t+1}, 16, v{u+1}
    v_and_b32 v{t+2}, 0xffff0000, v{u}
    v_lshlrev_b32 v{t+3}, 16, v{u}''')
    for i in range(4): a(f'v_fma_f32 v{y+i}, v{t+i}, v7, v{y+i}')
    a(f'v_cvt_pk_bf16_f32 v{u}, v{y}, v{y+1}\nv_cvt_pk_bf16_f32 v{u+1}, v{y+2}, v{y+3}')
    a(f'ds_write_b64 v3, {vr(u,2)} offset:{q*512}')
a(f's_add_u32 s71, s69, {Y2T}\ns_waitcnt lgkmcnt(0)')
for i in range(4): a(f'ds_read_b128 {vr(96+4*i)}, v11 offset:{i*1024}')
for i in range(4):
    a(f's_waitcnt lgkmcnt({3-i})')
    a(f'buffer_store_dwordx4 {vr(96+4*i)}, v10, {sr(S_WS)}, s71 offen offset:{i*1024} sc1')
a(f's_lshl_b32 s71, s67, 7\ns_add_u32 s71, s71, {F3}\ns_waitcnt vmcnt(0)')
flag_store(71, 3, 4)
ts(8)
a('s_branch L_join')
a(f'L_noT:\ns_waitcnt vmcnt(0)\ns_barrier')
wdpf()
a('s_barrier\ns_branch L_join')
a('L_w7:')
if OPT['wpl']:
    assert OPT['fl'] + 2 + 3 >= 8
    n7 = 0
    if OPT['fl'] + 2 + 3 == 8:
        a(f'buffer_load_dword v213, v214, {sr(S_WS)}, 0 offen sc1'); n7 = 1
        if OPT['map2']: a(f'buffer_load_dword v213, v215, {sr(S_WS)}, 0 offen sc1'); n7 = 2
    a(f's_waitcnt vmcnt({10+n7})\ns_barrier')
else:
    for i in range(4): a(f'buffer_load_dword v{20+i}, v{15+i}, {sr(S_WS)}, 0 offen sc1')
    a('s_waitcnt vmcnt(14)\ns_barrier')
ts(2)
g2_roles(67, 68, 78, 79, 64)
a(f'''v_mov_b32 v1, {LFLAG}
v_mov_b32 v2, 0
v_mov_b32 v3, 0
ds_write_b64 v1, v[2:3]
v_lshlrev_b32 v10, 4, v0
v_add_u32 v11, 4096, v10
s_mul_i32 s75, s68, {48*5120}
s_add_u32 s75, s75, {WDP}''')
for _ in range(4): step12(78, 79, 64)
def stash(ldsbase):
    for i in range(2):
        a('s_mul_i32 s72, s78, 5120\ns_add_u32 s72, s72, s75')
        step12(78, 79, 64)
        for w in range(4):
            a(f's_mov_b32 m0, {ldsbase + w*10240 + i*5120}\ns_nop 0')
            for db in range(4): a(f'buffer_load_dwordx4 v10, {sr(S_WS)}, s72 offen offset:{db*1024} sc1 lds')
            a(f's_mov_b32 m0, {ldsbase + w*10240 + i*5120 + 4096}\ns_nop 0')
            a(f'buffer_load_dwordx4 v11, {sr(S_WS)}, s72 offen sc1 lds')
            if w < 3: a(f's_add_u32 s72, s72, {12*5120}')
if OPT['wpl']:
    a(f's_waitcnt vmcnt({n7})')
else:
    a('s_waitcnt vmcnt(0)')
    for i in range(4): a(f'v_xor_b32 v{20+i}, s{S_TAG}, v{20+i}')
    a('v_or3_b32 v20, v20, v21, v22\nv_or_b32 v20, v20, v23\nv_cmp_ne_u32 vcc, 0, v20\ns_cmp_eq_u64 vcc, 0\ns_cbranch_scc1 L_nochk')
    poll([15, 16, 17, 18], 20)
a('L_nochk:\ns_waitcnt lgkmcnt(0)\ns_barrier')
ts(5)
wdpf()
if OPT['sta9']: stash(STA)
a('s_barrier')
ts(4)
a(f'''s_mul_i32 s68, s68, 80
v_add_lshl_u32 v3, v0, s68, 7
v_add_u32 v12, {F3}, v3
v_and_b32 v3, 15, v0
v_add_lshl_u32 v3, v3, s68, 7
v_add_u32 v13, {F3 + 64*128}, v3
v_lshrrev_b32 v3, 3, v0
v_and_b32 v4, 7, v0
v_lshlrev_b32 v5, 4, v4
v_lshl_add_u32 v5, v3, 12, v5
v_and_b32 v6, 6, v3
v_xor_b32 v6, v6, v4
v_lshlrev_b32 v6, 4, v6
v_lshl_add_u32 v6, v3, 7, v6
v_add_u32 v6, {Y2L}, v6
s_lshl_b32 s69, s68, 12
s_lshl_b32 s70, s67, 7
s_add_u32 s69, s69, s70
s_add_u32 s69, s69, {Y2T}''')
lds_wait(1, 2, 4, 4, 2)
if not OPT['sta9']: stash(STA)
stash(STB)
a('v_mov_b32 v2, 1\ns_waitcnt vmcnt(0)\nds_write_b32 v1, v2')
ts(6)
if OPT['ysig'] < 12: lds_wait(1, 2, 4, 8, 4)
poll([12, 13], 8, 4)
ts(7)
for i in range(10):
    a(f'buffer_load_dwordx4 {vr(16+4*i)}, v5, {sr(S_WS)}, s69 offen sc1')
    if i < 9: a(f's_add_u32 s69, s69, {8*4096}')
for i in range(10):
    a(f's_waitcnt vmcnt({9-i})')
    a(f'ds_write_b128 v6, {vr(16+4*i)} offset:{i*1024}')
ts(8)
a('L_join:\ns_waitcnt lgkmcnt(0)\ns_barrier')
ts(9)
if TS == 1:
    a(f's_lshl_b32 s64, s2, 2\ns_add_u32 s64, s64, s{LW}\ns_lshl_b32 s64, s64, 5\ns_add_u32 s64, s64, {DIAG + 0x20000}\nv_lshlrev_b32 v1, 2, v0\ns_mov_b64 exec, 0xff')
    a(f'buffer_store_dword v220, v1, {sr(S_WS)}, s64 offen\ns_mov_b64 exec, -1')
ts_dump()
a('L_end:\ns_endpgm')
print(wrap(a.text(), grid=256, block=512, lds=LDS_TOTAL, vgpr=256, accum=256))
```

```python
import sys
from asmlib import *

OPT = dict(ts=0, b0=1, disc=1, f1early=1, fl=3, ysig=7, wpl=0, gpf=1, map2=1, pd=4, l2pf=0, rot2=1, pfit=1, f1k=6, prio=1, cprio=3, bpre=1, pro=2, pfs=99, wdpf=0, sta9=0, nrot=10, xnop=0, hpf=1)
for x in sys.argv[1:]:
    k, v = x.split('='); OPT[k] = int(v)
TS = OPT['ts']

EPOCH = 0; F1 = 0x1000; F3 = 0x9000; F2 = 0x20000; GATE = 0x40000; DISC = 0x1E000; DIAG = 0x80000
UT = 0x100000; Y2T = 0x380000; HB = 0x600000; WDP = 0xC00000; WS_SIZE = 0xE00000
STAGE = 40960
PRE = 3 * STAGE
LDS_TOTAL = 163840
CS = 4160
TSZ = 4 * CS
TREG = [STAGE, STAGE + TSZ, PRE]
SREG = [PRE + TSZ + i * 4608 for i in range(3)]
Y2L = SREG[2] + 4608
assert Y2L + 10240 <= LDS_TOTAL and TREG[1] + TSZ + 16 <= 2 * STAGE
LFLAG = TREG[1] + TSZ
STA = 2 * STAGE
STB = 0
S_X, S_WG, S_WU, S_WS, S_A, S_B, S_C = 4, 8, 12, 16, 20, 24, 28
P_Q, P_K, P_V, P_SHK, P_SSM, P_SSMD, P_WG, P_WU, P_WD, P_GW, P_OUT, P_WS = 32, 34, 36, 38, 40, 42, 46, 48, 50, 52, 54, 58
S_WAVE, S_TAG, S_MT, S_NT, S_VID = 60, 61, 62, 63, 3
a = Asm()
def ts(i):
    if TS == 1: a(f's_memrealtime s[{80+2*i}:{81+2*i}]')
    if TS == 2: a(f's_memtime s[{80+2*i}:{81+2*i}]')
def ts_dump():
    if not TS: return
    a('s_waitcnt lgkmcnt(0)')
    a(f's_lshl_b32 s64, s2, 3\ns_add_u32 s64, s64, s{S_WAVE}\ns_lshl_b32 s64, s64, 6\ns_add_u32 s64, s64, {DIAG}')
    for i in range(10): a(f'v_mov_b32 v{2+i}, s{80+2*i}')
    a('v_mov_b32 v1, 0\ns_mov_b64 exec, 1')
    a(f'buffer_store_dwordx4 v[2:5], v1, s[{S_WS}:{S_WS+3}], s64 offen')
    a(f'buffer_store_dwordx4 v[6:9], v1, s[{S_WS}:{S_WS+3}], s64 offen offset:16')
    a(f'buffer_store_dwordx2 v[10:11], v1, s[{S_WS}:{S_WS+3}], s64 offen offset:32')
def sr(s): return f's[{s}:{s+3}]'
def vr(v, n=4): return f'v[{v}:{v+n-1}]'

class Q:
    def __init__(self, name, cap): self.q = []; self.name = name; self.cap = cap
    def issue(self, tag, ins=None):
        if ins: a(ins)
        self.q.append(tag)
    def need(self, tags):
        if not isinstance(tags, set): tags = {tags}
        idx = max([i for i, t in enumerate(self.q) if t in tags], default=-1)
        if idx >= 0:
            n = len(self.q) - 1 - idx
            a(f's_waitcnt {self.name}({min(n, self.cap)})')
            self.q = self.q[idx+1:]
    def drain(self):
        a(f's_waitcnt {self.name}(0)'); self.q = []

def poll(addr_regs, tmp, slp=1):
    L = a.label('L_poll'); D = a.label('L_pdone')
    a('s_mov_b32 s64, 0')
    a(f'{L}:')
    for i, r in enumerate(addr_regs):
        a(f'buffer_load_dword v{tmp+i}, v{r}, {sr(S_WS)}, 0 offen sc1')
    a('s_waitcnt vmcnt(0)')
    for i in range(len(addr_regs)): a(f'v_xor_b32 v{tmp+i}, s{S_TAG}, v{tmp+i}')
    for i in range(1, len(addr_regs)): a(f'v_or_b32 v{tmp}, v{tmp}, v{tmp+i}')
    a(f'''v_cmp_ne_u32 vcc, 0, v{tmp}
    s_add_u32 s64, s64, 1
    s_cmp_eq_u64 vcc, 0
    s_cbranch_scc1 {D}
    s_sleep {slp}
    s_cmp_lt_u32 s64, 0x8000
    s_cbranch_scc1 {L}
    {D}:''')
def lds_wait(vaddr, vt, off, val, slp=0):
    L = a.label('L_lw')
    a(f'''s_mov_b32 s64, 0
    {L}:
    ds_read_b32 v{vt}, v{vaddr} offset:{off}
    s_add_u32 s64, s64, 1
    {"s_sleep %d" % slp if slp else ""}
    s_waitcnt lgkmcnt(0)
    v_readfirstlane_b32 s65, v{vt}
    s_cmp_ge_u32 s64, 0x100000
    s_cselect_b32 s65, {val}, s65
    s_cmp_lg_u32 s65, {val}
    s_cbranch_scc1 {L}''')
def flag_store(soff_reg, vt0, vt1):
    a(f'''v_mov_b32 v{vt0}, s{S_TAG}
    v_mov_b32 v{vt1}, 0
    s_mov_b64 exec, 1
    buffer_store_dword v{vt0}, v{vt1}, {sr(S_WS)}, s{soff_reg} offen sc1
    s_mov_b64 exec, -1''')
def make_tag():
    a(f's_mul_i32 s{S_TAG}, s{S_TAG}, 1664525\ns_add_u32 s{S_TAG}, s{S_TAG}, 1013904223')
def g2_roles(sa, sj, sstart, sinc, t0):
    if OPT['map2']:
        a(f'''s_and_b32 s{sa}, s3, 7
        s_lshl_b32 s{sa}, s{sa}, 2
        s_bfe_u32 s{t0}, s3, 0x20003
        s_add_u32 s{sa}, s{sa}, s{t0}
        s_lshr_b32 s{sj}, s3, 5
        s_lshl_b32 s{t0}, s{t0}, 1
        s_add_u32 s{t0}, s{t0}, s{sj}''')
    else:
        a(f'''s_and_b32 s{sa}, s3, 1
        s_lshl_b32 s{sa}, s{sa}, 4
        s_and_b32 s{t0}, s3, 2
        s_lshl_b32 s{t0}, s{t0}, 2
        s_add_u32 s{sa}, s{sa}, s{t0}
        s_bfe_u32 s{t0}, s3, 0x30003
        s_add_u32 s{sa}, s{sa}, s{t0}
        s_and_b32 s{sj}, s3, 4
        s_lshr_b32 s{sinc}, s3, 6
        s_add_u32 s{sj}, s{sj}, s{sinc}
        s_lshl_b32 s{sinc}, s{sinc}, 1
        s_add_u32 s{t0}, s{t0}, s{sinc}''')
    a(f'''    s_and_b32 s{sstart}, s{t0}, 3
    s_mul_i32 s{sstart}, s{sstart}, {3 if OPT['rot2'] else 0}
    s_bitcmp1_b32 s{t0}, 2
    s_cselect_b32 s{t0}, {2 if OPT['rot2'] else 0}, 0
    s_cselect_b32 s{sinc}, {11 if OPT['rot2'] else 1}, 1
    s_add_u32 s{sstart}, s{sstart}, s{t0}''')
def g1_roles(t0):
    a(f'''s_and_b32 s{S_MT}, s3, 1
    s_lshl_b32 s{S_MT}, s{S_MT}, 3
    s_bfe_u32 s{t0}, s3, 0x30003
    s_add_u32 s{S_MT}, s{S_MT}, s{t0}
    s_bfe_u32 s{S_NT}, s3, 0x20001
    s_lshl_b32 s{S_NT}, s{S_NT}, 2
    s_lshr_b32 s{t0}, s3, 6
    s_add_u32 s{S_NT}, s{S_NT}, s{t0}''')
def step12(cur, inc, tmp):
    a(f'''s_add_u32 s{cur}, s{cur}, s{inc}
    s_cmp_ge_u32 s{cur}, 12
    s_cselect_b32 s{tmp}, 12, 0
    s_sub_u32 s{cur}, s{cur}, s{tmp}''')

a(f'''s_cmp_ge_u32 s2, 256
s_cbranch_scc1 L_end
s_load_dwordx16 s[32:47], s[0:1], 0
s_load_dwordx8 s[48:55], s[0:1], 64
s_load_dwordx4 s[56:59], s[0:1], 96''')
ts(0)
a(f'''v_lshrrev_b32 v1, 6, v0
v_and_b32 v0, 63, v0
s_and_b32 s64, s2, 7
s_lshr_b32 s65, s2, 3
v_readfirstlane_b32 s{S_WAVE}, v1
s_and_b32 s66, s65, 7
s_mov_b32 s3, s2
s_cmp_ge_u32 s{S_WAVE}, 4
s_cbranch_scc1 L_loader''')

a(f'''s_lshl_b32 s74, s64, 3
s_add_u32 s74, s74, s66
s_lshr_b32 s75, s2, 6
s_mul_i32 s76, s{S_WAVE}, 10752
s_add_u32 s76, s76, {PRE + 512}
s_cmp_eq_u32 s{S_WAVE}, 0
s_cselect_b32 s76, {PRE}, s76
v_lshrrev_b32 v1, 2, v0
v_and_b32 v2, 3, v0
v_mul_u32_u24 v12, 1280, v1
v_lshl_add_u32 v12, v2, 4, v12
s_lshl_b32 s67, s74, 5
s_sub_u32 s67, s67, 4
s_mul_i32 s67, s67, 1280
s_mul_i32 s77, s75, 160
s_lshl_b32 s71, s{S_WAVE}, 5
s_add_u32 s77, s77, s71
s_lshl_b32 s71, s77, 1
s_add_u32 s67, s67, s71
v_add_u32 v3, s67, v12
v_add_u32 v4, {16*1280}, v3
v_add_u32 v5, {32*1280}, v3
v_and_b32 v6, 31, v0
v_add_lshl_u32 v7, v6, s77, 3
s_waitcnt lgkmcnt(0)
s_load_dword s{S_TAG}, s[{P_WS}:{P_WS+1}], {EPOCH}''')
z = 0 if OPT['xnop'] & 1 else 1
srd(a, S_A, P_K, 2048*1280*z); srd(a, S_B, P_V, 2048*1280*z); srd(a, S_C, P_SHK, 640*8)
if OPT['b0']: a('s_barrier')
def kv_dma(lds_off, voffs):
    for i, vo in enumerate(voffs):
        if i == 2: a('s_mov_b64 exec, 0xffff')
        a(f's_add_u32 m0, s76, {lds_off + i*1024}\ns_nop 0')
        a(f'buffer_load_dwordx4 v{vo}, {sr(S_A)}, 0 offen lds')
        a(f's_add_u32 m0, s76, {lds_off + 2304 + i*1024}\ns_nop 0')
        a(f'buffer_load_dwordx4 v{vo}, {sr(S_B)}, 0 offen lds')
        if i == 2: a('s_mov_b64 exec, -1')
kv_dma(0, [3, 4, 5])
a(f'buffer_load_dwordx2 v[10:11], v7, {sr(S_C)}, 0 offen')
a(f'v_lshlrev_b32 v8, 4, v0\nv_lshlrev_b32 v9, 2, v0')
a(f's_cmp_eq_u32 s{S_WAVE}, 3\ns_cbranch_scc1 L_ldC\ns_cmp_lg_u32 s{S_WAVE}, 0\ns_cbranch_scc1 L_ldB')
a('v_add_u32 v13, 256, v3\nv_add_u32 v14, 256, v4\nv_add_u32 v15, 256, v5')
kv_dma(4608, [13, 14, 15])
a(f'buffer_load_dwordx2 v[16:17], v7, {sr(S_C)}, 0 offen offset:1024')
a('s_branch L_ld_done\nL_ldB:')
srd(a, S_A, P_WD, 1536*1280*(0 if OPT['xnop'] & 2 else 1))
a(f'''s_mul_i32 s64, s2, 13108
s_lshr_b32 s64, s64, 16
s_mul_i32 s66, s64, 5
s_sub_u32 s66, s2, s66
s_lshl_b32 s66, s66, 3
s_lshl_b32 s67, s{S_WAVE}, 2
s_add_u32 s66, s66, s67
s_sub_u32 s66, s66, 4
s_lshl_b32 s67, s66, 5
s_mul_i32 s71, s64, {32*1280}
s_add_u32 s67, s67, s71
s_add_u32 s71, s67, {16*1280}''')
for p in range(2):
    for hh in range(2):
        a(f's_add_u32 m0, s76, {4608 + 2048*p + 1024*hh - 64*p}\ns_nop 0')
        a(f'buffer_load_dwordx4 v12, {sr(S_A)}, s{67 if hh == 0 else 71} offen offset:{64*p} lds')
a('s_branch L_ld_done\nL_ldC:')
srd(a, S_C, P_GW, 1280)
srd(a, S_X, P_Q, 2048*1280*(0 if OPT['xnop'] & 4 else 1))
a(f'''s_and_b32 s66, s64, 1
s_lshl_b32 s66, s66, 7
s_lshr_b32 s67, s64, 1
s_lshl_b32 s67, s67, 5
s_add_u32 s66, s66, s67
s_add_u32 s66, s66, s65
s_mul_i32 s67, s66, {8*1280}
buffer_load_dwordx4 v[20:23], v8, {sr(S_C)}, 0 offen
buffer_load_dword v24, v9, {sr(S_C)}, 0 offen offset:1024''')
GX = 104
for i in range(8):
    if i in (3, 6): a(f's_add_u32 s67, s67, {3*1280}')
    o = 1280 * (i % 3)
    a(f'buffer_load_dwordx4 {vr(GX+6*i)}, v8, {sr(S_X)}, s67 offen offset:{o}')
    a(f'buffer_load_dword v{GX+6*i+4}, v9, {sr(S_X)}, s67 offen offset:{o+1024}')
a('L_ld_done:')
PCNT = PRE + 39424
if OPT['f1early']:
    assert OPT['bpre'] == 1
    a(f'v_mov_b32 v38, {PCNT}\nv_mov_b32 v40, 0\nv_mov_b32 v41, -1\nds_write_b64 v38, v[40:41]\ns_waitcnt lgkmcnt(0)')
NPF = 0
if OPT['bpre'] == 1: a('s_barrier')
srd(a, S_X, P_Q, 2048*1280)
srd(a, S_WS, P_WS, WS_SIZE)
a(f'''v_lshrrev_b32 v1, 5, v0              ; half
v_lshlrev_b32 v2, 10, v1
v_bfe_u32 v18, v0, 2, 2
v_lshl_add_u32 v2, v18, 6, v2
v_bfe_u32 v18, v0, 4, 1
v_lshl_add_u32 v2, v18, 5, v2
v_and_b32 v18, 3, v0
v_lshl_add_u32 v2, v18, 3, v2
v_add_u32 v2, s76, v2
v_sub_u32 v1, 1, v1
v_lshlrev_b32 v1, 1, v1
v_bfe_u32 v19, v6, 1, 2
v_xor_b32 v1, v1, v19
v_lshlrev_b32 v1, 4, v1
v_lshl_add_u32 v19, v6, 6, v1
v_add_u32 v35, s76, v19
v_xor_b32 v19, 16, v35
v_lshrrev_b32 v1, 2, v0               ; ch
v_bfe_u32 v36, v1, 1, 2
v_xor_b32 v36, v36, v18
v_lshlrev_b32 v36, 4, v36
v_lshl_add_u32 v36, v1, 6, v36
v_add_u32 v36, s76, v36
v_lshlrev_b32 v37, 12, v1
v_lshl_add_u32 v37, v18, 4, v37
s_sub_u32 s78, 63, s74
s_lshl_b32 s78, s78, 6
s_add_u32 s78, s78, {UT}
s_lshl_b32 s67, s77, 12
s_add_u32 s78, s78, s67
s_lshl_b32 s79, s2, 7
s_add_u32 s79, s79, {F1}''')
ACC = 160; XF = [128, 144]; WF = 104; XA = [98, 99]; WA = [100, 101, 102]
def acc1(mat, b, mb): return ACC + 4 * ((mat * 3 + b) * 4 + mb)
for i in range(96): a(f'v_mov_b32 v{ACC+i}, 0')
def do_pass(lds_off, wreg, sadd, TRO):
    for n in range(5): a(f'ds_read_b64_tr_b16 v[{40+2*n}:{41+2*n}], v2 offset:{lds_off+256*n}')
    for n in range(1, 5): a(f'ds_read_b64_tr_b16 v[{50+2*(n-1)}:{51+2*(n-1)}], v2 offset:{lds_off+2304+256*n}')
    a(f'v_alignbit_b32 v{wreg}, v{wreg}, v{wreg}, 16\nv_alignbit_b32 v{wreg+1}, v{wreg+1}, v{wreg+1}, 16')
    a('s_waitcnt lgkmcnt(4)')
    for e in range(1, 10): a(f'v_alignbit_b32 v{57+e}, v{40+e}, v{40+e-1}, 16')
    for e in range(8):
        a(f'v_dot2_f32_bf16 v{68+2*e}, v{57+e+1}, v{wreg+1}, 0')
        a(f'v_dot2_f32_bf16 v{69+2*e}, v{40+e+1}, v{wreg+1}, 0')
    for e in range(8):
        a(f'v_dot2_f32_bf16 v{68+2*e}, v{57+e+2}, v{wreg}, v{68+2*e}')
        a(f'v_dot2_f32_bf16 v{69+2*e}, v{40+e+2}, v{wreg}, v{69+2*e}')
    a('s_waitcnt lgkmcnt(0)')
    for e in range(8):
        a(f'v_lshlrev_b32 v{40+e}, 16, v{50+e}')
        a(f'v_and_b32 v{58+e}, 0xffff0000, v{50+e}')
    for e in range(8):
        a(f'v_mul_f32 v{68+2*e}, v{68+2*e}, v{40+e}')
        a(f'v_mul_f32 v{69+2*e}, v{69+2*e}, v{58+e}')
    for o in range(8):
        e = 7 - o
        a(f'v_cvt_pk_bf16_f32 v{40+o}, v{69+2*e}, v{68+2*e}')
    a(f'ds_write_b128 v35, v[40:43] offset:{TRO}\nds_write_b128 v19, v[44:47] offset:{TRO}')
    a('s_waitcnt lgkmcnt(0)')
    a(f'ds_read_b128 v[48:51], v36 offset:{TRO}\nds_read_b128 v[52:55], v36 offset:{TRO+1024}')
    a(f's_add_u32 s67, s78, {sadd}\ns_add_u32 s71, s78, {sadd + 16*4096}')
    a('s_waitcnt lgkmcnt(1)')
    a(f'buffer_store_dwordx4 v[48:51], v37, {sr(S_WS)}, s67 offen sc1')
    a('s_waitcnt lgkmcnt(0)')
    a(f'buffer_store_dwordx4 v[52:55], v37, {sr(S_WS)}, s71 offen sc1')
a(f's_waitcnt lgkmcnt(0)')
make_tag()
a(f's_cmp_eq_u32 s{S_WAVE}, 3\ns_cbranch_scc1 L_preC\ns_cmp_lg_u32 s{S_WAVE}, 0\ns_cbranch_scc1 L_preB')
a(f's_waitcnt vmcnt({7+NPF})')
do_pass(0, 10, 0, 9216)
a(f's_waitcnt vmcnt({2+NPF})')
do_pass(4608, 16, 128 * 4096, 9216)
a('s_branch L_pre_done\nL_preB:')
a(f's_waitcnt vmcnt({4+NPF})')
do_pass(0, 10, 0, 8704)
a(f'''v_lshrrev_b32 v1, 2, v0
v_lshlrev_b32 v1, 6, v1
v_lshl_add_u32 v1, v18, 3, v1
v_add_u32 v1, s76, v1
s_waitcnt vmcnt({2+NPF})''')
for i in range(4):
    o = 4608 + 2048 * (i >> 1) + 32 * (i & 1)
    a(f'ds_read_b64_tr_b16 {vr(104+4*i,2)}, v1 offset:{o}')
    a(f'ds_read_b64_tr_b16 {vr(106+4*i,2)}, v1 offset:{o+1024}')
for i in range(4):
    a(f'''s_add_u32 s71, s66, {i}
    s_mul_i32 s72, s71, 13108
    s_lshr_b32 s72, s72, 16
    s_mul_i32 s73, s72, 5
    s_sub_u32 s71, s71, s73
    s_mul_i32 s72, s72, 48
    s_add_u32 s72, s72, s64
    s_mul_i32 s72, s72, 5
    s_add_u32 s72, s72, s71
    s_lshl_b32 s72, s72, 10
    s_add_u32 s72, s72, {WDP}
    s_cmp_ge_u32 s2, 240
    s_cselect_b32 s72, {WS_SIZE}, s72
    s_waitcnt lgkmcnt({6-2*i})
    buffer_store_dwordx4 {vr(104+4*i)}, v8, {sr(S_WS)}, s72 offen sc1''')
a('s_branch L_pre_done\nL_preC:')
a(f's_waitcnt vmcnt({18+NPF})')
do_pass(0, 10, 0, 4608)
G = 84
a(f's_waitcnt vmcnt({2+NPF})')
for k in range(5):
    for i in range(8):
        a(f'v_dot2_f32_bf16 v{G+i}, v{GX+6*i+k}, v{20+k}, ' + ('0' if k == 0 else f'v{G+i}'))
for sh in ('row_shr:1', 'row_shr:2', 'row_shr:4', 'row_shr:8'):
    for i in range(8): a(f'v_add_f32_dpp v{G+i}, v{G+i}, v{G+i} {sh} row_mask:0xf bank_mask:0xf bound_ctrl:0')
for sh in ('row_bcast:15 row_mask:0xa', 'row_bcast:31 row_mask:0xc'):
    for i in range(8): a(f'v_add_f32_dpp v{G+i}, v{G+i}, v{G+i} {sh} bank_mask:0xf')
a('s_nop 0')
for i in range(8): a(f'v_readlane_b32 s{40+i}, v{G+i}, 63')
a('s_nop 1')
for i in range(8): a(f'v_writelane_b32 v{G}, s{40+i}, {i}')
for op in ('v_cvt_pk_bf16_f32 v{0}, v{0}, v{0}', 'v_and_b32 v{0}, 0xffff0000, v{0}', 'v_mul_f32 v{0}, 0xbfb8aa3b, v{0}', 'v_exp_f32 v{0}, v{0}', 's_nop 0',
           'v_add_f32 v{0}, 1.0, v{0}', 'v_rcp_f32 v{0}, v{0}', 's_nop 0', 'v_cvt_pk_bf16_f32 v{0}, v{0}, v{0}', 'v_and_b32 v{0}, 0xffff0000, v{0}'):
    a(op.format(G))
a(f'''s_lshl_b32 s67, s66, 7
s_add_u32 s67, s67, {GATE}
s_mov_b64 exec, 0xff
buffer_store_dword v{G}, v9, {sr(S_WS)}, s67 offen sc1
s_mov_b64 exec, -1''')
a('L_pre_done:')
ts(2)
if OPT['disc']:
    L = a.label('L_vid')
    a(f'''s_mov_b32 s64, 0
    {L}:
    ds_read_b32 v1, v38 offset:4
    s_add_u32 s64, s64, 1
    s_waitcnt lgkmcnt(0)
    v_readfirstlane_b32 s3, v1
    s_cmp_ge_u32 s64, 0x400000
    s_cselect_b32 s3, s2, s3
    s_cmp_eq_u32 s3, -1
    s_cbranch_scc1 {L}''')
g1_roles(64)

a(f'''s_and_b32 s64, s{S_WAVE}, 1        ; wm
s_lshr_b32 s65, s{S_WAVE}, 1        ; wn
v_and_b32 v1, 15, v0
s_lshl_b32 s66, s64, 6
v_add_u32 v1, s66, v1
v_lshrrev_b32 v2, 4, v0
v_bfe_u32 v3, v1, 1, 3
v_lshlrev_b32 v1, 7, v1
v_xor_b32 v4, v2, v3
v_lshl_add_u32 v{XA[0]}, v4, 4, v1
v_xor_b32 v4, 4, v4
v_lshl_add_u32 v{XA[1]}, v4, 4, v1
v_mul_u32_u24 v5, 1536, v2
v_bfe_u32 v7, v0, 2, 2
v_lshl_add_u32 v5, v7, 6, v5
v_and_b32 v8, 3, v0
v_lshl_add_u32 v5, v8, 3, v5
v_add_u32 v5, 16384, v5
v_and_b32 v4, 1, v2
s_mul_i32 s66, s65, 3''')
for b in range(3):
    a(f'''s_add_u32 s67, s66, {b}
    s_lshr_b32 s68, s67, 1
    s_lshl_b32 s68, s68, 8
    s_and_b32 s67, s67, 1
    v_xor_b32 v6, s67, v4
    v_lshlrev_b32 v6, 5, v6
    v_add3_u32 v{WA[b]}, v5, v6, s68''')
srd(a, S_A, P_OUT, 2048*1280)
S_A2, S_J2, S_INC = 69, 70, 78
g2_roles(S_A2, S_J2, 76, S_INC, 66)
VL16, VL16B, VQO, VGO, VF2 = 4, 5, 3, 6, 7
a(f'''s_lshl_b32 s66, s{S_MT}, 1
s_add_u32 s66, s66, s64
s_mul_i32 s66, s66, 48
s_mul_i32 s67, s{S_NT}, 3
s_add_u32 s66, s66, s67
s_lshl_b32 s66, s66, 12
s_add_u32 s66, s66, {HB}
s_lshl_b32 s67, s65, 13
s_add_u32 s71, s66, s67
s_lshl_b32 s67, s65, 10
s_add_u32 s72, s66, s67
s_add_u32 s72, s72, 4096
s_lshl_b32 s66, s{S_MT}, 4
s_add_u32 s66, s66, s{S_NT}
s_lshl_b32 s66, s66, 2
s_add_u32 s66, s66, s{S_WAVE}
s_lshl_b32 s66, s66, 7
s_add_u32 s73, s66, {F2}
s_mul_i32 s74, s{S_A2}, {48*4096}
s_mul_i32 s66, s{S_WAVE}, {12*4096}
s_add_u32 s74, s74, s66
s_add_u32 s74, s74, {HB}
s_mul_i32 s75, s{S_J2}, {48*5120}
s_mul_i32 s66, s{S_WAVE}, {12*5120}
s_add_u32 s75, s75, s66
s_add_u32 s75, s75, {WDP}
s_mov_b32 s77, s76
v_and_b32 v1, 15, v0
s_lshl_b32 s66, s{S_A2}, 6
s_lshl_b32 s67, s{S_WAVE}, 4
s_add_u32 s66, s66, s67
v_add_u32 v8, s66, v1
v_mul_u32_u24 v{VQO}, 1280, v8
v_lshl_add_u32 v{VQO}, v2, 3, v{VQO}
s_mul_i32 s67, s{S_J2}, 160
v_add_u32 v{VQO}, s67, v{VQO}
v_lshrrev_b32 v9, 3, v8
v_lshlrev_b32 v9, 7, v9
v_and_b32 v8, 7, v8
v_lshl_add_u32 v9, v8, 2, v9
v_add_u32 v{VGO}, {GATE}, v9
v_and_b32 v1, 7, v0
v_lshlrev_b32 v1, 1, v1
s_lshr_b32 s66, s{S_A2}, 1
s_lshl_b32 s66, s66, 4
s_lshl_b32 s67, s{S_WAVE}, 2
s_add_u32 s66, s66, s67
s_lshl_b32 s66, s66, 2
s_and_b32 s67, s{S_A2}, 1
s_add_u32 s66, s66, s67
v_add_lshl_u32 v1, v1, s66, 7
v_add_u32 v{VF2}, {F2}, v1
v_lshlrev_b32 v{VL16}, 4, v0
v_add_u32 v{VL16B}, 4096, v{VL16}''')
def rdX(st, fs, mb): return (f'X{mb}{fs}', f'ds_read_b128 {vr(XF[fs]+4*mb)}, v{XA[st]} offset:{mb*2048}')
def rdW(st, w):
    mat, b = w // 3, w % 3
    o = st * 6144 + mat * 12288
    return [(f'W{w}', f'ds_read_b64_tr_b16 {vr(WF+4*w,2)}, v{WA[b]} offset:{o}'),
            (f'W{w}', f'ds_read_b64_tr_b16 {vr(WF+4*w+2,2)}, v{WA[b]} offset:{o+768}')]
WORD = [0, 3, 1, 4, 2, 5]
if OPT['f1early']:
    a(f'''v_mov_b32 v39, 1
    s_waitcnt vmcnt(0)
    s_mov_b64 exec, 1
    ds_add_rtn_u32 v39, v38, v39
    s_mov_b64 exec, -1
    s_waitcnt lgkmcnt(0)
    v_readfirstlane_b32 s66, v39
    s_nop 0
    s_cmp_lg_u32 s66, 3
    s_cbranch_scc1 L_nof1''')
    flag_store(79, 1, 2)
    a('L_nof1:')
    ts(1)
if OPT['cprio']: a(f's_setprio {OPT["cprio"]}')
a('s_barrier')
ts(3)
lq = Q('lgkmcnt', 15)
init = [rdX(0, 0, 0)] + rdW(0, WORD[0]) + [rdX(0, 0, m) for m in (1, 2, 3)]
for w in WORD[1:]: init += rdW(0, w)
for tag, ins in init: lq.issue(tag, ins)
a(f's_mov_b32 s64, 0\ns_mov_b32 s65, 0\ns_mov_b32 s67, {-2*STAGE & 0xffffffff}\ns_mov_b32 s68, {STAGE}')
a('.p2align 3\nL_g1_loop:')
for st in range(2):
    pend = []
    for wi, w in enumerate(WORD):
        for mb in range(4):
            lq.need({f'W{w}', f'X{mb}{st}'})
            acc = acc1(w // 3, w % 3, mb)
            a(f'v_mfma_f32_16x16x32_bf16 {vr(acc)}, {vr(WF+4*w)}, {vr(XF[st]+4*mb)}, {vr(acc)}')
            n = wi * 4 + mb
            if st == 0:
                if n == 0: pend += [rdX(1, 1, m) for m in range(4)]
                if mb == 3: pend += rdW(1, w)
            else:
                if n == 0 and not OPT['f1early']:
                    a(f's_cmp_lg_u32 s64, {OPT["pfit"]}\ns_cbranch_scc1 L_g1_nw\ns_waitcnt vmcnt(0)\nL_g1_nw:')
                if n == 1:
                    a('s_add_u32 s65, s65, 1\ns_cmp_eq_u32 s65, 3\ns_cselect_b32 s66, s67, s68\ns_cselect_b32 s65, 0, s65')
                if n in (2, 3, 4, 5, 6):
                    r = (XA + WA)[n - 2]
                    a(f'v_add_u32 v{r}, s66, v{r}')
                if n == 7:
                    lq.drain(); a('s_barrier')
                    pend += [rdX(0, 0, 0)] + rdW(0, WORD[0]) + [rdX(0, 0, m) for m in (1, 2, 3)] + rdW(0, WORD[1])
                if n > 7 and mb == 3: pend += rdW(0, w)
                if n == 17 and not OPT['f1early']:
                    a(f's_lshl_b32 s66, s{S_WAVE}, 4\ns_add_u32 s66, s66, s64\ns_cmp_lg_u32 s66, {OPT["pfit"]}\ns_cbranch_scc1 L_g1_nf')
                    flag_store(79, 1, 2)
                    a('L_g1_nf:')
            if pend and not (st == 1 and n < 7):
                tag, ins = pend.pop(0); lq.issue(tag, ins)
    for tag, ins in pend: lq.issue(tag, ins)
a('s_add_u32 s64, s64, 1\ns_cmp_lt_u32 s64, 10\ns_cbranch_scc1 L_g1_loop')
ts(4)
a('s_waitcnt lgkmcnt(0)\ns_nop 4')
def hprod(b, mb, dst):
    g = acc1(0, b, mb); u = acc1(1, b, mb)
    for i in range(4): a(f'v_mul_f32 v{g+i}, v{g+i}, v{u+i}')
    a(f'v_cvt_pk_bf16_f32 v{dst}, v{g}, v{g+1}\nv_cvt_pk_bf16_f32 v{dst+1}, v{g+2}, v{g+3}')
for wn in range(2):
    L = a.label('L_hep')
    a(f's_cmp_{"ge" if wn == 0 else "lt"}_u32 s{S_WAVE}, 2\ns_cbranch_scc1 {L}')
    bA, bB, bS = (0, 1, 2) if wn == 0 else (1, 2, 0)
    for mb in range(4):
        d = 128 + 4 * mb
        hprod(bA, mb, d); hprod(bB, mb, d + 2)
        a(f'buffer_store_dwordx4 {vr(d)}, v{VL16}, {sr(S_WS)}, s71 offen offset:{mb*1024} sc1')
    for mp in range(2):
        d = 144 + 4 * mp
        hprod(bS, 2 * mp, d); hprod(bS, 2 * mp + 1, d + 2)
        a(f'buffer_store_dwordx4 {vr(d)}, v{VL16}, {sr(S_WS)}, s72 offen offset:{mp*2048} sc1')
    a(f'{L}:')
DH = 4
WR = 8; WT = 88; HR = 108; ACC2 = 176
a(f'''v_mov_b32 v173, {LFLAG}
v_mov_b32 v1, 1
s_mov_b64 exec, 1
ds_add_u32 v173, v1 offset:4
s_mov_b64 exec, -1''')
for i in range(80): a(f'v_mov_b32 v{ACC2+i}, 0')
a(f'''s_mul_i32 s66, s{S_WAVE}, 10240
v_add_u32 v172, s66, v{VL16}
v_add_u32 v174, {STA}, v172
s_waitcnt vmcnt(0)''')
flag_store(73, 1, 2)
if OPT['cprio']: a('s_setprio 0')
ts(5)
vq = Q('vmcnt', 63)
def ld_wd(s):
    r = WR + 20 * (s % 4)
    a(f's_mul_i32 s79, s77, 5120\ns_add_u32 s79, s79, s75')
    for _ in range(5 if s == 3 else 1): step12(77, S_INC, 66)
    for db in range(4): vq.issue(('w', s), f'buffer_load_dwordx4 {vr(r+4*db)}, v{VL16}, {sr(S_WS)}, s79 offen offset:{db*1024} sc1')
    vq.issue(('w', s), f'buffer_load_dwordx4 {vr(r+16)}, v{VL16B}, {sr(S_WS)}, s79 offen sc1')
def ld_h(s):
    r = HR + 16 * (s % DH)
    a(f's_lshl_b32 s79, s76, 12\ns_add_u32 s79, s79, s74')
    step12(76, S_INC, 66)
    for mb in range(4): vq.issue(('h', s), f'buffer_load_dwordx4 {vr(r+4*mb)}, v{VL16}, {sr(S_WS)}, s79 offen offset:{mb*1024} sc1')
for s in range(4): ld_wd(s)
a(f's_or_b32 s66, s2, s{S_WAVE}\ns_cmp_lg_u32 s66, 0\ns_cbranch_scc1 L_noepoch\ns_mov_b32 s66, {EPOCH}')
flag_store(66, 1, 2)
a('L_noepoch:')
poll([VF2], 1)
vq.q = []
ts(7)
if OPT['hpf']:
    a(f'''v_min_u32 v1, 47, v0
    s_and_b32 s66, s{S_J2}, {7 if OPT['map2'] else 3}
    s_mul_i32 s66, s66, {(48 if OPT['map2'] else 96)*128}
    v_lshl_add_u32 v1, v1, 7, s66''')
    vq.issue('pf', f'buffer_load_dword v175, v1, {sr(S_WS)}, s74 offen sc1')
    if not OPT['map2']:
        a(f'v_add_u32 v1, {48*128}, v1')
        vq.issue('pf', f'buffer_load_dword v175, v1, {sr(S_WS)}, s74 offen sc1')
for s in range(DH): ld_h(s)
def rd_st(s, db):
    base = 174 if s < 6 else 172
    return f'ds_read_b128 {vr(WT+4*db)}, v{base} offset:{(s & 1) * 5120 + db*1024}'
lq = Q('lgkmcnt', 15)
QR = HR
for s in range(12):
    vq.need({('h', s), ('w', s)})
    r = HR + 16 * (s % DH); w = WT if 4 <= s < 8 else WR + 20 * (s % 4)
    if s % 3 == 1:
        a(f'''v_swap_b32 v{r+2}, v{r+4}
        v_swap_b32 v{r+3}, v{r+5}
        v_swap_b32 v{r+10}, v{r+12}
        v_swap_b32 v{r+11}, v{r+13}
        s_nop 1''')
    if s == 3:
        lds_wait(173, 1, 0, 1)
        for db in range(5): lq.issue(('t', 4, db), rd_st(4, db))
    for db in range(5):
        if 4 <= s < 8: lq.need(('t', s, db))
        for mb in range(4):
            acc = ACC2 + 4 * (db * 4 + mb)
            a(f'v_mfma_f32_16x16x32_bf16 {vr(acc)}, {vr(w+4*db)}, {vr(r+4*mb)}, {vr(acc)}')
        if 4 <= s < 7: lq.issue(('t', s + 1, db), rd_st(s + 1, db))
    if s + DH < 12: ld_h(s + DH)
    if s < 4: ld_wd(s + 8)
    if s == OPT['ysig']:
        a('v_mov_b32 v1, 1\ns_mov_b64 exec, 1')
        lq.issue('sig', 'ds_add_u32 v173, v1 offset:4')
        a('s_mov_b64 exec, -1')
    if s == 8:
        vq.issue('q', f'buffer_load_dword v{QR+10}, v{VGO}, {sr(S_WS)}, 0 offen sc1')
        for db in range(5): vq.issue('q', f'buffer_load_dwordx2 {vr(QR+2*db,2)}, v{VQO}, {sr(S_X)}, 0 offen offset:{32*db}')
ts(8)
a('s_nop 7')
for w in range(4):
    L = a.label('L_red')
    a(f's_cmp_lg_u32 s{S_WAVE}, {w}\ns_cbranch_scc1 {L}')
    for k in range(3):
        o = (w + 1 + k) & 3
        for db in range(5):
            a(f'ds_write_b128 v{174 if k < 2 else 172}, {vr(ACC2+4*(db*4+o))} offset:{(k & 1)*5120 + db*1024}')
    for db in range(5):
        for i in range(4): a(f'v_mov_b32 v{8+4*db+i}, v{ACC2+4*(db*4+w)+i}')
    for k in range(3):
        sw = (w - 1 - k) & 3
        a(f'v_add_u32 v{88+k}, {(STA if k < 2 else STB) + sw*10240 + (k & 1)*5120}, v{VL16}')
    a(f'{L}:')
a(f'''v_lshrrev_b32 v2, 2, v0
v_bfe_u32 v1, v2, 1, 2
v_xor_b32 v1, s{S_WAVE}, v1
v_lshlrev_b32 v1, 5, v1
v_lshl_add_u32 v2, v2, 7, v1
v_and_b32 v1, 3, v0
v_lshl_add_u32 v2, v1, 3, v2
v_add_u32 v2, {Y2L}, v2
s_waitcnt vmcnt(0)
v_sub_f32 v{QR+11}, 1.0, v{QR+10}
s_waitcnt lgkmcnt(0)
s_barrier''')
ts(6)
YR = 92
for db in range(5): a(f'ds_read_b64_tr_b16 {vr(YR+2*db,2)}, v2 offset:{db*2048}')
for k in range(3):
    for db in range(5): a(f'ds_read_b128 {vr(28+20*k+4*db)}, v{88+k} offset:{db*1024}')
a('s_waitcnt lgkmcnt(15)')
PR = 132
for db in range(5):
    for h in range(2):
        q = QR + 2*db + h; y = YR + 2*db + h; p = PR + 4*db + 2*h
        a(f'''v_lshlrev_b32 v124, 16, v{q}
        v_and_b32 v125, 0xffff0000, v{q}
        v_lshlrev_b32 v126, 16, v{y}
        v_and_b32 v127, 0xffff0000, v{y}
        v_mul_f32 v124, v124, v126
        v_mul_f32 v125, v125, v127
        v_mul_f32 v{p}, v{QR+10}, v124
        v_mul_f32 v{p+1}, v{QR+10}, v125''')
for k in range(3):
    a(f's_waitcnt lgkmcnt({10-5*k})')
    for i in range(20): a(f'v_add_f32 v{8+i}, v{8+i}, v{28+20*k+i}')
for db in range(5):
    for i in range(4): a(f'v_fma_f32 v{PR+4*db+i}, v{QR+11}, v{8+4*db+i}, v{PR+4*db+i}')
    a(f'v_cvt_pk_bf16_f32 v{152+2*db}, v{PR+4*db}, v{PR+1+4*db}\nv_cvt_pk_bf16_f32 v{153+2*db}, v{PR+2+4*db}, v{PR+3+4*db}')
    a(f'buffer_store_dwordx2 {vr(152+2*db,2)}, v{VQO}, {sr(S_A)}, 0 offen offset:{32*db}')
ts(9)
ts_dump()
a('s_endpgm')

a('L_loader:')
LW = 66
a(f's_sub_u32 s{LW}, s{S_WAVE}, 4')
a(f'''v_lshrrev_b32 v3, 3, v0
s_lshl_b32 s67, s{LW}, 5
v_add_u32 v3, s67, v3
v_bfe_u32 v4, v3, 1, 3
v_and_b32 v5, 7, v0
v_xor_b32 v4, v4, v5
v_mul_u32_u24 v3, 1280, v3
v_lshl_add_u32 v200, v4, 4, v3
v_xor_b32 v4, 4, v4
v_lshl_add_u32 v201, v4, 4, v3
v_add_u32 v201, {8*1280}, v201
v_add_u32 v202, {16*1280}, v200
v_add_u32 v203, {16*1280}, v201''')
for n in range(3):
    a(f'''v_lshrrev_b32 v3, 4, v0
    v_add_u32 v3, {4*n}, v3
    v_mul_u32_u24 v4, 86, v3
    v_lshrrev_b32 v4, 8, v4
    v_mul_u32_u24 v5, 3, v4
    v_sub_u32 v5, v3, v5
    v_and_b32 v7, 2, v4
    v_bfe_u32 v6, v0, 2, 2
    v_lshl_add_u32 v4, v4, 2, v6
    s_lshl_b32 s67, s{LW}, 4
    v_add_u32 v4, s67, v4
    v_mul_u32_u24 v4, 3072, v4
    v_lshl_add_u32 v4, v5, 6, v4
    v_and_b32 v6, 3, v0
    v_xor_b32 v6, v6, v7
    v_lshl_add_u32 v{204+n}, v6, 4, v4''')
a(f'''s_lshl_b32 s69, s{LW}, 12
s_mul_i32 s70, s{LW}, 3072
s_add_u32 s70, s70, 16384
s_mov_b32 s71, 0
s_waitcnt lgkmcnt(0)
s_load_dword s{S_TAG}, s[{P_WS}:{P_WS+1}], {EPOCH}''')
srd(a, S_X, P_Q, 2048*1280)
srd(a, S_WG, P_WG, 640*3072)
srd(a, S_WU, P_WU, 640*3072)
srd(a, S_WS, P_WS, WS_SIZE)
def g1_issue():
    a(f's_lshl_b32 s72, s68, 7\ns_add_u32 s72, s72, s44\ns_mul_i32 s73, s68, {64*3072}\ns_add_u32 s73, s73, s45\ns_add_u32 s74, s71, s69\ns_add_u32 s75, s71, s70')
    for j in range(4):
        a(f's_add_u32 m0, s74, {j*1024}\n' + ('s_add_u32 s68, s68, 1' if j == 0 else 's_nop 0'))
        a(f'buffer_load_dwordx4 v{200+j}, {sr(S_X)}, s72 offen lds')
    for n in range(3):
        a(f's_add_u32 m0, s75, {n*1024}\ns_nop 0')
        a(f'buffer_load_dwordx4 v{204+n}, {sr(S_WG)}, s73 offen lds')
        a(f's_add_u32 m0, s75, {12288 + n*1024}\ns_nop 0')
        a(f'buffer_load_dwordx4 v{204+n}, {sr(S_WU)}, s73 offen lds')
    a(f'''s_cmp_ge_u32 s68, 10
    s_cselect_b32 s68, 0, s68
    s_add_u32 s71, s71, {STAGE}
    s_cmp_eq_u32 s71, {3*STAGE}
    s_cselect_b32 s71, 0, s71''')
a('s_waitcnt lgkmcnt(0)')
make_tag()
if OPT['disc']:
    a(f'''s_getreg_b32 s72, hwreg(HW_REG_XCC_ID)
    s_and_b32 s72, s72, 7
    s_and_b32 s73, s{S_TAG}, 0xfffffff8
    s_or_b32 s74, s73, s72
    s_lshr_b32 s75, s2, 3
    s_lshl_b32 s75, s75, 7
    s_and_b32 s76, s2, 7
    s_lshl_b32 s76, s76, 2
    s_add_u32 s75, s75, s76
    s_add_u32 s75, s75, {DISC}
    s_cmp_lg_u32 s{LW}, 0
    s_cbranch_scc1 L_norec
    v_mov_b32 v3, s74
    v_mov_b32 v4, 0
    s_mov_b64 exec, 1
    buffer_store_dword v3, v4, {sr(S_WS)}, s75 offen sc1
    s_mov_b64 exec, -1
    L_norec:''')
    if OPT['b0']: a('s_barrier')
    if OPT['gpf']:
        a(f'''s_cmp_eq_u32 s{LW}, 2
        s_cselect_b32 s76, s{P_WG}, s{P_WU}
        s_cselect_b32 s77, s{P_WG+1}, s{P_WU+1}
        s_cmp_lt_u32 s{LW}, 2
        s_cselect_b32 s76, s{P_Q}, s76
        s_cselect_b32 s77, s{P_Q+1}, s77
        s_cselect_b32 s67, 39, 59
        s_cselect_b32 s78, 80, 60
        s_mul_i32 s78, s78, s2
        s_cmp_eq_u32 s{LW}, 1
        s_cselect_b32 s79, 40, 0
        s_add_u32 s78, s78, s79
        v_min_u32 v25, s67, v0
        v_add_lshl_u32 v25, v25, s78, 7''')
    a(f'''
    v_lshrrev_b32 v3, 3, v0
    v_lshlrev_b32 v3, 7, v3
    v_and_b32 v4, 7, v0
    v_lshl_add_u32 v3, v4, 2, v3
    s_lshr_b32 s75, s2, 6
    s_lshl_b32 s75, s75, 10
    s_add_u32 s75, s75, {DISC}''')
if OPT['bpre'] == 1: a('s_barrier')
if OPT['disc']:
    a(f'buffer_load_dword v4, v3, {sr(S_WS)}, s75 offen sc1')
    if OPT['gpf']: a('global_load_dword v33, v25, s[76:77]\ns_waitcnt vmcnt(1)')
    else: a('s_waitcnt vmcnt(0)')
    a(f'''s_mov_b32 s64, 0
    s_branch L_disc_chk
    L_disc:
    buffer_load_dword v4, v3, {sr(S_WS)}, s75 offen sc1
    s_add_u32 s64, s64, 1
    s_waitcnt vmcnt(0)
    L_disc_chk:
    v_xor_b32 v4, s73, v4
    v_cmp_lt_u32 vcc, 7, v4
    s_cmp_eq_u64 vcc, 0
    s_cbranch_scc1 L_disc_ok
    s_cmp_lt_u32 s64, 0x8000
    s_cbranch_scc1 L_disc
    L_disc_ok:
    v_cmp_gt_u32 vcc, s72, v4
    s_bcnt1_i32_b64 s76, vcc
    v_cmp_eq_u32 vcc, s72, v4
    s_and_b32 s77, s2, 63
    s_lshl_b64 s[78:79], 1, s77
    s_sub_u32 s78, s78, 1
    s_subb_u32 s79, s79, 0
    s_and_b64 s[78:79], s[78:79], vcc
    s_bcnt1_i32_b64 s77, s[78:79]
    s_add_u32 s76, s76, s77
    s_and_b32 s77, s76, 7
    s_lshl_b32 s77, s77, 3
    s_lshr_b32 s76, s76, 3
    s_add_u32 s76, s76, s77
    s_and_b32 s3, s2, 0xc0
    s_add_u32 s3, s3, s76
    v_mov_b32 v3, {PRE + 39424}
    v_mov_b32 v4, s3
    ds_write_b32 v3, v4 offset:4''')
ts(3)
if TS == 1: a('v_writelane_b32 v220, s64, 8')
g1_roles(72)
a(f's_mul_i32 s44, s{S_MT}, {128*1280}\ns_mul_i32 s45, s{S_NT}, 192')
a(f'''s_add_u32 s68, s{S_MT}, s{S_NT}
s_mul_i32 s72, s68, 6554
s_lshr_b32 s72, s72, 16
s_mul_i32 s72, s72, 10
s_sub_u32 s68, s68, s72''')
if OPT['nrot'] == 5: a('s_and_b32 s68, s68, 14')
if OPT['nrot'] == 1: a('s_mov_b32 s68, 0')
if OPT['nrot'] == 2: a('s_and_b32 s68, s68, 1')
g1_issue()
srd(a, S_A, P_SSM, 640*4096)
PD = OPT['pd']
if OPT['l2pf']:
    a(f'''s_and_b32 s72, s2, 7
    s_lshr_b32 s73, s2, 3
    s_and_b32 s67, s72, 1
    s_lshl_b32 s67, s67, 10
    s_lshl_b32 s74, s73, 5
    s_add_u32 s67, s67, s74
    v_add_u32 v25, s67, v0
    v_mul_u32_u24 v25, 1280, v25
    s_mul_i32 s74, s73, 24
    s_sub_u32 s74, s74, 32
    v_add_u32 v26, s74, v0
    v_cmp_le_u32 vcc, 384, v26
    v_subrev_u32 v27, 384, v26
    v_mov_b32 v28, s{P_WG}
    v_cndmask_b32 v26, v26, v27, vcc
    v_mov_b32 v29, s{P_WG+1}
    v_mov_b32 v30, s{P_WU}
    v_mov_b32 v31, s{P_WU+1}
    v_cndmask_b32 v28, v28, v30, vcc
    v_cndmask_b32 v29, v29, v31, vcc
    v_mul_u32_u24 v27, 10923, v26
    v_lshrrev_b32 v27, 16, v27
    v_mul_u32_u24 v30, 6, v27
    v_sub_u32 v26, v26, v30
    v_mul_u32_u24 v27, 3072, v27
    v_lshl_add_u32 v27, v26, 7, v27
    s_lshr_b32 s74, s72, 1
    s_mul_i32 s74, s74, 768
    v_add_u32 v27, s74, v27
    v_cmp_gt_u32 vcc, 32, v0
    v_mov_b32 v30, s{P_Q}
    v_mov_b32 v31, s{P_Q+1}
    v_mov_b32 v212, {64*3072}
    v_mov_b32 v26, 128
    v_cndmask_b32 v28, v28, v30, vcc
    v_cndmask_b32 v29, v29, v31, vcc
    v_cndmask_b32 v27, v27, v25, vcc
    v_cndmask_b32 v212, v212, v26, vcc
    s_sub_u32 s74, s{LW}, 2
    s_and_b32 s74, s74, 3
    s_add_u32 s74, s74, 2
    v_mul_lo_u32 v26, v212, s74
    v_add_u32 v27, v27, v26
    v_add_co_u32 v210, vcc, v28, v27
    v_lshlrev_b32 v212, 2, v212
    s_mov_b32 s79, s74
    v_addc_co_u32 v211, vcc, 0, v29, vcc''')
def l2pf(limit_expr):
    if not OPT['l2pf']: return
    L = a.label('L_nl2')
    a(f'''s_cmp_gt_u32 s79, {limit_expr}
    s_cbranch_scc1 {L}
    s_mov_b32 exec_hi, 0xffffff
    global_load_dword v213, v[210:211], off
    s_mov_b32 exec_hi, -1
    v_add_co_u32 v210, vcc, v210, v212
    s_add_u32 s79, s79, 4
    s_nop 0
    v_addc_co_u32 v211, vcc, 0, v211, vcc
    {L}:''')
a(f'''v_lshlrev_b32 v15, 7, v0
v_add_u32 v16, {F1 + 0x2000}, v15
v_add_u32 v17, {F1 + 0x4000}, v15
v_add_u32 v18, {F1 + 0x6000}, v15
s_mul_i32 s67, s2, 3
s_add_u32 s67, s67, s{LW}
s_lshl_b32 s67, s67, 12
v_and_b32 v19, 0xf80, v15
v_add_u32 v19, s67, v19
v_add_u32 v15, {F1}, v15
s_lshr_b32 s72, s3, 3
s_lshl_b32 s72, s72, 2
s_add_u32 s72, s72, s{LW}
s_mul_i32 s72, s72, {(120 if OPT['map2'] else 60)*128}
s_and_b32 s73, s3, {0 if OPT['map2'] else 4}
s_mul_i32 s73, s73, {48*5120}
s_add_u32 s72, s72, s73
s_add_u32 s72, s72, {WDP}
v_min_u32 v3, 59, v0
v_lshl_add_u32 v214, v3, 7, s72
v_add_u32 v215, {60*128}, v214''')
if OPT['pro'] == 1:
    a('s_waitcnt vmcnt(0)\ns_barrier')
    g1_issue()
    a('s_mov_b32 s76, 0\ns_branch L_ld_after_bar')
else:
    g1_issue()
    l2pf(PD - 1)
    a('s_mov_b32 s76, 0')
ts(1)
a('L_ld_loop:\ns_waitcnt vmcnt(10)')
if OPT['wpl']:
    a(f's_lshl_b32 s77, s{LW}, 4\ns_add_u32 s77, s77, s76\ns_cmp_lg_u32 s77, {48 + OPT["fl"] + 2}\ns_cbranch_scc1 L_nochk1')
    for i in range(4): a(f'v_xor_b32 v{20+i}, s{S_TAG}, v{20+i}')
    a('v_or3_b32 v20, v20, v21, v22\nv_or_b32 v20, v20, v23\nv_cmp_ne_u32 vcc, 0, v20\ns_cmp_eq_u64 vcc, 0\ns_cbranch_scc1 L_nochk1')
    poll([15, 16, 17, 18], 20)
    a('L_nochk1:')
a('s_barrier')
a('L_ld_after_bar:')
if TS == 1: a('s_memrealtime s[100:101]\ns_waitcnt lgkmcnt(0)\ns_mov_b32 m0, s76\ns_nop 0\nv_writelane_b32 v220, s100, m0')
g1_issue()
a(f's_add_u32 s78, s76, {PD}\ns_min_u32 s78, s78, 9')
l2pf('s78')
if OPT['wpl']:
    a(f's_cmp_lg_u32 s77, {48 + OPT["fl"]}\ns_cbranch_scc1 L_nofl')
    for i in range(4): a(f'buffer_load_dword v{20+i}, v{15+i}, {sr(S_WS)}, 0 offen sc1')
    a('L_nofl:')
    a(f's_sub_u32 s78, s76, {OPT["fl"] + 2}\ns_cmp_lg_u32 s78, s{LW}\ns_cbranch_scc1 L_nowp')
    a(f'buffer_load_dword v213, v214, {sr(S_WS)}, 0 offen sc1')
    if OPT['map2']: a(f'buffer_load_dword v213, v215, {sr(S_WS)}, 0 offen sc1')
    a('L_nowp:')
a(f's_cmp_lg_u32 s76, {OPT["pfs"]}\ns_cbranch_scc1 L_nopf')
a(f'buffer_load_dword v24, v19, {sr(S_A)}, 0 offen')
a('L_nopf:')
a('s_add_u32 s76, s76, 1\ns_cmp_lt_u32 s76, 8\ns_cbranch_scc1 L_ld_loop')
def wdpf():
    if OPT['wdpf'] and not OPT['wpl']:
        a(f'buffer_load_dword v213, v214, {sr(S_WS)}, 0 offen sc1\nbuffer_load_dword v213, v215, {sr(S_WS)}, 0 offen sc1')
a(f'''s_cmp_eq_u32 s{LW}, 3
s_cbranch_scc1 L_w7
s_waitcnt vmcnt(10)
s_barrier''')
ts(2)
a(f'''s_mul_i32 s67, s2, 3
s_add_u32 s67, s67, s{LW}
s_lshl_b32 s69, s67, 12
s_mov_b32 s68, {TREG[0]}
s_cmp_eq_u32 s{LW}, 1
s_cselect_b32 s68, {TREG[1]}, s68
s_cmp_eq_u32 s{LW}, 2
s_cselect_b32 s68, {TREG[2]}, s68
s_mul_i32 s70, s{LW}, 4608
s_add_u32 s70, s70, {SREG[0]}
v_lshlrev_b32 v10, 4, v0
s_cmp_ge_u32 s67, 640
s_cbranch_scc1 L_noT''')
srd(a, S_B, P_SSMD, 1280)
for phi in (0, 2):
    a(f's_add_u32 s71, s69, {2*phi}')
    a(f's_add_u32 m0, s68, {phi*CS + 32}\ns_nop 0')
    for i in range(4): a(f'buffer_load_dwordx4 v10, {sr(S_A)}, s71 offen offset:{i*1024} lds')
CACC = 32; CA = [64, 128]; CB = [96, 160]
a(f'''v_lshrrev_b32 v1, 4, v0
v_and_b32 v2, 15, v0
v_add3_u32 v3, v1, v2, -16
v_lshlrev_b32 v4, 1, v3
v_add_u32 v4, s69, v4
v_cmp_gt_i32 vcc, 0, v3
s_lshl_b32 s71, s67, 1
v_mov_b32 v7, s71
v_cndmask_b32 v4, v4, -1, vcc
buffer_load_ushort v5, v4, {sr(S_A)}, 0 offen
buffer_load_ushort v7, v7, {sr(S_B)}, 0 offen''')
a(f'''v_mul_u32_u24 v8, {CS}, v1
v_add_u32 v8, s68, v8
v_lshl_add_u32 v9, v2, 1, v8
v_add_u32 v11, s68, v10
v_mov_b32 v12, 0
v_mov_b32 v13, 0
v_lshl_add_u32 v14, v0, 3, s70
ds_write_b64 v14, v[12:13] offset:4096
v_add_u32 v3, 1, v2
v_and_b32 v4, 3, v3
v_sub_u32 v3, v3, v4
v_lshl_add_u32 v3, v1, 3, v3
v_mul_u32_u24 v4, {CS}, v4
v_lshl_add_u32 v20, v3, 1, v4
v_add_u32 v20, s68, v20
v_lshlrev_b32 v3, 4, v1
v_lshlrev_b32 v4, 5, v2
v_sub_u32 v3, v3, v4
v_add_u32 v3, {2*(2032-1792)}, v3
v_add_u32 v21, s70, v3''')
for i in range(32): a(f'v_mov_b32 v{CACC+i}, 0')
a(f's_waitcnt vmcnt(10)\ns_barrier')
ts(5)
a(f's_add_u32 s71, s69, {UT}\ns_mov_b32 m0, s70\ns_nop 0')
for i in range(4): a(f'buffer_load_dwordx4 v10, {sr(S_WS)}, s71 offen offset:{i*1024} sc1 lds')
wdpf()
NW = 2 if OPT['wdpf'] and not OPT['wpl'] else 0
a('s_barrier')
ts(4)
a(f's_waitcnt vmcnt({4+NW})')
for i in range(4):
    b = 64 + 16 * i
    a(f'''ds_read_b128 {vr(b)}, v11 offset:{32 + i*1024}
    ds_read_b128 {vr(b+4)}, v11 offset:{2*CS + 32 + i*1024}
    ds_read_b64 {vr(b+10,2)}, v11 offset:{32 + i*1024 + 16}''')
a('ds_write_b16 v9, v5\nv_lshlrev_b32 v7, 16, v7')
for i in range(4):
    b = 64 + 16 * i
    a(f's_waitcnt lgkmcnt({min(15, 3*(3-i) + 1 + 2*i)})')
    for k in range(4): a(f'v_alignbit_b32 v{b+12+k}, v{b+4+k}, v{b+k}, 16')
    C = [b+2, b+3, b+10, b+11]
    for k in range(4): a(f'v_alignbit_b32 v{b+4+k}, v{C[k]}, v{b+4+k}, 16')
    a(f'ds_write_b128 v11, {vr(b+12)} offset:{CS + 32 + i*1024}\nds_write_b128 v11, {vr(b+4)} offset:{3*CS + 32 + i*1024}')
a(f's_waitcnt vmcnt({NW})')
ts(6)
if OPT['prio']: a(f's_setprio {OPT["prio"]}')
def conv_reads(fs):
    r = []
    def A(k): return [(f'A{k}{fs}', f'ds_read_b64 {vr(CA[fs]+4*k,2)}, v20 offset:{k*512}'), (f'A{k}{fs}', f'ds_read_b64 {vr(CA[fs]+4*k+2,2)}, v20 offset:{k*512+8}')]
    def B(d): return [(f'B{d}{fs}', f'ds_read_b128 {vr(CB[fs]+4*d)}, v21 offset:{(7-d)*512}')]
    r += A(0)
    for d in range(8): r += B(d)
    for k in range(1, 8): r += A(k)
    return r
lq = Q('lgkmcnt', 15)
for tag, ins in conv_reads(0): lq.issue(tag, ins)
a('s_mov_b32 s71, 0\n.p2align 3\nL_conv_loop:')
for fs in range(2):
    nxt = conv_reads(fs ^ 1)
    a('v_add_u32 v20, 64, v20\nv_add_u32 v21, 64, v21')
    n = 0
    for k in range(8):
        for q in range(k, 8):
            lq.need({f'A{k}{fs}', f'B{q-k}{fs}'})
            a(f'v_mfma_f32_16x16x32_bf16 {vr(CACC+4*q)}, {vr(CA[fs]+4*k)}, {vr(CB[fs]+4*(q-k))}, {vr(CACC+4*q)}')
            n += 1
            if n >= 9 and nxt:
                tag, ins = nxt.pop(0); lq.issue(tag, ins)
    assert not nxt
a('s_add_u32 s71, s71, 1\ns_cmp_lt_u32 s71, 4\ns_cbranch_scc1 L_conv_loop')
ts(7)
a(f'''s_waitcnt lgkmcnt(0)
v_lshlrev_b32 v3, 3, v1
v_lshl_add_u32 v3, v2, 5, v3
v_sub_u32 v4, {2*(2044-1792)}, v3
v_add_u32 v4, s70, v4
v_add_u32 v3, s68, v3''')
for q in range(8): a(f'ds_read_b64 {vr(64+2*q,2)}, v4 offset:{(7-q)*512}')
for q in range(8):
    u = 64 + 2*q; y = CACC + 4*q; t = 96 + 4*q
    a(f'''s_waitcnt lgkmcnt(7)
    v_and_b32 v{t}, 0xffff0000, v{u+1}
    v_lshlrev_b32 v{t+1}, 16, v{u+1}
    v_and_b32 v{t+2}, 0xffff0000, v{u}
    v_lshlrev_b32 v{t+3}, 16, v{u}''')
    for i in range(4): a(f'v_fma_f32 v{y+i}, v{t+i}, v7, v{y+i}')
    a(f'v_cvt_pk_bf16_f32 v{u}, v{y}, v{y+1}\nv_cvt_pk_bf16_f32 v{u+1}, v{y+2}, v{y+3}')
    a(f'ds_write_b64 v3, {vr(u,2)} offset:{q*512}')
a(f's_add_u32 s71, s69, {Y2T}\ns_waitcnt lgkmcnt(0)')
for i in range(4): a(f'ds_read_b128 {vr(96+4*i)}, v11 offset:{i*1024}')
for i in range(4):
    a(f's_waitcnt lgkmcnt({3-i})')
    a(f'buffer_store_dwordx4 {vr(96+4*i)}, v10, {sr(S_WS)}, s71 offen offset:{i*1024} sc1')
a(f's_lshl_b32 s71, s67, 7\ns_add_u32 s71, s71, {F3}\ns_waitcnt vmcnt(0)')
flag_store(71, 3, 4)
ts(8)
a('s_branch L_join')
a(f'L_noT:\ns_waitcnt vmcnt(0)\ns_barrier')
wdpf()
a('s_barrier\ns_branch L_join')
a('L_w7:')
if OPT['wpl']:
    assert OPT['fl'] + 2 + 3 >= 8
    n7 = 0
    if OPT['fl'] + 2 + 3 == 8:
        a(f'buffer_load_dword v213, v214, {sr(S_WS)}, 0 offen sc1'); n7 = 1
        if OPT['map2']: a(f'buffer_load_dword v213, v215, {sr(S_WS)}, 0 offen sc1'); n7 = 2
    a(f's_waitcnt vmcnt({10+n7})\ns_barrier')
else:
    for i in range(4): a(f'buffer_load_dword v{20+i}, v{15+i}, {sr(S_WS)}, 0 offen sc1')
    a('s_waitcnt vmcnt(14)\ns_barrier')
ts(2)
g2_roles(67, 68, 78, 79, 64)
a(f'''v_mov_b32 v1, {LFLAG}
v_mov_b32 v2, 0
v_mov_b32 v3, 0
ds_write_b64 v1, v[2:3]
v_lshlrev_b32 v10, 4, v0
v_add_u32 v11, 4096, v10
s_mul_i32 s75, s68, {48*5120}
s_add_u32 s75, s75, {WDP}''')
for _ in range(4): step12(78, 79, 64)
def stash(ldsbase):
    for i in range(2):
        a('s_mul_i32 s72, s78, 5120\ns_add_u32 s72, s72, s75')
        step12(78, 79, 64)
        for w in range(4):
            a(f's_mov_b32 m0, {ldsbase + w*10240 + i*5120}\ns_nop 0')
            for db in range(4): a(f'buffer_load_dwordx4 v10, {sr(S_WS)}, s72 offen offset:{db*1024} sc1 lds')
            a(f's_mov_b32 m0, {ldsbase + w*10240 + i*5120 + 4096}\ns_nop 0')
            a(f'buffer_load_dwordx4 v11, {sr(S_WS)}, s72 offen sc1 lds')
            if w < 3: a(f's_add_u32 s72, s72, {12*5120}')
if OPT['wpl']:
    a(f's_waitcnt vmcnt({n7})')
else:
    a('s_waitcnt vmcnt(0)')
    for i in range(4): a(f'v_xor_b32 v{20+i}, s{S_TAG}, v{20+i}')
    a('v_or3_b32 v20, v20, v21, v22\nv_or_b32 v20, v20, v23\nv_cmp_ne_u32 vcc, 0, v20\ns_cmp_eq_u64 vcc, 0\ns_cbranch_scc1 L_nochk')
    poll([15, 16, 17, 18], 20)
a('L_nochk:\ns_waitcnt lgkmcnt(0)\ns_barrier')
ts(5)
wdpf()
if OPT['sta9']: stash(STA)
a('s_barrier')
ts(4)
a(f'''s_mul_i32 s68, s68, 80
v_add_lshl_u32 v3, v0, s68, 7
v_add_u32 v12, {F3}, v3
v_and_b32 v3, 15, v0
v_add_lshl_u32 v3, v3, s68, 7
v_add_u32 v13, {F3 + 64*128}, v3
v_lshrrev_b32 v3, 3, v0
v_and_b32 v4, 7, v0
v_lshlrev_b32 v5, 4, v4
v_lshl_add_u32 v5, v3, 12, v5
v_and_b32 v6, 6, v3
v_xor_b32 v6, v6, v4
v_lshlrev_b32 v6, 4, v6
v_lshl_add_u32 v6, v3, 7, v6
v_add_u32 v6, {Y2L}, v6
s_lshl_b32 s69, s68, 12
s_lshl_b32 s70, s67, 7
s_add_u32 s69, s69, s70
s_add_u32 s69, s69, {Y2T}''')
lds_wait(1, 2, 4, 4, 2)
if not OPT['sta9']: stash(STA)
stash(STB)
a('v_mov_b32 v2, 1\ns_waitcnt vmcnt(0)\nds_write_b32 v1, v2')
ts(6)
if OPT['ysig'] < 12: lds_wait(1, 2, 4, 8, 4)
poll([12, 13], 8, 4)
ts(7)
for i in range(10):
    a(f'buffer_load_dwordx4 {vr(16+4*i)}, v5, {sr(S_WS)}, s69 offen sc1')
    if i < 9: a(f's_add_u32 s69, s69, {8*4096}')
for i in range(10):
    a(f's_waitcnt vmcnt({9-i})')
    a(f'ds_write_b128 v6, {vr(16+4*i)} offset:{i*1024}')
ts(8)
a('L_join:\ns_waitcnt lgkmcnt(0)\ns_barrier')
ts(9)
if TS == 1:
    a(f's_lshl_b32 s64, s2, 2\ns_add_u32 s64, s64, s{LW}\ns_lshl_b32 s64, s64, 6\ns_add_u32 s64, s64, {DIAG + 0x20000}\nv_lshlrev_b32 v1, 2, v0\ns_mov_b64 exec, 0x1ff')
    a(f'buffer_store_dword v220, v1, {sr(S_WS)}, s64 offen\ns_mov_b64 exec, -1')
ts_dump()
a('L_end:\ns_endpgm')
print(wrap(a.text(), grid=256, block=512, lds=LDS_TOTAL, vgpr=256, accum=256))
```

```python
import re
NAME = 'gated_mix__ssm_conv_h3__glu_gated_bilinear__prompt'
HDR = open('cdna_kernels/' + NAME + '.s.ref').read().split('; Override launch')[0]

class Asm:
    def __init__(self):
        self.lines = []
        self.nlab = 0
    def __call__(self, s):
        for l in s.strip('\n').split('\n'):
            m = re.search(r'offset:(-?\d+)', l)
            if m:
                v = int(m.group(1)); t = l.strip()
                lim = 4095 if t.startswith(('buffer', 'global')) else 65535
                assert 0 <= v <= lim, l
            self.lines.append('    ' + l.strip() if not l.strip().endswith(':') else l.strip())
    def label(self, base='L'):
        self.nlab += 1
        return f'{base}_{self.nlab}'
    def text(self):
        return '\n'.join(self.lines)

def wrap(body, grid=256, block=512, lds=0, vgpr=256, accum=256, sgpr=102):
    k = NAME + '_kernel'
    return f'''{HDR}; @launch grid=({grid},1,1) block=({block},1,1) lds={lds}
.amdgcn_target "amdgcn-amd-amdhsa--gfx950"
.text
.globl {k}
.p2align 8
.type {k},@function
{k}:
{body}
.section .rodata,"a"
.p2align 6
.amdhsa_kernel {k}
  .amdhsa_next_free_vgpr {vgpr}
  .amdhsa_next_free_sgpr {sgpr}
  .amdhsa_accum_offset {accum}
  .amdhsa_group_segment_fixed_size 0
  .amdhsa_kernarg_size 112
  .amdhsa_user_sgpr_count 2
  .amdhsa_user_sgpr_kernarg_segment_ptr 1
  .amdhsa_system_sgpr_workgroup_id_x 1
.end_amdhsa_kernel
'''

def srd(a, d, lo, nbytes):
    a(f'''s_mov_b32 s{d}, s{lo}
    s_and_b32 s{d+1}, s{lo+1}, 0xffff
    s_mov_b32 s{d+2}, {nbytes}
    s_mov_b32 s{d+3}, 0x20000''')
```

```python
import sys
from asmlib import *

OPT = dict(ts=0, wpre=1, tb=1, peel=1, redi=1, hsl=2, pfit=1, bpre=0, tsg=0, rot2=1, prio=1, cprio=3, hpf=0, rf=3, lateb=1, ysig=3, fl=3, pfe=0, asl=12, nrot=10)
for x in sys.argv[1:]:
    k, v = x.split('='); OPT[k] = int(v)
TS = OPT['ts']

EPOCH = 0; F1 = 0x1000; F3 = 0x9000; F2 = 0x20000; GATE = 0x40000; DIAG = 0x80000
UT = 0x100000; Y2T = 0x380000; HB = 0x600000; WDP = 0xC00000; WS_SIZE = 0xE00000
STAGE = 49152
SPARE = 3 * STAGE
LDS_TOTAL = 163840
CS = 4160
TSZ = 4 * CS
CVSZ = TSZ + 4608
CVREG = [STAGE, STAGE + CVSZ, 2 * STAGE, 0]
Y2L = SPARE
CNT = SPARE + 10240
C_ST, C_H, C_P, C_OK, C_CV, C_OKW = 0, 4, 8, 12, 16, 20
STA = 2 * STAGE
STB = 0
S_X, S_WG, S_WU, S_WS, S_A, S_B, S_C = 4, 8, 12, 16, 20, 24, 28
P_Q, P_K, P_V, P_SHK, P_SSM, P_SSMD, P_WG, P_WU, P_WD, P_GW, P_OUT, P_WS = 32, 34, 36, 38, 40, 42, 46, 48, 50, 52, 54, 58
S_WAVE, S_TAG, S_MT, S_NT = 60, 61, 62, 63
a = Asm()
def ts(i):
    if TS == 1: a(f's_memrealtime s[{80+2*i}:{81+2*i}]')
    if TS == 2: a(f's_memtime s[{80+2*i}:{81+2*i}]')
def ts_dump():
    if not TS: return
    a('s_waitcnt lgkmcnt(0)')
    a(f's_lshl_b32 s64, s2, 3\ns_add_u32 s64, s64, s{S_WAVE}\ns_lshl_b32 s64, s64, 6\ns_add_u32 s64, s64, {DIAG}')
    for i in range(10): a(f'v_mov_b32 v{2+i}, s{80+2*i}')
    a('v_mov_b32 v1, 0\ns_mov_b64 exec, 1')
    a(f'buffer_store_dwordx4 v[2:5], v1, s[{S_WS}:{S_WS+3}], s64 offen')
    a(f'buffer_store_dwordx4 v[6:9], v1, s[{S_WS}:{S_WS+3}], s64 offen offset:16')
    a(f'buffer_store_dwordx2 v[10:11], v1, s[{S_WS}:{S_WS+3}], s64 offen offset:32')
def sr(s): return f's[{s}:{s+3}]'
def vr(v, n=4): return f'v[{v}:{v+n-1}]'

class Q:
    def __init__(self, name, cap): self.q = []; self.name = name; self.cap = cap
    def issue(self, tag, ins=None):
        if ins: a(ins)
        self.q.append(tag)
    def need(self, tags):
        if not isinstance(tags, set): tags = {tags}
        idx = max([i for i, t in enumerate(self.q) if t in tags], default=-1)
        if idx >= 0:
            n = len(self.q) - 1 - idx
            a(f's_waitcnt {self.name}({min(n, self.cap)})')
            self.q = self.q[idx+1:]
    def drain(self):
        a(f's_waitcnt {self.name}(0)'); self.q = []

def poll(addr_regs, tmp, slp=1, sc=64):
    L = a.label('L_poll'); D = a.label('L_pdone')
    a(f's_mov_b32 s{sc}, 0')
    a(f'{L}:')
    for i, r in enumerate(addr_regs):
        a(f'buffer_load_dword v{tmp+i}, v{r}, {sr(S_WS)}, 0 offen sc1')
    a('s_waitcnt vmcnt(0)')
    for i in range(len(addr_regs)): a(f'v_xor_b32 v{tmp+i}, s{S_TAG}, v{tmp+i}')
    for i in range(1, len(addr_regs)): a(f'v_or_b32 v{tmp}, v{tmp}, v{tmp+i}')
    a(f'''v_cmp_ne_u32 vcc, 0, v{tmp}
    s_add_u32 s{sc}, s{sc}, 1
    s_cmp_eq_u64 vcc, 0
    s_cbranch_scc1 {D}
    s_sleep {slp}
    s_cmp_lt_u32 s{sc}, 0x8000
    s_cbranch_scc1 {L}
    {D}:''')
def lds_wait(vaddr, vt, off, val, slp=0, s0=56, s1=57):
    L = a.label('L_lw')
    a(f'''s_mov_b32 s{s0}, 0
    {L}:
    ds_read_b32 v{vt}, v{vaddr} offset:{off}
    s_add_u32 s{s0}, s{s0}, 1
    s_waitcnt lgkmcnt(0)
    v_readfirstlane_b32 s{s1}, v{vt}
    s_cmp_ge_u32 s{s0}, 0x100000
    s_cselect_b32 s{s1}, {val}, s{s1}
    s_cmp_ge_u32 s{s1}, {val}''')
    if slp:
        D = a.label('L_lwd')
        a(f's_cbranch_scc1 {D}\ns_sleep {slp}\ns_branch {L}\n{D}:')
    else:
        a(f's_cbranch_scc0 {L}')
def lds_add(vaddr, vone, off, q=None):
    a('s_mov_b64 exec, 1')
    ins = f'ds_add_u32 v{vaddr}, v{vone} offset:{off}'
    if q: q.issue('sig', ins)
    else: a(ins)
    a('s_mov_b64 exec, -1')
def flag_store(soff_reg, vt0, vt1):
    a(f'''v_mov_b32 v{vt0}, s{S_TAG}
    v_mov_b32 v{vt1}, 0
    s_mov_b64 exec, 1
    buffer_store_dword v{vt0}, v{vt1}, {sr(S_WS)}, s{soff_reg} offen sc1
    s_mov_b64 exec, -1''')
def make_tag():
    a(f's_mul_i32 s{S_TAG}, s{S_TAG}, 1664525\ns_add_u32 s{S_TAG}, s{S_TAG}, 1013904223')
def g2_roles(sa, sj, sstart, sinc, t0):
    a(f'''s_and_b32 s{sa}, s2, 1
    s_lshl_b32 s{sa}, s{sa}, 4
    s_and_b32 s{t0}, s2, 2
    s_lshl_b32 s{t0}, s{t0}, 2
    s_add_u32 s{sa}, s{sa}, s{t0}
    s_bfe_u32 s{t0}, s2, 0x30003
    s_add_u32 s{sa}, s{sa}, s{t0}
    s_and_b32 s{sj}, s2, 4
    s_lshr_b32 s{sinc}, s2, 6
    s_add_u32 s{sj}, s{sj}, s{sinc}
    s_lshl_b32 s{sinc}, s{sinc}, 1
    s_add_u32 s{t0}, s{t0}, s{sinc}
    s_and_b32 s{sstart}, s{t0}, 3
    s_mul_i32 s{sstart}, s{sstart}, {3 if OPT['rot2'] else 0}
    s_bitcmp1_b32 s{t0}, 2
    s_cselect_b32 s{t0}, {2 if OPT['rot2'] else 0}, 0
    s_cselect_b32 s{sinc}, {11 if OPT['rot2'] else 1}, 1
    s_add_u32 s{sstart}, s{sstart}, s{t0}''')
def step12(cur, inc, tmp):
    a(f'''s_add_u32 s{cur}, s{cur}, s{inc}
    s_cmp_ge_u32 s{cur}, 12
    s_cselect_b32 s{tmp}, 12, 0
    s_sub_u32 s{cur}, s{cur}, s{tmp}''')
S_A2, S_J2, S_INC = 69, 70, 78
VL16, VL16B, VQO, VGO, VF2 = 4, 5, 3, 6, 7
def g2_setup():
    srd(a, S_A, P_OUT, 2048*1280)
    srd(a, S_X, P_Q, 2048*1280)
    g2_roles(S_A2, S_J2, 76, S_INC, 66)
    a(f'''s_mul_i32 s74, s{S_A2}, {48*4096}
    s_mul_i32 s66, s{S_WAVE}, {12*4096}
    s_add_u32 s74, s74, s66
    s_add_u32 s74, s74, {HB}
    s_mul_i32 s75, s{S_J2}, {48*5120}
    s_mul_i32 s66, s{S_WAVE}, {12*5120}
    s_add_u32 s75, s75, s66
    s_add_u32 s75, s75, {WDP}
    s_mov_b32 s77, s76
    v_and_b32 v1, 15, v0
    v_lshrrev_b32 v2, 4, v0
    s_lshl_b32 s66, s{S_A2}, 6
    s_lshl_b32 s67, s{S_WAVE}, 4
    s_add_u32 s66, s66, s67
    v_add_u32 v8, s66, v1
    v_mul_u32_u24 v{VQO}, 1280, v8
    v_lshl_add_u32 v{VQO}, v2, 3, v{VQO}
    s_mul_i32 s67, s{S_J2}, 160
    v_add_u32 v{VQO}, s67, v{VQO}
    v_lshrrev_b32 v9, 3, v8
    v_lshlrev_b32 v9, 7, v9
    v_and_b32 v8, 7, v8
    v_lshl_add_u32 v9, v8, 2, v9
    v_add_u32 v{VGO}, {GATE}, v9
    v_min_u32 v1, 5, v0
    v_lshlrev_b32 v1, 1, v1
    s_lshr_b32 s66, s{S_A2}, 1
    s_mul_i32 s66, s66, 12
    s_mul_i32 s67, s{S_WAVE}, 3
    s_add_u32 s66, s66, s67
    s_lshl_b32 s66, s66, 2
    s_and_b32 s67, s{S_A2}, 1
    s_add_u32 s66, s66, s67
    v_add_lshl_u32 v1, v1, s66, 7
    v_add_u32 v{VF2}, {F2}, v1
    v_lshlrev_b32 v{VL16}, 4, v0
    v_add_u32 v{VL16B}, 4096, v{VL16}''')

a(f'''s_cmp_ge_u32 s2, 256
s_cbranch_scc1 L_end
s_load_dwordx16 s[32:47], s[0:1], 0
s_load_dwordx8 s[48:55], s[0:1], 64
s_load_dwordx2 s[58:59], s[0:1], 104''')
ts(0)
a(f'''v_lshrrev_b32 v1, 6, v0
v_and_b32 v0, 63, v0
s_and_b32 s{S_MT}, s2, 1
s_lshl_b32 s{S_MT}, s{S_MT}, 3
v_readfirstlane_b32 s{S_WAVE}, v1
s_bfe_u32 s64, s2, 0x30003
s_add_u32 s{S_MT}, s{S_MT}, s64
s_bfe_u32 s{S_NT}, s2, 0x20001
s_mul_i32 s{S_NT}, s{S_NT}, 3
s_lshr_b32 s64, s2, 6
s_add_u32 s{S_NT}, s{S_NT}, s64
s_cmp_ge_u32 s2, 192
s_cbranch_scc1 L_aux
s_cmp_ge_u32 s{S_WAVE}, 4
s_cbranch_scc1 L_loader''')

ACC = 128; XF = [96, 112]; WF = 64; XA = [58, 59]; WA = [60, 61]
def acc1(mat, b, mb): return ACC + 4 * ((mat * 4 + b) * 4 + mb)
GX = 32
a(f'''v_lshrrev_b32 v1, 2, v0
v_and_b32 v18, 3, v0
v_mul_u32_u24 v12, 1280, v1
v_lshl_add_u32 v12, v18, 4, v12
v_lshlrev_b32 v13, 6, v1
v_lshl_add_u32 v13, v18, 3, v13
s_lshl_b32 s66, s{S_WAVE}, 11
s_add_u32 s66, s66, {SPARE}
v_add_u32 v13, s66, v13
v_lshlrev_b32 v10, 4, v0
v_lshlrev_b32 v11, 2, v0
s_lshr_b32 s64, s2, 2
s_and_b32 s65, s2, 3
s_mul_i32 s67, s64, {32*1280}
s_mul_i32 s68, s65, 320
s_add_u32 s67, s67, s68
s_lshl_b32 s68, s{S_WAVE}, 6
s_add_u32 s67, s67, s68
s_add_u32 s68, s67, {16*1280}
s_lshl_b32 s69, s{S_MT}, 5
s_lshl_b32 s70, s{S_NT}, 2
s_add_u32 s69, s69, s70
s_add_u32 s69, s69, s{S_WAVE}          ; row/4
s_mul_i32 s70, s69, {4*1280}
s_cmp_ge_u32 s{S_NT}, 8
s_cselect_b32 s70, {2048*1280}, s70
s_add_u32 s71, s70, {3*1280}
s_waitcnt lgkmcnt(0)
s_load_dword s{S_TAG}, s[{P_WS}:{P_WS+1}], {EPOCH}''')
srd(a, S_B, P_WD, 1536*1280); srd(a, S_C, P_GW, 1280); srd(a, S_X, P_Q, 2048*1280)
a(f'''s_mov_b32 m0, s66
s_nop 0
buffer_load_dwordx4 v12, {sr(S_B)}, s67 offen lds
s_add_u32 m0, s66, 1024
s_nop 0
buffer_load_dwordx4 v12, {sr(S_B)}, s68 offen lds
s_cmp_lg_u32 s{S_WAVE}, 0
s_cbranch_scc1 L_c_nowd2
s_add_u32 m0, s66, {8192 - 256}
s_nop 0
buffer_load_dwordx4 v12, {sr(S_B)}, s67 offen offset:256 lds
s_add_u32 m0, s66, {8192 + 1024 - 256}
s_nop 0
buffer_load_dwordx4 v12, {sr(S_B)}, s68 offen offset:256 lds
L_c_nowd2:
buffer_load_dwordx4 v[20:23], v10, {sr(S_C)}, 0 offen
buffer_load_dword v24, v11, {sr(S_C)}, 0 offen offset:1024''')
for i in range(4):
    so, o = (70, 1280 * i) if i < 3 else (71, 0)
    a(f'buffer_load_dwordx4 {vr(GX+6*i)}, v10, {sr(S_X)}, s{so} offen offset:{o}')
    a(f'buffer_load_dword v{GX+6*i+4}, v11, {sr(S_X)}, s{so} offen offset:{o+1024}')
if OPT['bpre']: a('s_barrier')
srd(a, S_WS, P_WS, WS_SIZE)
a(f'''s_mul_i32 s44, s65, {2*48*5120}
s_mul_i32 s45, s64, 5120
s_add_u32 s44, s44, s45
s_add_u32 s44, s44, {WDP}
s_lshl_b32 s46, s{S_WAVE}, 1
s_add_u32 s47, s46, 1
s_lshl_b32 s40, s46, 10
s_cmp_ge_u32 s46, 5
s_cselect_b32 s45, {48*5120 - 5*1024}, 0
s_add_u32 s40, s40, s45
s_add_u32 s40, s40, s44
s_lshl_b32 s41, s47, 10
s_cmp_ge_u32 s47, 5
s_cselect_b32 s45, {48*5120 - 5*1024}, 0
s_add_u32 s41, s41, s45
s_add_u32 s41, s41, s44
s_add_u32 s42, s44, {48*5120 + 3*1024}
s_lshr_b32 s43, s69, 1
s_lshl_b32 s43, s43, 7
s_and_b32 s45, s69, 1
s_lshl_b32 s45, s45, 4
s_add_u32 s43, s43, s45
s_add_u32 s43, s43, {GATE}
s_cmp_ge_u32 s{S_NT}, 8
s_cselect_b32 s43, {WS_SIZE}, s43
s_lshl_b32 s79, s2, 7
s_add_u32 s79, s79, {F1}''')
a(f'''s_and_b32 s64, s{S_WAVE}, 1        ; wm
s_lshr_b32 s65, s{S_WAVE}, 1        ; wn
v_and_b32 v1, 15, v0
s_lshl_b32 s66, s64, 6
v_add_u32 v1, s66, v1
v_lshrrev_b32 v2, 4, v0
v_bfe_u32 v3, v1, 1, 3
v_lshlrev_b32 v1, 7, v1
v_xor_b32 v4, v2, v3
v_lshl_add_u32 v{XA[0]}, v4, 4, v1
v_xor_b32 v4, 4, v4
v_lshl_add_u32 v{XA[1]}, v4, 4, v1
v_lshlrev_b32 v5, 11, v2
v_bfe_u32 v7, v0, 2, 2
v_lshl_add_u32 v5, v7, 6, v5
v_and_b32 v8, 3, v0
v_lshl_add_u32 v5, v8, 3, v5
s_lshl_b32 s66, s65, 9
s_add_u32 s66, s66, 16384
v_add_u32 v5, s66, v5
v_and_b32 v4, 1, v2
v_lshl_add_u32 v{WA[0]}, v4, 5, v5
v_xor_b32 v{WA[1]}, 32, v{WA[0]}''')
for i in range(128): a(f'v_mov_b32 v{ACC+i}, 0')
a(f'''s_lshl_b32 s66, s{S_MT}, 1
s_add_u32 s66, s66, s64
s_mul_i32 s66, s66, 48
s_lshl_b32 s67, s{S_NT}, 2
s_add_u32 s66, s66, s67
s_lshl_b32 s67, s65, 1
s_add_u32 s66, s66, s67
s_lshl_b32 s66, s66, 12
s_add_u32 s71, s66, {HB}
s_add_u32 s72, s71, 4096
s_mul_i32 s66, s{S_MT}, 12
s_add_u32 s66, s66, s{S_NT}
s_lshl_b32 s66, s66, 2
s_add_u32 s66, s66, s{S_WAVE}
s_lshl_b32 s66, s66, 7
s_add_u32 s73, s66, {F2}''')
g2_setup()
a('s_waitcnt lgkmcnt(0)')
make_tag()
a('s_waitcnt vmcnt(10)')
for i in range(2):
    a(f'ds_read_b64_tr_b16 {vr(64+4*i,2)}, v13 offset:{32*i}\nds_read_b64_tr_b16 {vr(66+4*i,2)}, v13 offset:{32*i+1024}')
    a(f'ds_read_b64_tr_b16 {vr(72+4*i,2)}, v13 offset:{8192+32*i}\nds_read_b64_tr_b16 {vr(74+4*i,2)}, v13 offset:{8192+32*i+1024}')
a(f'''s_waitcnt lgkmcnt(0)
buffer_store_dwordx4 v[64:67], v10, {sr(S_WS)}, s40 offen sc1
buffer_store_dwordx4 v[68:71], v10, {sr(S_WS)}, s41 offen sc1
s_cmp_lg_u32 s{S_WAVE}, 0
s_cbranch_scc1 L_c_nowd3
buffer_store_dwordx4 v[72:75], v10, {sr(S_WS)}, s42 offen sc1
buffer_store_dwordx4 v[76:79], v10, {sr(S_WS)}, s42 offen offset:1024 sc1
s_waitcnt vmcnt(4)
L_c_nowd3:
s_waitcnt vmcnt(4)''')
G = 84
def gate_math(GX, G):
    for k in range(5):
        for i in range(4):
            a(f'v_dot2_f32_bf16 v{G+i}, v{GX+6*i+k}, v{20+k}, ' + ('0' if k == 0 else f'v{G+i}'))
    a('s_nop 0')
    for sh in ('row_shr:1', 'row_shr:2', 'row_shr:4', 'row_shr:8'):
        for i in range(4): a(f'v_add_f32_dpp v{G+i}, v{G+i}, v{G+i} {sh} row_mask:0xf bank_mask:0xf bound_ctrl:0')
    for sh in ('row_bcast:15 row_mask:0xa', 'row_bcast:31 row_mask:0xc'):
        for i in range(4): a(f'v_add_f32_dpp v{G+i}, v{G+i}, v{G+i} {sh} bank_mask:0xf')
    for op in ('v_cvt_pk_bf16_f32 v{0}, v{0}, v{0}', 'v_and_b32 v{0}, 0xffff0000, v{0}', 'v_mul_f32 v{0}, 0xbfb8aa3b, v{0}', 'v_exp_f32 v{0}, v{0}',
               'v_add_f32 v{0}, 1.0, v{0}', 'v_rcp_f32 v{0}, v{0}', 'v_cvt_pk_bf16_f32 v{0}, v{0}, v{0}', 'v_and_b32 v{0}, 0xffff0000, v{0}'):
        for i in range(4): a(op.format(G + i))
a(f's_cmp_eq_u32 s{S_WAVE}, 0\ns_cbranch_scc1 L_c_g\ns_waitcnt vmcnt(2)\nL_c_g:')
gate_math(GX, G)
a(f'''v_mov_b32 v1, 0
s_mov_b32 exec_lo, 0
s_mov_b32 exec_hi, 0x80000000
buffer_store_dwordx4 v[{G}:{G+3}], v1, {sr(S_WS)}, s43 offen sc1
s_mov_b64 exec, -1''')
ts(1)
def rdX(st, fs, mb): return (f'X{mb}{fs}', f'ds_read_b128 {vr(XF[fs]+4*mb)}, v{XA[st]} offset:{mb*2048}')
def rdW(st, w):
    mat, b = w // 4, w % 4
    o = st * 8192 + mat * 16384 + (b >> 1) * 256
    return [(f'W{w}', f'ds_read_b64_tr_b16 {vr(WF+4*w,2)}, v{WA[b & 1]} offset:{o}'),
            (f'W{w}', f'ds_read_b64_tr_b16 {vr(WF+4*w+2,2)}, v{WA[b & 1]} offset:{o+1024}')]
WORD = [0, 4, 1, 5, 2, 6, 3, 7]
if OPT['cprio']: a(f's_setprio {OPT["cprio"]}')
a('s_barrier')
ts(3)
lq = Q('lgkmcnt', 15)
init = [rdX(0, 0, 0)] + rdW(0, WORD[0]) + [rdX(0, 0, m) for m in (1, 2, 3)]
for w in WORD[1:]: init += rdW(0, w)
for tag, ins in init: lq.issue(tag, ins)
a(f's_mov_b32 s64, 0\ns_mov_b32 s65, 0\ns_mov_b32 s67, {-2*STAGE & 0xffffffff}\ns_mov_b32 s68, {STAGE}')
def hprod(b, mb, dst):
    g = acc1(0, b, mb); u = acc1(1, b, mb)
    r = [f'v_mul_f32 v{g+i}, v{g+i}, v{u+i}' for i in range(4)]
    return r + [f'v_cvt_pk_bf16_f32 v{dst}, v{g}, v{g+1}', f'v_cvt_pk_bf16_f32 v{dst+1}, v{g+2}, v{g+3}']
def h_out(p, mb):
    d = 16 + 16 * p + 4 * mb
    return hprod(2 * p, mb, d) + hprod(2 * p + 1, mb, d + 2) + [f'buffer_store_dwordx4 {vr(d)}, v{VL16}, {sr(S_WS)}, s{71+p} offen offset:{mb*1024} sc1']
def g1_half(st, last):
    pend = []; extra = []
    for wi, w in enumerate(WORD):
        for mb in range(4):
            lq.need({f'W{w}', f'X{mb}{st}'})
            acc = acc1(w // 4, w % 4, mb)
            a(f'v_mfma_f32_16x16x32_bf16 {vr(acc)}, {vr(WF+4*w)}, {vr(XF[st]+4*mb)}, {vr(acc)}')
            n = wi * 4 + mb
            if st == 0:
                if n == 0: pend += [rdX(1, 1, m) for m in range(4)]
                if mb == 3: pend += rdW(1, w)
            elif last:
                if n == 7: lq.drain(); a('s_barrier')
                if n == 21:
                    for m in range(4): extra += h_out(0, m)
                for _ in range(3):
                    if extra: a(extra.pop(0))
            else:
                if n == 0:
                    a(f's_cmp_lg_u32 s64, {OPT["pfit"]}\ns_cbranch_scc1 L_g1_nw\ns_waitcnt vmcnt(0)\nL_g1_nw:')
                if n == 21:
                    a(f's_lshl_b32 s66, s{S_WAVE}, 4\ns_add_u32 s66, s66, s64\ns_cmp_lg_u32 s66, {OPT["pfit"]}\ns_cbranch_scc1 L_g1_nf')
                    flag_store(79, 1, 2)
                    a('L_g1_nf:')
                if n == 1:
                    a('s_add_u32 s65, s65, 1\ns_cmp_eq_u32 s65, 3\ns_cselect_b32 s66, s67, s68\ns_cselect_b32 s65, 0, s65')
                if n in (2, 3, 4, 5):
                    r = (XA + WA)[n - 2]
                    a(f'v_add_u32 v{r}, s66, v{r}')
                if n == 7:
                    lq.drain(); a('s_barrier')
                    pend += [rdX(0, 0, 0)] + rdW(0, WORD[0]) + [rdX(0, 0, m) for m in (1, 2, 3)] + rdW(0, WORD[1])
                if n > 7 and mb == 3: pend += rdW(0, w)
            if pend and not (st == 1 and n < 7):
                tag, ins = pend.pop(0); lq.issue(tag, ins)
    for tag, ins in pend: lq.issue(tag, ins)
    for e in extra: a(e)
a('.p2align 3\nL_g1_loop:')
g1_half(0, False)
if OPT['peel']:
    qsave = list(lq.q)
    a('s_cmp_eq_u32 s64, 9\ns_cbranch_scc1 L_g1_last')
g1_half(1, False)
a('s_add_u32 s64, s64, 1\ns_cmp_lt_u32 s64, 10\ns_cbranch_scc1 L_g1_loop')
if OPT['peel']:
    a('L_g1_last:')
    lq.q = qsave
    g1_half(1, True)
    ts(4)
    for mb in range(4):
        for e in h_out(1, mb): a(e)
else:
    ts(4)
    a('s_waitcnt lgkmcnt(0)\ns_nop 4')
    for p in range(2):
        for mb in range(4):
            for e in h_out(p, mb): a(e)
DH = 4
WR = 8; WT = 88; HR = 108; ACC2 = 176
a(f'v_mov_b32 v173, {CNT}\nv_mov_b32 v175, 1')
lds_add(173, 175, C_H)
lds_wait(173, 1, C_OK, 1, 1)
a('L_g2:')
ts(2)
a(f'''s_mul_i32 s66, s{S_WAVE}, 10240
v_add_u32 v172, s66, v{VL16}
v_add_u32 v174, {STA}, v172''')
vq = Q('vmcnt', 63)
def ld_wd(s):
    r = WR + 20 * (s % 4)
    a(f's_mul_i32 s79, s77, 5120\ns_add_u32 s79, s79, s75')
    for _ in range(5 if s == 3 else 1): step12(77, S_INC, 66)
    for db in range(4): vq.issue(('w', s), f'buffer_load_dwordx4 {vr(r+4*db)}, v{VL16}, {sr(S_WS)}, s79 offen offset:{db*1024} sc1')
    vq.issue(('w', s), f'buffer_load_dwordx4 {vr(r+16)}, v{VL16B}, {sr(S_WS)}, s79 offen sc1')
def ld_h(s):
    r = HR + 16 * (s % DH)
    a(f's_lshl_b32 s79, s76, 12\ns_add_u32 s79, s79, s74')
    step12(76, S_INC, 66)
    for mb in range(4): vq.issue(('h', s), f'buffer_load_dwordx4 {vr(r+4*mb)}, v{VL16}, {sr(S_WS)}, s79 offen offset:{mb*1024} sc1')
for s in range(OPT['wpre']): ld_wd(s)
for i in range(80): a(f'v_mov_b32 v{ACC2+i}, 0')
a(f's_waitcnt vmcnt({5*OPT["wpre"]})')
flag_store(73, 1, 2)
if OPT['cprio']: a('s_setprio 0')
ts(5)
for s in range(OPT['wpre'], 4): ld_wd(s)
if OPT['tsg']: a('s_waitcnt vmcnt(0)\ns_memrealtime s[100:101]\ns_waitcnt lgkmcnt(0)\nv_writelane_b32 v175, s100, 12')
poll([VF2], 1, OPT['hsl'])
if OPT['tsg']: a('v_writelane_b32 v175, s64, 13')
vq.q = []
ts(7)
if OPT['hpf']:
    a(f'''v_min_u32 v1, 47, v0
    s_and_b32 s66, s{S_J2}, 3
    s_mul_i32 s66, s66, {96*128}
    v_lshl_add_u32 v1, v1, 7, s66''')
    vq.issue('pf', f'buffer_load_dword v2, v1, {sr(S_WS)}, s74 offen sc1')
    a(f'v_add_u32 v1, {48*128}, v1')
    vq.issue('pf', f'buffer_load_dword v2, v1, {sr(S_WS)}, s74 offen sc1')
for s in range(DH): ld_h(s)
def rd_st(s, db):
    base = 174 if s < 6 else 172
    return f'ds_read_b128 {vr(WT+4*db)}, v{base} offset:{(s & 1) * 5120 + db*1024}'
lq = Q('lgkmcnt', 15)
def sig():
    a('v_mov_b32 v1, 1'); lds_add(173, 1, C_H, lq)
sig()
QR = HR
def red_write(db):
    for o in range(4):
        t = db * 4 + o
        a(f'ds_write_b128 v{174 if t < 10 else 172}, {vr(ACC2+4*t)} offset:{(t % 10)*1024}')
for s in range(12):
    vq.need({('h', s), ('w', s)})
    if OPT['tsg']: a(f's_memrealtime s[100:101]\ns_waitcnt lgkmcnt(0)\nv_writelane_b32 v175, s100, {s}')
    r = HR + 16 * (s % DH); w = WT if 4 <= s < 8 else WR + 20 * (s % 4)
    if s == 3:
        lds_wait(173, 1, C_ST, 1); lq.q = []
        for db in range(5): lq.issue(('t', 4, db), rd_st(4, db))
    for db in range(5):
        if 4 <= s < 8: lq.need(('t', s, db))
        for mb in range(4):
            acc = ACC2 + 4 * (db * 4 + mb)
            a(f'v_mfma_f32_16x16x32_bf16 {vr(acc)}, {vr(w+4*db)}, {vr(r+4*mb)}, {vr(acc)}')
        if s == 11 and OPT['redi'] and db >= 1:
            if db == 1: a('s_nop 1')
            red_write(db - 1)
        if s == 5 and db == 0:
            lds_wait(173, 1, C_ST, 2); lq.q = []
        if 4 <= s < 7: lq.issue(('t', s + 1, db), rd_st(s + 1, db))
    if s + DH < 12: ld_h(s + DH)
    if 0 <= s - OPT['rf'] < 4: ld_wd(s - OPT['rf'] + 8)
    if s == OPT['ysig']: sig()
    if s == 8:
        vq.issue('q', f'buffer_load_dword v{QR+10}, v{VGO}, {sr(S_WS)}, 0 offen sc1')
        for db in range(5): vq.issue('q', f'buffer_load_dwordx2 {vr(QR+2*db,2)}, v{VQO}, {sr(S_X)}, 0 offen offset:{32*db}')
ts(8)
if OPT['redi']:
    a(f's_lshl_b32 s66, s{S_WAVE}, 10\nv_add_u32 v88, s66, v{VL16}\nv_add_u32 v89, {STA}, v88')
    a(f's_mov_b32 s66, {STA + 8192}\ns_cmp_lt_u32 s{S_WAVE}, 2\ns_cselect_b32 s66, s66, {-2048 & 0xffffffff}\nv_add_u32 v90, s66, v88')
    red_write(4)
else:
    a('s_nop 7')
    for w in range(4):
        L = a.label('L_red')
        a(f's_cmp_lg_u32 s{S_WAVE}, {w}\ns_cbranch_scc1 {L}')
        for k in range(3):
            o = (w + 1 + k) & 3
            for db in range(5):
                a(f'ds_write_b128 v{174 if k < 2 else 172}, {vr(ACC2+4*(db*4+o))} offset:{(k & 1)*5120 + db*1024}')
        for db in range(5):
            for i in range(4): a(f'v_mov_b32 v{8+4*db+i}, v{ACC2+4*(db*4+w)+i}')
        for k in range(3):
            sw = (w - 1 - k) & 3
            a(f'v_add_u32 v{88+k}, {(STA if k < 2 else STB) + sw*10240 + (k & 1)*5120}, v{VL16}')
        a(f'{L}:')
a(f'''v_lshrrev_b32 v2, 2, v0
v_bfe_u32 v1, v2, 1, 2
v_xor_b32 v1, s{S_WAVE}, v1
v_lshlrev_b32 v1, 5, v1
v_lshl_add_u32 v2, v2, 7, v1
v_and_b32 v1, 3, v0
v_lshl_add_u32 v2, v1, 3, v2
v_add_u32 v2, {Y2L}, v2
s_waitcnt vmcnt(0)
v_sub_f32 v{QR+11}, 1.0, v{QR+10}
s_waitcnt lgkmcnt(0)
s_barrier''')
ts(6)
YR = 92
for db in range(5): a(f'ds_read_b64_tr_b16 {vr(YR+2*db,2)}, v2 offset:{db*2048}')
if OPT['redi']:
    for k in range(4):
        for db in range(5):
            base, off = (89, db*4096) if db < 2 else (90, 0) if db == 2 else (88, (4*db-10)*1024)
            a(f'ds_read_b128 {vr(8+20*k+4*db)}, v{base} offset:{off + k*10240}')
    a('s_waitcnt lgkmcnt(15)')
else:
    for k in range(3):
        for db in range(5): a(f'ds_read_b128 {vr(28+20*k+4*db)}, v{88+k} offset:{db*1024}')
    a('s_waitcnt lgkmcnt(15)')
PR = 132
for db in range(5):
    for h in range(2):
        q = QR + 2*db + h; y = YR + 2*db + h; p = PR + 4*db + 2*h
        a(f'''v_lshlrev_b32 v124, 16, v{q}
        v_and_b32 v125, 0xffff0000, v{q}
        v_lshlrev_b32 v126, 16, v{y}
        v_and_b32 v127, 0xffff0000, v{y}
        v_mul_f32 v124, v124, v126
        v_mul_f32 v125, v125, v127
        v_mul_f32 v{p}, v{QR+10}, v124
        v_mul_f32 v{p+1}, v{QR+10}, v125''')
for k in range(3):
    a(f's_waitcnt lgkmcnt({10-5*k})')
    for i in range(20): a(f'v_add_f32 v{8+i}, v{8+i}, v{28+20*k+i}')
for db in range(5):
    for i in range(4): a(f'v_fma_f32 v{PR+4*db+i}, v{QR+11}, v{8+4*db+i}, v{PR+4*db+i}')
    a(f'v_cvt_pk_bf16_f32 v{152+2*db}, v{PR+4*db}, v{PR+1+4*db}\nv_cvt_pk_bf16_f32 v{153+2*db}, v{PR+2+4*db}, v{PR+3+4*db}')
    a(f'buffer_store_dwordx2 {vr(152+2*db,2)}, v{VQO}, {sr(S_A)}, 0 offen offset:{32*db}')
ts(9)
if OPT['tsg']:
    a(f's_lshl_b32 s64, s2, 2\ns_add_u32 s64, s64, s{S_WAVE}\ns_lshl_b32 s64, s64, 6\ns_add_u32 s64, s64, {DIAG + 0x30000}\nv_lshlrev_b32 v1, 2, v0\ns_mov_b64 exec, 0xffff')
    a(f'buffer_store_dword v175, v1, {sr(S_WS)}, s64 offen\ns_mov_b64 exec, -1')
ts_dump()
a('s_endpgm')

LW = 66
CACC = 32; CA = [64, 128]; CB = [96, 160]
def conv_T():
    srd(a, S_A, P_SSM, 640*4096)
    srd(a, S_B, P_SSMD, 1280)
    a(f's_lshl_b32 s69, s67, 12\ns_add_u32 s70, s68, {TSZ}\nv_lshlrev_b32 v10, 4, v0')
    for phi in (0, 2):
        a(f's_add_u32 s71, s69, {2*phi}')
        a(f's_add_u32 m0, s68, {phi*CS + 32}\ns_nop 0')
        for i in range(4): a(f'buffer_load_dwordx4 v10, {sr(S_A)}, s71 offen offset:{i*1024} lds')
    a(f'''v_lshrrev_b32 v1, 4, v0
    v_and_b32 v2, 15, v0
    v_add3_u32 v3, v1, v2, -16
    v_lshlrev_b32 v4, 1, v3
    v_add_u32 v4, s69, v4
    v_cmp_gt_i32 vcc, 0, v3
    s_lshl_b32 s71, s67, 1
    v_mov_b32 v7, s71
    v_cndmask_b32 v4, v4, -1, vcc
    buffer_load_ushort v5, v4, {sr(S_A)}, 0 offen
    buffer_load_ushort v7, v7, {sr(S_B)}, 0 offen''')
def conv_uT():
    a(f's_add_u32 s71, s69, {UT}\ns_mov_b32 m0, s70\ns_nop 0')
    for i in range(4): a(f'buffer_load_dwordx4 v10, {sr(S_WS)}, s71 offen offset:{i*1024} sc1 lds')
def conv_addr():
    a(f'''v_mul_u32_u24 v8, {CS}, v1
    v_add_u32 v8, s68, v8
    v_lshl_add_u32 v9, v2, 1, v8
    v_add_u32 v11, s68, v10
    v_mov_b32 v12, 0
    v_mov_b32 v13, 0
    v_lshl_add_u32 v14, v0, 3, s70
    ds_write_b64 v14, v[12:13] offset:4096
    v_add_u32 v3, 1, v2
    v_and_b32 v4, 3, v3
    v_sub_u32 v3, v3, v4
    v_lshl_add_u32 v3, v1, 3, v3
    v_mul_u32_u24 v4, {CS}, v4
    v_lshl_add_u32 v20, v3, 1, v4
    v_add_u32 v20, s68, v20
    v_lshlrev_b32 v3, 4, v1
    v_lshlrev_b32 v4, 5, v2
    v_sub_u32 v3, v3, v4
    v_add_u32 v3, {2*(2032-1792)}, v3
    v_add_u32 v21, s70, v3''')
    for i in range(32): a(f'v_mov_b32 v{CACC+i}, 0')
def conv_build():
    for i in range(4):
        b = 64 + 16 * i
        a(f'''ds_read_b128 {vr(b)}, v11 offset:{32 + i*1024}
        ds_read_b128 {vr(b+4)}, v11 offset:{2*CS + 32 + i*1024}
        ds_read_b64 {vr(b+10,2)}, v11 offset:{32 + i*1024 + 16}''')
    a('ds_write_b16 v9, v5\nv_lshlrev_b32 v7, 16, v7')
    for i in range(4):
        b = 64 + 16 * i
        a(f's_waitcnt lgkmcnt({min(15, 3*(3-i) + 1 + 2*i)})')
        for k in range(4): a(f'v_alignbit_b32 v{b+12+k}, v{b+4+k}, v{b+k}, 16')
        C = [b+2, b+3, b+10, b+11]
        for k in range(4): a(f'v_alignbit_b32 v{b+4+k}, v{C[k]}, v{b+4+k}, 16')
        a(f'ds_write_b128 v11, {vr(b+12)} offset:{CS + 32 + i*1024}\nds_write_b128 v11, {vr(b+4)} offset:{3*CS + 32 + i*1024}')

a('L_loader:')
a(f'''s_sub_u32 s{LW}, s{S_WAVE}, 4
v_lshrrev_b32 v3, 3, v0
s_lshl_b32 s67, s{LW}, 5
s_lshl_b32 s68, s{S_MT}, 7
s_add_u32 s67, s67, s68
v_bfe_u32 v4, v3, 1, 3
v_and_b32 v5, 7, v0
v_xor_b32 v4, v4, v5
v_add_u32 v3, s67, v3
v_mul_u32_u24 v3, 1280, v3
v_lshl_add_u32 v200, v4, 4, v3
v_xor_b32 v4, 4, v4
v_lshl_add_u32 v201, v4, 4, v3
v_add_u32 v201, {8*1280}, v201
v_add_u32 v202, {16*1280}, v200
v_add_u32 v203, {16*1280}, v201
v_bfe_u32 v3, v0, 2, 2
s_lshl_b32 s67, s{LW}, 4
v_add_u32 v3, s67, v3
v_mul_u32_u24 v3, 3072, v3
v_lshrrev_b32 v4, 4, v0
v_lshl_add_u32 v3, v4, 6, v3
v_and_b32 v4, 3, v0
v_lshl_add_u32 v3, v4, 4, v3
s_lshl_b32 s67, s{S_NT}, 8
v_add_u32 v204, s67, v3
v_add_u32 v205, {4*3072}, v204
v_xor_b32 v206, 32, v204
v_add_u32 v206, {8*3072}, v206
v_add_u32 v207, {4*3072}, v206
s_add_u32 s68, s{S_MT}, s{S_NT}
s_mul_i32 s69, s68, 6554
s_lshr_b32 s69, s69, 16
s_mul_i32 s69, s69, 10
s_sub_u32 s68, s68, s69
s_lshl_b32 s69, s{LW}, 12
s_mov_b32 s71, 0
s_waitcnt lgkmcnt(0)
s_load_dword s{S_TAG}, s[{P_WS}:{P_WS+1}], {EPOCH}''')
srd(a, S_X, P_Q, 2048*1280)
srd(a, S_WG, P_WG, 640*3072)
srd(a, S_WU, P_WU, 640*3072)
if OPT['bpre']: a('s_barrier')
def g1_issue():
    a(f's_lshl_b32 s72, s68, 7\ns_mul_i32 s73, s68, {64*3072}\ns_add_u32 s74, s71, s69')
    for j in range(4):
        a(f's_add_u32 m0, s74, {j*1024}\n' + ('s_add_u32 s68, s68, 1' if j == 0 else 's_nop 0'))
        a(f'buffer_load_dwordx4 v{200+j}, {sr(S_X)}, s72 offen lds')
    for n in range(4):
        a(f's_add_u32 m0, s74, {16384 + n*1024}\ns_nop 0')
        a(f'buffer_load_dwordx4 v{204+n}, {sr(S_WG)}, s73 offen lds')
        a(f's_add_u32 m0, s74, {32768 + n*1024}\ns_nop 0')
        a(f'buffer_load_dwordx4 v{204+n}, {sr(S_WU)}, s73 offen lds')
    a(f'''s_cmp_ge_u32 s68, 10
    s_cselect_b32 s68, 0, s68
    s_add_u32 s71, s71, {STAGE}
    s_cmp_eq_u32 s71, {3*STAGE}
    s_cselect_b32 s71, 0, s71''')
g1_issue()
srd(a, S_WS, P_WS, WS_SIZE)
a(f'''v_lshlrev_b32 v15, 7, v0
v_add_u32 v16, {F1 + 0x2000}, v15
v_add_u32 v17, {F1 + 0x4000}, v15
v_add_u32 v18, {F1 + 0x6000}, v15
v_add_u32 v15, {F1}, v15
v_lshl_add_u32 v3, v0, 2, 0
v_add_u32 v3, {CNT}, v3
v_mov_b32 v4, 0
ds_write_b32 v3, v4
v_mov_b32 v196, {CNT}
v_mov_b32 v199, 1
s_waitcnt lgkmcnt(0)''')
make_tag()
g1_issue()
a('s_mov_b32 s76, 0')
ts(1)
a('L_ld_loop:\ns_waitcnt vmcnt(12)')
a('s_barrier')
if TS == 1: a('s_memrealtime s[100:101]\ns_waitcnt lgkmcnt(0)\ns_mov_b32 m0, s76\ns_nop 0\nv_writelane_b32 v220, s100, m0')
g1_issue()
a('s_add_u32 s76, s76, 1\ns_cmp_lt_u32 s76, 8\ns_cbranch_scc1 L_ld_loop')
assert OPT['fl'] + 2 <= 7
a('s_waitcnt vmcnt(12)\ns_barrier')
ts(2)
if TS == 1:
    a(f's_lshl_b32 s64, s2, 2\ns_add_u32 s64, s64, s{LW}\ns_lshl_b32 s64, s64, 6\ns_add_u32 s64, s64, {DIAG + 0x20000}\nv_lshlrev_b32 v1, 2, v0\ns_mov_b64 exec, 0xff')
    a(f'buffer_store_dword v220, v1, {sr(S_WS)}, s64 offen\ns_mov_b64 exec, -1')
NT_ = 1 if TS == 1 else 0
a(f's_cmp_ge_u32 s{LW}, 2\ns_cbranch_scc1 L_ld67')
a(f'''s_and_b32 s67, s2, 7
s_mul_i32 s67, s67, 24
s_lshr_b32 s68, s2, 3
s_add_u32 s67, s67, s68
s_lshl_b32 s67, s67, 1
s_add_u32 s67, s67, s{LW}
s_mul_i32 s68, s{LW}, {CVSZ}
s_add_u32 s68, s68, {CVREG[0]}''')
conv_T()
conv_addr()
a(f's_waitcnt vmcnt({10 + NT_})\ns_barrier')
ts(5)
if OPT['tb'] == 2:
    a(f'ds_read_b32 v197, v196 offset:{C_OK}\ns_waitcnt lgkmcnt(0)\nv_readfirstlane_b32 s57, v197\ns_nop 0\ns_cmp_eq_u32 s57, 0\ns_cbranch_scc1 L_cv_late')
    conv_uT()
    a('s_barrier\ns_waitcnt vmcnt(4)')
    conv_build()
    a('s_branch L_conv_main\nL_cv_late:\ns_barrier\ns_waitcnt vmcnt(0)')
    conv_build()
    lds_wait(196, 197, C_OK, 1, 1)
    conv_uT()
elif OPT['tb']:
    lds_wait(196, 197, C_OK, 1, 1)
    conv_uT()
    a('s_barrier')
    ts(4)
    a('s_waitcnt vmcnt(4)')
    conv_build()
else:
    a('s_waitcnt vmcnt(0)')
    conv_build()
    a('s_barrier')
    ts(4)
    lds_wait(196, 197, C_OK, 1, 1)
    conv_uT()
a('L_conv_main:\ns_waitcnt vmcnt(0)')
ts(6)
a(f's_setprio {OPT["prio"]}')
def conv_reads(fs):
    r = []
    def A(k): return [(f'A{k}{fs}', f'ds_read_b64 {vr(CA[fs]+4*k,2)}, v20 offset:{k*512}'), (f'A{k}{fs}', f'ds_read_b64 {vr(CA[fs]+4*k+2,2)}, v20 offset:{k*512+8}')]
    def B(d): return [(f'B{d}{fs}', f'ds_read_b128 {vr(CB[fs]+4*d)}, v21 offset:{(7-d)*512}')]
    r += A(0)
    for d in range(8): r += B(d)
    for k in range(1, 8): r += A(k)
    return r
lq = Q('lgkmcnt', 15)
for tag, ins in conv_reads(0): lq.issue(tag, ins)
a('s_mov_b32 s71, 0\n.p2align 3\nL_conv_loop:')
for fs in range(2):
    nxt = conv_reads(fs ^ 1)
    a('v_add_u32 v20, 64, v20\nv_add_u32 v21, 64, v21')
    n = 0
    for k in range(8):
        for q in range(k, 8):
            lq.need({f'A{k}{fs}', f'B{q-k}{fs}'})
            a(f'v_mfma_f32_16x16x32_bf16 {vr(CACC+4*q)}, {vr(CA[fs]+4*k)}, {vr(CB[fs]+4*(q-k))}, {vr(CACC+4*q)}')
            n += 1
            if n >= 9 and nxt:
                tag, ins = nxt.pop(0); lq.issue(tag, ins)
    assert not nxt
a('s_add_u32 s71, s71, 1\ns_cmp_lt_u32 s71, 4\ns_cbranch_scc1 L_conv_loop')
ts(7)
a(f'''s_waitcnt lgkmcnt(0)
v_lshlrev_b32 v3, 3, v1
v_lshl_add_u32 v3, v2, 5, v3
v_sub_u32 v4, {2*(2044-1792)}, v3
v_add_u32 v4, s70, v4
v_add_u32 v3, s68, v3''')
for q in range(8): a(f'ds_read_b64 {vr(64+2*q,2)}, v4 offset:{(7-q)*512}')
for q in range(8):
    u = 64 + 2*q; y = CACC + 4*q; t = 96 + 4*q
    a(f'''s_waitcnt lgkmcnt(7)
    v_and_b32 v{t}, 0xffff0000, v{u+1}
    v_lshlrev_b32 v{t+1}, 16, v{u+1}
    v_and_b32 v{t+2}, 0xffff0000, v{u}
    v_lshlrev_b32 v{t+3}, 16, v{u}''')
    for i in range(4): a(f'v_fma_f32 v{y+i}, v{t+i}, v7, v{y+i}')
    a(f'v_cvt_pk_bf16_f32 v{u}, v{y}, v{y+1}\nv_cvt_pk_bf16_f32 v{u+1}, v{y+2}, v{y+3}')
    a(f'ds_write_b64 v3, {vr(u,2)} offset:{q*512}')
a(f's_add_u32 s71, s69, {Y2T}\ns_waitcnt lgkmcnt(0)')
for i in range(4): a(f'ds_read_b128 {vr(96+4*i)}, v11 offset:{i*1024}')
for i in range(4):
    a(f's_waitcnt lgkmcnt({3-i})')
    a(f'buffer_store_dwordx4 {vr(96+4*i)}, v10, {sr(S_WS)}, s71 offen offset:{i*1024} sc1')
lds_add(196, 199, C_CV)
a(f's_lshl_b32 s71, s67, 7\ns_add_u32 s71, s71, {F3}\ns_waitcnt vmcnt(0)')
flag_store(71, 3, 4)
ts(8)
a(f's_setprio 0\ns_cmp_lg_u32 s{LW}, 3\ns_cbranch_scc1 L_join')
lds_wait(196, 197, C_CV, 4, 2)
lds_wait(196, 197, C_OKW, 1, 2)
a('s_branch L_w7')
if OPT['tb'] == 2:
    a('L_ld67:')
    a(f's_cmp_eq_u32 s{LW}, 3\ns_cbranch_scc1 L_ld7a')
    for i in range(4): a(f'buffer_load_dword v{20+i}, v{15+i}, {sr(S_WS)}, 0 offen sc1')
    a(f's_waitcnt vmcnt({NT_ + 4})\ns_barrier\ns_waitcnt vmcnt(0)')
    for i in range(4): a(f'v_xor_b32 v{20+i}, s{S_TAG}, v{20+i}')
    a('v_or3_b32 v20, v20, v21, v22\nv_or_b32 v20, v20, v23\nv_cmp_ne_u32 vcc, 0, v20\ns_cmp_eq_u64 vcc, 0\ns_cbranch_scc0 L_w6_late')
    lds_add(196, 199, C_OK)
    ts(5)
    a('s_barrier\ns_branch L_w6_done\nL_ld7a:')
    a(f's_waitcnt vmcnt({NT_})\ns_barrier\ns_branch L_ld7\nL_w6_late:\ns_barrier')
    poll([15, 16, 17, 18], 20, 2)
    lds_add(196, 199, C_OK)
    ts(5)
    a('L_w6_done:')
else:
    a('L_ld67:')
    for i in range(4): a(f'buffer_load_dword v{20+i}, v{15+i}, {sr(S_WS)}, 0 offen sc1')
    a(f's_waitcnt vmcnt({NT_ + 4})\ns_barrier\ns_cmp_eq_u32 s{LW}, 3\ns_cbranch_scc1 L_ld7' + ('' if OPT['tb'] else '\ns_barrier') + '\ns_waitcnt vmcnt(0)')
    for i in range(4): a(f'v_xor_b32 v{20+i}, s{S_TAG}, v{20+i}')
    a('v_or3_b32 v20, v20, v21, v22\nv_or_b32 v20, v20, v23\nv_cmp_ne_u32 vcc, 0, v20\ns_cmp_eq_u64 vcc, 0\ns_cbranch_scc1 L_nochk1')
    poll([15, 16, 17, 18], 20, 2)
    a('L_nochk1:')
    lds_add(196, 199, C_OK)
    ts(5)
    if OPT['tb']: a('s_barrier')
a(f's_cmp_lg_u32 s2, 0\ns_cbranch_scc1 L_join\ns_mov_b32 s71, {EPOCH}')
flag_store(71, 3, 4)
a('s_branch L_join\nL_ld7:\ns_barrier')
lds_wait(196, 197, C_OK, 1, 1)
a('L_w7:')
g2_roles(67, 68, 78, 79, 64)
a(f'''v_lshlrev_b32 v10, 4, v0
v_add_u32 v11, 4096, v10
s_mul_i32 s75, s68, {48*5120}
s_add_u32 s75, s75, {WDP}''')
for _ in range(4): step12(78, 79, 64)
def stash(ldsbase):
    for i in range(2):
        a('s_mul_i32 s72, s78, 5120\ns_add_u32 s72, s72, s75')
        step12(78, 79, 64)
        for w in range(4):
            a(f's_mov_b32 m0, {ldsbase + w*10240 + i*5120}\ns_nop 0')
            for db in range(4): a(f'buffer_load_dwordx4 v10, {sr(S_WS)}, s72 offen offset:{db*1024} sc1 lds')
            a(f's_mov_b32 m0, {ldsbase + w*10240 + i*5120 + 4096}\ns_nop 0')
            a(f'buffer_load_dwordx4 v11, {sr(S_WS)}, s72 offen sc1 lds')
            if w < 3: a(f's_add_u32 s72, s72, {12*5120}')
a(f'''s_mul_i32 s68, s68, 80
v_add_lshl_u32 v3, v0, s68, 7
v_add_u32 v12, {F3}, v3
v_and_b32 v3, 15, v0
v_add_lshl_u32 v3, v3, s68, 7
v_add_u32 v13, {F3 + 64*128}, v3
v_lshrrev_b32 v3, 3, v0
v_and_b32 v4, 7, v0
v_lshlrev_b32 v5, 4, v4
v_lshl_add_u32 v5, v3, 12, v5
v_and_b32 v6, 6, v3
v_xor_b32 v6, v6, v4
v_lshlrev_b32 v6, 4, v6
v_lshl_add_u32 v6, v3, 7, v6
v_add_u32 v6, {Y2L}, v6
s_lshl_b32 s69, s68, 12
s_lshl_b32 s70, s67, 7
s_add_u32 s69, s69, s70
s_add_u32 s69, s69, {Y2T}''')
lds_wait(196, 197, C_H, 4, 2)
ts(4)
stash(STA)
if OPT['lateb']:
    a('s_waitcnt vmcnt(0)')
    lds_add(196, 199, C_ST)
    lds_wait(196, 197, C_H, 8, 2)
    stash(STB)
else:
    stash(STB)
    a('s_waitcnt vmcnt(40)')
    lds_add(196, 199, C_ST)
a('s_waitcnt vmcnt(0)')
lds_add(196, 199, C_ST)
ts(5)
lds_wait(196, 197, C_H, 12, 4)
poll([12, 13], 8, 4)
ts(1)
for i in range(10):
    a(f'buffer_load_dwordx4 {vr(16+4*i)}, v5, {sr(S_WS)}, s69 offen sc1')
    if i < 9: a(f's_add_u32 s69, s69, {8*4096}')
for i in range(10):
    a(f's_waitcnt vmcnt({9-i})')
    a(f'ds_write_b128 v6, {vr(16+4*i)} offset:{i*1024}')
ts(2)
a('L_join:\ns_waitcnt lgkmcnt(0)\ns_barrier')
ts(9)
ts_dump()
a('s_endpgm')

a('L_aux:')
WDL = 92160
a(f'''s_and_b32 s3, s2, 7
s_lshl_b32 s3, s3, 3
s_bfe_u32 s64, s2, 0x30003
s_add_u32 s3, s3, s64
s_sub_u32 s{LW}, s{S_WAVE}, 4
v_lshrrev_b32 v1, 2, v0
v_and_b32 v18, 3, v0
v_mul_u32_u24 v12, 1280, v1
v_lshl_add_u32 v12, v18, 4, v12
s_lshl_b32 s67, s3, 5
s_sub_u32 s67, s67, 4
s_mul_i32 s67, s67, 1280
s_lshl_b32 s73, s{S_WAVE}, 6
s_add_u32 s67, s67, s73
v_add_u32 v13, s67, v12
v_add_u32 v14, {16*1280}, v13
v_add_u32 v15, {32*1280}, v13
v_and_b32 v6, 31, v0
s_lshl_b32 s72, s{S_WAVE}, 5
v_add_lshl_u32 v7, v6, s72, 3
v_lshlrev_b32 v8, 4, v0
v_lshlrev_b32 v9, 2, v0
v_add_u32 v3, {CNT}, v9
v_mov_b32 v4, 0
ds_write_b32 v3, v4
v_mov_b32 v196, {CNT}
v_mov_b32 v199, 1
s_mul_i32 s77, s{S_WAVE}, 4608
s_cmp_lt_u32 s{S_WAVE}, 4
s_cselect_b32 s76, 3, 2
s_waitcnt lgkmcnt(0)
s_load_dword s{S_TAG}, s[{P_WS}:{P_WS+1}], {EPOCH}''')
srd(a, S_A, P_K, 2048*1280); srd(a, S_B, P_V, 2048*1280); srd(a, S_C, P_SHK, 640*8)
for p in range(3):
    a(f's_mov_b32 s64, {p*2048}\nbuffer_load_dwordx2 v[{26+2*p}:{27+2*p}], v7, {sr(S_C)}, s64 offen')
for p in range(3):
    if p == 2: a(f's_cmp_ge_u32 s{S_WAVE}, 4\ns_cbranch_scc1 L_ax_no3')
    for i in range(3):
        if i == 2: a('s_mov_b64 exec, 0xffff')
        a(f's_add_u32 m0, s77, {p*8*4608 + i*1024 - p*512}\ns_nop 0')
        a(f'buffer_load_dwordx4 v{13+i}, {sr(S_A)}, 0 offen offset:{p*512} lds')
        a(f's_add_u32 m0, s77, {p*8*4608 + 2304 + i*1024 - p*512}\ns_nop 0')
        a(f'buffer_load_dwordx4 v{13+i}, {sr(S_B)}, 0 offen offset:{p*512} lds')
        if i == 2: a('s_mov_b64 exec, -1')
a('L_ax_no3:')
ts(1)
srd(a, S_WS, P_WS, WS_SIZE)
a(f'''v_bfe_u32 v36, v1, 1, 2
v_xor_b32 v36, v36, v18
v_lshlrev_b32 v36, 4, v36
v_lshl_add_u32 v36, v1, 6, v36
v_add_u32 v36, s77, v36
v_lshlrev_b32 v37, 12, v1
v_lshl_add_u32 v37, v18, 4, v37
v_lshlrev_b32 v38, 6, v1
v_lshl_add_u32 v38, v18, 3, v38
v_lshrrev_b32 v1, 5, v0
v_lshlrev_b32 v2, 10, v1
v_bfe_u32 v19, v0, 2, 2
v_lshl_add_u32 v2, v19, 6, v2
v_bfe_u32 v19, v0, 4, 1
v_lshl_add_u32 v2, v19, 5, v2
v_lshl_add_u32 v2, v18, 3, v2
v_add_u32 v2, s77, v2
v_sub_u32 v1, 1, v1
v_lshlrev_b32 v1, 1, v1
v_bfe_u32 v19, v6, 1, 2
v_xor_b32 v1, v1, v19
v_lshlrev_b32 v1, 4, v1
v_lshl_add_u32 v19, v6, 6, v1
v_add_u32 v35, s77, v19
v_xor_b32 v19, 16, v35
s_sub_u32 s78, 63, s3
s_lshl_b32 s78, s78, 6
s_add_u32 s78, s78, {UT}
s_lshl_b32 s67, s{S_WAVE}, 17
s_add_u32 s78, s78, s67
s_waitcnt lgkmcnt(0)
s_barrier''')
make_tag()
a(f's_cmp_lt_u32 s{S_WAVE}, 4\ns_cbranch_scc1 L_ax_w0\ns_waitcnt vmcnt(6)\ns_branch L_ax_w1\nL_ax_w0:\ns_waitcnt vmcnt(12)\nL_ax_w1:')
ts(2)
a('L_ax_loop:')
wreg = 26
for n in range(5): a(f'ds_read_b64_tr_b16 v[{40+2*n}:{41+2*n}], v2 offset:{256*n}')
for n in range(1, 5): a(f'ds_read_b64_tr_b16 v[{50+2*(n-1)}:{51+2*(n-1)}], v2 offset:{2304+256*n}')
a(f'v_alignbit_b32 v10, v26, v26, 16\nv_alignbit_b32 v11, v27, v27, 16\nv_mov_b32 v26, v28\nv_mov_b32 v27, v29\nv_mov_b32 v28, v30\nv_mov_b32 v29, v31')
wreg = 10
a('s_waitcnt lgkmcnt(4)')
for e in range(1, 10): a(f'v_alignbit_b32 v{57+e}, v{40+e}, v{40+e-1}, 16')
for e in range(8):
    a(f'v_dot2_f32_bf16 v{68+2*e}, v{57+e+1}, v{wreg+1}, 0')
    a(f'v_dot2_f32_bf16 v{69+2*e}, v{40+e+1}, v{wreg+1}, 0')
for e in range(8):
    a(f'v_dot2_f32_bf16 v{68+2*e}, v{57+e+2}, v{wreg}, v{68+2*e}')
    a(f'v_dot2_f32_bf16 v{69+2*e}, v{40+e+2}, v{wreg}, v{69+2*e}')
a('s_waitcnt lgkmcnt(0)')
for e in range(8):
    a(f'v_lshlrev_b32 v{40+e}, 16, v{50+e}')
    a(f'v_and_b32 v{58+e}, 0xffff0000, v{50+e}')
for e in range(8):
    a(f'v_mul_f32 v{68+2*e}, v{68+2*e}, v{40+e}')
    a(f'v_mul_f32 v{69+2*e}, v{69+2*e}, v{58+e}')
for o in range(8):
    e = 7 - o
    a(f'v_cvt_pk_bf16_f32 v{40+o}, v{69+2*e}, v{68+2*e}')
a(f'''ds_write_b128 v35, v[40:43]
ds_write_b128 v19, v[44:47]
s_waitcnt lgkmcnt(0)
ds_read_b128 v[48:51], v36
ds_read_b128 v[52:55], v36 offset:1024
s_add_u32 s67, s78, {16*4096}
v_add_u32 v2, {8*4608}, v2
v_add_u32 v35, {8*4608}, v35
v_add_u32 v19, {8*4608}, v19
v_add_u32 v36, {8*4608}, v36
s_waitcnt lgkmcnt(1)
buffer_store_dwordx4 v[48:51], v37, {sr(S_WS)}, s78 offen sc1
s_waitcnt lgkmcnt(0)
buffer_store_dwordx4 v[52:55], v37, {sr(S_WS)}, s67 offen sc1
s_add_u32 s78, s78, {256*4096}
s_sub_u32 s76, s76, 1
s_cmp_eq_u32 s76, 0
s_cbranch_scc1 L_ax_done
s_cmp_eq_u32 s76, 2
s_cbranch_scc1 L_ax_w9
s_waitcnt vmcnt(2)
s_branch L_ax_loop
L_ax_w9:
s_waitcnt vmcnt(8)
s_branch L_ax_loop
L_ax_done:''')
a(f'''s_waitcnt vmcnt(0)
s_mov_b64 exec, 1
ds_add_rtn_u32 v39, v196, v199 offset:{C_P}
s_mov_b64 exec, -1
s_waitcnt lgkmcnt(0)
v_readfirstlane_b32 s67, v39
s_lshl_b32 s72, s3, 7
s_add_u32 s72, s72, {F1 + 192*128}
s_cmp_lg_u32 s67, 7
s_cbranch_scc1 L_ax_nof1''')
flag_store(72, 1, 39)
a('L_ax_nof1:')
ts(3)
a(f's_cmp_lt_u32 s{S_WAVE}, 4\ns_cbranch_scc1 L_ax_c')
lds_wait(196, 197, C_P, 8, 2)
a(f'''s_lshl_b32 s67, s3, 2
s_add_u32 s67, s67, s{LW}
s_add_u32 s67, s67, 384
s_mov_b32 s68, {CVREG[0]}
s_cmp_eq_u32 s{LW}, 1
s_cselect_b32 s68, {CVREG[1]}, s68
s_cmp_eq_u32 s{LW}, 2
s_cselect_b32 s68, {CVREG[2]}, s68
s_cmp_eq_u32 s{LW}, 3
s_cselect_b32 s68, {CVREG[3]}, s68''')
conv_T()
conv_addr()
a('s_waitcnt vmcnt(0)')
conv_build()
lds_wait(196, 197, C_OK, 1, 2)
conv_uT()
a('s_branch L_conv_main')
a('L_ax_c:')
a(f'''s_and_b32 s64, s3, 7
s_lshl_b32 s64, s64, 2
s_add_u32 s64, s64, s{S_WAVE}        ; 0..31
s_lshr_b32 s65, s3, 3                ; x
s_cmp_lg_u32 s{S_WAVE}, 0
s_cbranch_scc1 L_ax_c1
v_lshlrev_b32 v15, 7, v0
v_add_u32 v16, {F1 + 0x2000}, v15
v_add_u32 v17, {F1 + 0x4000}, v15
v_add_u32 v18, {F1 + 0x6000}, v15
v_add_u32 v15, {F1}, v15''')
poll([18], 20, OPT['asl'], 72)
lds_add(196, 199, C_OK)
poll([15, 16, 17], 20, OPT['asl'], 72)
lds_add(196, 199, C_OKW)
a('L_ax_c1:')
if OPT['pfe']:
    srd(a, S_A, P_SSM, 640*4096)
    a(f's_mul_i32 s67, s65, {48*4096}\ns_mul_i32 s72, s64, 6144\ns_add_u32 s67, s67, s72\ns_add_u32 s72, s67, 3072')
    for i in range(6): a(f'buffer_load_dwordx4 v[60:63], v8, {sr(S_A)}, s{67 if i < 3 else 72} offen offset:{(i%3)*1024}')
lds_wait(196, 197, C_OKW, 1, 2)
ts(4)
if OPT['pfe']:
    a(f'''s_and_b32 s73, s65, 4
    s_mul_i32 s73, s73, {48*5120}
    s_mul_i32 s74, s64, 30720
    s_add_u32 s73, s73, s74
    s_add_u32 s73, s73, {WDP}''')
    for i in range(30):
        a(f'buffer_load_dwordx4 v[60:63], v8, {sr(S_WS)}, s73 offen offset:{(i%3)*1024} sc1')
        if i % 3 == 2: a('s_add_u32 s73, s73, 3072')
    a(f's_add_u32 s67, s67, {UT}\ns_add_u32 s72, s72, {UT}')
    for i in range(6): a(f'buffer_load_dwordx4 v[60:63], v8, {sr(S_WS)}, s{67 if i < 3 else 72} offen offset:{(i%3)*1024} sc1')
    a('s_waitcnt vmcnt(0)')
    ts(1)
g2_setup()
a(f'v_mov_b32 v173, {CNT}\nv_mov_b32 v175, 1')
lds_add(173, 175, C_H)
a(f's_mov_b32 s73, {WS_SIZE}\ns_branch L_g2')
a('L_end:\ns_endpgm')
print(wrap(a.text(), grid=256, block=512, lds=LDS_TOTAL, vgpr=256, accum=256))
```

```python
import sys
from asmlib import *

OPT = dict(ts=0, nt=7, osc=0, qnt=0, cpf=1, tsx=0, wpre=1, tb=1, peel=1, redi=1, hsl=2, pfit=1, bpre=0, tsg=0, rot2=1, prio=1, cprio=3, hpf=0, rf=3, lateb=1, ysig=3, fl=3, pfe=0, asl=12, nrot=10)
for x in sys.argv[1:]:
    k, v = x.split('='); OPT[k] = int(v)
TS = OPT['ts']

EPOCH = 0; F1 = 0x1000; F3 = 0x9000; F2 = 0x20000; GATE = 0x40000; DIAG = 0x80000
UT = 0x100000; Y2T = 0x380000; HB = 0x600000; WDP = 0xC00000; WS_SIZE = 0xE00000
STAGE = 49152
SPARE = 3 * STAGE
LDS_TOTAL = 163840
CS = 4160
TSZ = 4 * CS
CVSZ = TSZ + 4608
CVREG = [STAGE, STAGE + CVSZ, 2 * STAGE, 0]
Y2L = SPARE
CNT = SPARE + 10240
C_ST, C_H, C_P, C_OK, C_CV, C_OKW = 0, 4, 8, 12, 16, 20
STA = 2 * STAGE
STB = 0
S_X, S_WG, S_WU, S_WS, S_A, S_B, S_C = 4, 8, 12, 16, 20, 24, 28
P_Q, P_K, P_V, P_SHK, P_SSM, P_SSMD, P_WG, P_WU, P_WD, P_GW, P_OUT, P_WS = 32, 34, 36, 38, 40, 42, 46, 48, 50, 52, 54, 58
S_WAVE, S_TAG, S_MT, S_NT = 60, 61, 62, 63
a = Asm()
NTK = ' nt' if OPT['nt'] & 1 else ''
NTW = ' nt' if OPT['nt'] & 2 else ''
NTS = ' nt' if OPT['nt'] & 4 else ''
NTG = ' nt' if OPT['nt'] & 8 else ''
NTX = ' nt' if OPT['nt'] & 16 else ''
def tsx(i):
    if OPT['tsx']: a(f's_memrealtime s[{80+2*i}:{81+2*i}]')
def ts(i):
    if OPT['tsx'] and i >= 4: return
    if TS == 1: a(f's_memrealtime s[{80+2*i}:{81+2*i}]')
    if TS == 2: a(f's_memtime s[{80+2*i}:{81+2*i}]')
def ts_dump():
    if not TS: return
    a('s_waitcnt lgkmcnt(0)')
    a(f's_lshl_b32 s64, s2, 3\ns_add_u32 s64, s64, s{S_WAVE}\ns_lshl_b32 s64, s64, 6\ns_add_u32 s64, s64, {DIAG}')
    for i in range(10): a(f'v_mov_b32 v{2+i}, s{80+2*i}')
    a('v_mov_b32 v1, 0\ns_mov_b64 exec, 1')
    a(f'buffer_store_dwordx4 v[2:5], v1, s[{S_WS}:{S_WS+3}], s64 offen')
    a(f'buffer_store_dwordx4 v[6:9], v1, s[{S_WS}:{S_WS+3}], s64 offen offset:16')
    a(f'buffer_store_dwordx2 v[10:11], v1, s[{S_WS}:{S_WS+3}], s64 offen offset:32')
def sr(s): return f's[{s}:{s+3}]'
def vr(v, n=4): return f'v[{v}:{v+n-1}]'

class Q:
    def __init__(self, name, cap): self.q = []; self.name = name; self.cap = cap
    def issue(self, tag, ins=None):
        if ins: a(ins)
        self.q.append(tag)
    def need(self, tags):
        if not isinstance(tags, set): tags = {tags}
        idx = max([i for i, t in enumerate(self.q) if t in tags], default=-1)
        if idx >= 0:
            n = len(self.q) - 1 - idx
            a(f's_waitcnt {self.name}({min(n, self.cap)})')
            self.q = self.q[idx+1:]
    def drain(self):
        a(f's_waitcnt {self.name}(0)'); self.q = []

def poll(addr_regs, tmp, slp=1, sc=64):
    L = a.label('L_poll'); D = a.label('L_pdone')
    a(f's_mov_b32 s{sc}, 0')
    a(f'{L}:')
    for i, r in enumerate(addr_regs):
        a(f'buffer_load_dword v{tmp+i}, v{r}, {sr(S_WS)}, 0 offen sc1')
    a('s_waitcnt vmcnt(0)')
    for i in range(len(addr_regs)): a(f'v_xor_b32 v{tmp+i}, s{S_TAG}, v{tmp+i}')
    for i in range(1, len(addr_regs)): a(f'v_or_b32 v{tmp}, v{tmp}, v{tmp+i}')
    a(f'''v_cmp_ne_u32 vcc, 0, v{tmp}
    s_add_u32 s{sc}, s{sc}, 1
    s_cmp_eq_u64 vcc, 0
    s_cbranch_scc1 {D}
    s_sleep {slp}
    s_cmp_lt_u32 s{sc}, 0x8000
    s_cbranch_scc1 {L}
    {D}:''')
def lds_wait(vaddr, vt, off, val, slp=0, s0=56, s1=57):
    L = a.label('L_lw')
    a(f'''s_mov_b32 s{s0}, 0
    {L}:
    ds_read_b32 v{vt}, v{vaddr} offset:{off}
    s_add_u32 s{s0}, s{s0}, 1
    s_waitcnt lgkmcnt(0)
    v_readfirstlane_b32 s{s1}, v{vt}
    s_cmp_ge_u32 s{s0}, 0x100000
    s_cselect_b32 s{s1}, {val}, s{s1}
    s_cmp_ge_u32 s{s1}, {val}''')
    if slp:
        D = a.label('L_lwd')
        a(f's_cbranch_scc1 {D}\ns_sleep {slp}\ns_branch {L}\n{D}:')
    else:
        a(f's_cbranch_scc0 {L}')
def lds_add(vaddr, vone, off, q=None):
    a('s_mov_b64 exec, 1')
    ins = f'ds_add_u32 v{vaddr}, v{vone} offset:{off}'
    if q: q.issue('sig', ins)
    else: a(ins)
    a('s_mov_b64 exec, -1')
def flag_store(soff_reg, vt0, vt1):
    a(f'''v_mov_b32 v{vt0}, s{S_TAG}
    v_mov_b32 v{vt1}, 0
    s_mov_b64 exec, 1
    buffer_store_dword v{vt0}, v{vt1}, {sr(S_WS)}, s{soff_reg} offen sc1
    s_mov_b64 exec, -1''')
def make_tag():
    a(f's_mul_i32 s{S_TAG}, s{S_TAG}, 1664525\ns_add_u32 s{S_TAG}, s{S_TAG}, 1013904223')
def g2_roles(sa, sj, sstart, sinc, t0):
    a(f'''s_and_b32 s{sa}, s2, 1
    s_lshl_b32 s{sa}, s{sa}, 4
    s_and_b32 s{t0}, s2, 2
    s_lshl_b32 s{t0}, s{t0}, 2
    s_add_u32 s{sa}, s{sa}, s{t0}
    s_bfe_u32 s{t0}, s2, 0x30003
    s_add_u32 s{sa}, s{sa}, s{t0}
    s_and_b32 s{sj}, s2, 4
    s_lshr_b32 s{sinc}, s2, 6
    s_add_u32 s{sj}, s{sj}, s{sinc}
    s_lshl_b32 s{sinc}, s{sinc}, 1
    s_add_u32 s{t0}, s{t0}, s{sinc}
    s_and_b32 s{sstart}, s{t0}, 3
    s_mul_i32 s{sstart}, s{sstart}, {3 if OPT['rot2'] else 0}
    s_bitcmp1_b32 s{t0}, 2
    s_cselect_b32 s{t0}, {2 if OPT['rot2'] else 0}, 0
    s_cselect_b32 s{sinc}, {11 if OPT['rot2'] else 1}, 1
    s_add_u32 s{sstart}, s{sstart}, s{t0}''')
def step12(cur, inc, tmp):
    a(f'''s_add_u32 s{cur}, s{cur}, s{inc}
    s_cmp_ge_u32 s{cur}, 12
    s_cselect_b32 s{tmp}, 12, 0
    s_sub_u32 s{cur}, s{cur}, s{tmp}''')
S_A2, S_J2, S_INC = 69, 70, 78
VL16, VL16B, VQO, VGO, VF2 = 4, 5, 3, 6, 7
def g2_setup():
    srd(a, S_A, P_OUT, 2048*1280)
    srd(a, S_X, P_Q, 2048*1280)
    g2_roles(S_A2, S_J2, 76, S_INC, 66)
    a(f'''s_mul_i32 s74, s{S_A2}, {48*4096}
    s_mul_i32 s66, s{S_WAVE}, {12*4096}
    s_add_u32 s74, s74, s66
    s_add_u32 s74, s74, {HB}
    s_mul_i32 s75, s{S_J2}, {48*5120}
    s_mul_i32 s66, s{S_WAVE}, {12*5120}
    s_add_u32 s75, s75, s66
    s_add_u32 s75, s75, {WDP}
    s_mov_b32 s77, s76
    v_and_b32 v1, 15, v0
    v_lshrrev_b32 v2, 4, v0
    s_lshl_b32 s66, s{S_A2}, 6
    s_lshl_b32 s67, s{S_WAVE}, 4
    s_add_u32 s66, s66, s67
    v_add_u32 v8, s66, v1
    v_mul_u32_u24 v{VQO}, 1280, v8
    v_lshl_add_u32 v{VQO}, v2, 3, v{VQO}
    s_mul_i32 s67, s{S_J2}, 160
    v_add_u32 v{VQO}, s67, v{VQO}
    v_lshrrev_b32 v9, 3, v8
    v_lshlrev_b32 v9, 7, v9
    v_and_b32 v8, 7, v8
    v_lshl_add_u32 v9, v8, 2, v9
    v_add_u32 v{VGO}, {GATE}, v9
    v_min_u32 v1, 5, v0
    v_lshlrev_b32 v1, 1, v1
    s_lshr_b32 s66, s{S_A2}, 1
    s_mul_i32 s66, s66, 12
    s_mul_i32 s67, s{S_WAVE}, 3
    s_add_u32 s66, s66, s67
    s_lshl_b32 s66, s66, 2
    s_and_b32 s67, s{S_A2}, 1
    s_add_u32 s66, s66, s67
    v_add_lshl_u32 v1, v1, s66, 7
    v_add_u32 v{VF2}, {F2}, v1
    v_lshlrev_b32 v{VL16}, 4, v0
    v_add_u32 v{VL16B}, 4096, v{VL16}''')

a(f'''s_cmp_ge_u32 s2, 256
s_cbranch_scc1 L_end
s_load_dwordx16 s[32:47], s[0:1], 0
s_load_dwordx8 s[48:55], s[0:1], 64
s_load_dwordx2 s[58:59], s[0:1], 104''')
ts(0)
a(f'''v_lshrrev_b32 v1, 6, v0
v_and_b32 v0, 63, v0
s_and_b32 s{S_MT}, s2, 1
s_lshl_b32 s{S_MT}, s{S_MT}, 3
v_readfirstlane_b32 s{S_WAVE}, v1
s_bfe_u32 s64, s2, 0x30003
s_add_u32 s{S_MT}, s{S_MT}, s64
s_bfe_u32 s{S_NT}, s2, 0x20001
s_mul_i32 s{S_NT}, s{S_NT}, 3
s_lshr_b32 s64, s2, 6
s_add_u32 s{S_NT}, s{S_NT}, s64
s_cmp_ge_u32 s2, 192
s_cbranch_scc1 L_aux
s_cmp_ge_u32 s{S_WAVE}, 4
s_cbranch_scc1 L_loader''')

ACC = 128; XF = [96, 112]; WF = 64; XA = [58, 59]; WA = [60, 61]
def acc1(mat, b, mb): return ACC + 4 * ((mat * 4 + b) * 4 + mb)
GX = 32
a(f'''v_lshrrev_b32 v1, 2, v0
v_and_b32 v18, 3, v0
v_mul_u32_u24 v12, 1280, v1
v_lshl_add_u32 v12, v18, 4, v12
v_lshlrev_b32 v13, 6, v1
v_lshl_add_u32 v13, v18, 3, v13
s_lshl_b32 s66, s{S_WAVE}, 11
s_add_u32 s66, s66, {SPARE}
v_add_u32 v13, s66, v13
v_lshlrev_b32 v10, 4, v0
v_lshlrev_b32 v11, 2, v0
s_lshr_b32 s64, s2, 2
s_and_b32 s65, s2, 3
s_mul_i32 s67, s64, {32*1280}
s_mul_i32 s68, s65, 320
s_add_u32 s67, s67, s68
s_lshl_b32 s68, s{S_WAVE}, 6
s_add_u32 s67, s67, s68
s_add_u32 s68, s67, {16*1280}
s_lshl_b32 s69, s{S_MT}, 5
s_lshl_b32 s70, s{S_NT}, 2
s_add_u32 s69, s69, s70
s_add_u32 s69, s69, s{S_WAVE}          ; row/4
s_mul_i32 s70, s69, {4*1280}
s_cmp_ge_u32 s{S_NT}, 8
s_cselect_b32 s70, {2048*1280}, s70
s_add_u32 s71, s70, {3*1280}
s_waitcnt lgkmcnt(0)
s_load_dword s{S_TAG}, s[{P_WS}:{P_WS+1}], {EPOCH}''')
tsx(5)
srd(a, S_B, P_WD, 1536*1280); srd(a, S_C, P_GW, 1280); srd(a, S_X, P_Q, 2048*1280)
a(f'''s_mov_b32 m0, s66
s_nop 0
buffer_load_dwordx4 v12, {sr(S_B)}, s67 offen{NTW} lds
s_add_u32 m0, s66, 1024
s_nop 0
buffer_load_dwordx4 v12, {sr(S_B)}, s68 offen{NTW} lds
s_cmp_lg_u32 s{S_WAVE}, 0
s_cbranch_scc1 L_c_nowd2
s_add_u32 m0, s66, {8192 - 256}
s_nop 0
buffer_load_dwordx4 v12, {sr(S_B)}, s67 offen offset:256{NTW} lds
s_add_u32 m0, s66, {8192 + 1024 - 256}
s_nop 0
buffer_load_dwordx4 v12, {sr(S_B)}, s68 offen offset:256{NTW} lds
L_c_nowd2:
buffer_load_dwordx4 v[20:23], v10, {sr(S_C)}, 0 offen
buffer_load_dword v24, v11, {sr(S_C)}, 0 offen offset:1024''')
for i in range(4):
    so, o = (70, 1280 * i) if i < 3 else (71, 0)
    a(f'buffer_load_dwordx4 {vr(GX+6*i)}, v10, {sr(S_X)}, s{so} offen offset:{o}')
    a(f'buffer_load_dword v{GX+6*i+4}, v11, {sr(S_X)}, s{so} offen offset:{o+1024}')
tsx(6)
if OPT['bpre']: a('s_barrier')
srd(a, S_WS, P_WS, WS_SIZE)
a(f'''s_mul_i32 s44, s65, {2*48*5120}
s_mul_i32 s45, s64, 5120
s_add_u32 s44, s44, s45
s_add_u32 s44, s44, {WDP}
s_lshl_b32 s46, s{S_WAVE}, 1
s_add_u32 s47, s46, 1
s_lshl_b32 s40, s46, 10
s_cmp_ge_u32 s46, 5
s_cselect_b32 s45, {48*5120 - 5*1024}, 0
s_add_u32 s40, s40, s45
s_add_u32 s40, s40, s44
s_lshl_b32 s41, s47, 10
s_cmp_ge_u32 s47, 5
s_cselect_b32 s45, {48*5120 - 5*1024}, 0
s_add_u32 s41, s41, s45
s_add_u32 s41, s41, s44
s_add_u32 s42, s44, {48*5120 + 3*1024}
s_lshr_b32 s43, s69, 1
s_lshl_b32 s43, s43, 7
s_and_b32 s45, s69, 1
s_lshl_b32 s45, s45, 4
s_add_u32 s43, s43, s45
s_add_u32 s43, s43, {GATE}
s_cmp_ge_u32 s{S_NT}, 8
s_cselect_b32 s43, {WS_SIZE}, s43
s_lshl_b32 s79, s2, 7
s_add_u32 s79, s79, {F1}''')
a(f'''s_and_b32 s64, s{S_WAVE}, 1        ; wm
s_lshr_b32 s65, s{S_WAVE}, 1        ; wn
v_and_b32 v1, 15, v0
s_lshl_b32 s66, s64, 6
v_add_u32 v1, s66, v1
v_lshrrev_b32 v2, 4, v0
v_bfe_u32 v3, v1, 1, 3
v_lshlrev_b32 v1, 7, v1
v_xor_b32 v4, v2, v3
v_lshl_add_u32 v{XA[0]}, v4, 4, v1
v_xor_b32 v4, 4, v4
v_lshl_add_u32 v{XA[1]}, v4, 4, v1
v_lshlrev_b32 v5, 11, v2
v_bfe_u32 v7, v0, 2, 2
v_lshl_add_u32 v5, v7, 6, v5
v_and_b32 v8, 3, v0
v_lshl_add_u32 v5, v8, 3, v5
s_lshl_b32 s66, s65, 9
s_add_u32 s66, s66, 16384
v_add_u32 v5, s66, v5
v_and_b32 v4, 1, v2
v_lshl_add_u32 v{WA[0]}, v4, 5, v5
v_xor_b32 v{WA[1]}, 32, v{WA[0]}''')
for i in range(128): a(f'v_mov_b32 v{ACC+i}, 0')
a(f'''s_lshl_b32 s66, s{S_MT}, 1
s_add_u32 s66, s66, s64
s_mul_i32 s66, s66, 48
s_lshl_b32 s67, s{S_NT}, 2
s_add_u32 s66, s66, s67
s_lshl_b32 s67, s65, 1
s_add_u32 s66, s66, s67
s_lshl_b32 s66, s66, 12
s_add_u32 s71, s66, {HB}
s_add_u32 s72, s71, 4096
s_mul_i32 s66, s{S_MT}, 12
s_add_u32 s66, s66, s{S_NT}
s_lshl_b32 s66, s66, 2
s_add_u32 s66, s66, s{S_WAVE}
s_lshl_b32 s66, s66, 7
s_add_u32 s73, s66, {F2}''')
g2_setup()
a('s_waitcnt lgkmcnt(0)')
make_tag()
tsx(7)
a('s_waitcnt vmcnt(10)')
tsx(8)
for i in range(2):
    a(f'ds_read_b64_tr_b16 {vr(64+4*i,2)}, v13 offset:{32*i}\nds_read_b64_tr_b16 {vr(66+4*i,2)}, v13 offset:{32*i+1024}')
    a(f'ds_read_b64_tr_b16 {vr(72+4*i,2)}, v13 offset:{8192+32*i}\nds_read_b64_tr_b16 {vr(74+4*i,2)}, v13 offset:{8192+32*i+1024}')
a(f'''s_waitcnt lgkmcnt(0)
buffer_store_dwordx4 v[64:67], v10, {sr(S_WS)}, s40 offen sc1
buffer_store_dwordx4 v[68:71], v10, {sr(S_WS)}, s41 offen sc1
s_cmp_lg_u32 s{S_WAVE}, 0
s_cbranch_scc1 L_c_nowd3
buffer_store_dwordx4 v[72:75], v10, {sr(S_WS)}, s42 offen sc1
buffer_store_dwordx4 v[76:79], v10, {sr(S_WS)}, s42 offen offset:1024 sc1
s_waitcnt vmcnt(4)
L_c_nowd3:
s_waitcnt vmcnt(4)''')
G = 84
def gate_math(GX, G):
    for k in range(5):
        for i in range(4):
            a(f'v_dot2_f32_bf16 v{G+i}, v{GX+6*i+k}, v{20+k}, ' + ('0' if k == 0 else f'v{G+i}'))
    a('s_nop 0')
    for sh in ('row_shr:1', 'row_shr:2', 'row_shr:4', 'row_shr:8'):
        for i in range(4): a(f'v_add_f32_dpp v{G+i}, v{G+i}, v{G+i} {sh} row_mask:0xf bank_mask:0xf bound_ctrl:0')
    for sh in ('row_bcast:15 row_mask:0xa', 'row_bcast:31 row_mask:0xc'):
        for i in range(4): a(f'v_add_f32_dpp v{G+i}, v{G+i}, v{G+i} {sh} bank_mask:0xf')
    for op in ('v_cvt_pk_bf16_f32 v{0}, v{0}, v{0}', 'v_and_b32 v{0}, 0xffff0000, v{0}', 'v_mul_f32 v{0}, 0xbfb8aa3b, v{0}', 'v_exp_f32 v{0}, v{0}',
               'v_add_f32 v{0}, 1.0, v{0}', 'v_rcp_f32 v{0}, v{0}', 'v_cvt_pk_bf16_f32 v{0}, v{0}, v{0}', 'v_and_b32 v{0}, 0xffff0000, v{0}'):
        for i in range(4): a(op.format(G + i))
a(f's_cmp_eq_u32 s{S_WAVE}, 0\ns_cbranch_scc1 L_c_g\ns_waitcnt vmcnt(2)\nL_c_g:')
gate_math(GX, G)
a(f'''v_mov_b32 v1, 0
s_mov_b32 exec_lo, 0
s_mov_b32 exec_hi, 0x80000000
buffer_store_dwordx4 v[{G}:{G+3}], v1, {sr(S_WS)}, s43 offen sc1
s_mov_b64 exec, -1''')
ts(1)
def rdX(st, fs, mb): return (f'X{mb}{fs}', f'ds_read_b128 {vr(XF[fs]+4*mb)}, v{XA[st]} offset:{mb*2048}')
def rdW(st, w):
    mat, b = w // 4, w % 4
    o = st * 8192 + mat * 16384 + (b >> 1) * 256
    return [(f'W{w}', f'ds_read_b64_tr_b16 {vr(WF+4*w,2)}, v{WA[b & 1]} offset:{o}'),
            (f'W{w}', f'ds_read_b64_tr_b16 {vr(WF+4*w+2,2)}, v{WA[b & 1]} offset:{o+1024}')]
WORD = [0, 4, 1, 5, 2, 6, 3, 7]
if OPT['cprio']: a(f's_setprio {OPT["cprio"]}')
a('s_barrier')
ts(3)
lq = Q('lgkmcnt', 15)
init = [rdX(0, 0, 0)] + rdW(0, WORD[0]) + [rdX(0, 0, m) for m in (1, 2, 3)]
for w in WORD[1:]: init += rdW(0, w)
for tag, ins in init: lq.issue(tag, ins)
a(f's_mov_b32 s64, 0\ns_mov_b32 s65, 0\ns_mov_b32 s67, {-2*STAGE & 0xffffffff}\ns_mov_b32 s68, {STAGE}')
def hprod(b, mb, dst):
    g = acc1(0, b, mb); u = acc1(1, b, mb)
    r = [f'v_mul_f32 v{g+i}, v{g+i}, v{u+i}' for i in range(4)]
    return r + [f'v_cvt_pk_bf16_f32 v{dst}, v{g}, v{g+1}', f'v_cvt_pk_bf16_f32 v{dst+1}, v{g+2}, v{g+3}']
def h_out(p, mb):
    d = 16 + 16 * p + 4 * mb
    return hprod(2 * p, mb, d) + hprod(2 * p + 1, mb, d + 2) + [f'buffer_store_dwordx4 {vr(d)}, v{VL16}, {sr(S_WS)}, s{71+p} offen offset:{mb*1024} sc1']
def g1_half(st, last):
    pend = []; extra = []
    for wi, w in enumerate(WORD):
        for mb in range(4):
            lq.need({f'W{w}', f'X{mb}{st}'})
            acc = acc1(w // 4, w % 4, mb)
            a(f'v_mfma_f32_16x16x32_bf16 {vr(acc)}, {vr(WF+4*w)}, {vr(XF[st]+4*mb)}, {vr(acc)}')
            n = wi * 4 + mb
            if st == 0:
                if n == 0: pend += [rdX(1, 1, m) for m in range(4)]
                if mb == 3: pend += rdW(1, w)
            elif last:
                if n == 7: lq.drain(); a('s_barrier')
                if n == 21:
                    for m in range(4): extra += h_out(0, m)
                for _ in range(3):
                    if extra: a(extra.pop(0))
            else:
                if n == 0:
                    a(f's_cmp_lg_u32 s64, {OPT["pfit"]}\ns_cbranch_scc1 L_g1_nw\ns_waitcnt vmcnt(0)\nL_g1_nw:')
                if n == 21:
                    a(f's_lshl_b32 s66, s{S_WAVE}, 4\ns_add_u32 s66, s66, s64\ns_cmp_lg_u32 s66, {OPT["pfit"]}\ns_cbranch_scc1 L_g1_nf')
                    flag_store(79, 1, 2)
                    a('L_g1_nf:')
                if n == 1:
                    a('s_add_u32 s65, s65, 1\ns_cmp_eq_u32 s65, 3\ns_cselect_b32 s66, s67, s68\ns_cselect_b32 s65, 0, s65')
                if n in (2, 3, 4, 5):
                    r = (XA + WA)[n - 2]
                    a(f'v_add_u32 v{r}, s66, v{r}')
                if n == 7:
                    lq.drain(); a('s_barrier')
                    pend += [rdX(0, 0, 0)] + rdW(0, WORD[0]) + [rdX(0, 0, m) for m in (1, 2, 3)] + rdW(0, WORD[1])
                if n > 7 and mb == 3: pend += rdW(0, w)
            if pend and not (st == 1 and n < 7):
                tag, ins = pend.pop(0); lq.issue(tag, ins)
    for tag, ins in pend: lq.issue(tag, ins)
    for e in extra: a(e)
a('.p2align 3\nL_g1_loop:')
g1_half(0, False)
if OPT['peel']:
    qsave = list(lq.q)
    a('s_cmp_eq_u32 s64, 9\ns_cbranch_scc1 L_g1_last')
g1_half(1, False)
a('s_add_u32 s64, s64, 1\ns_cmp_lt_u32 s64, 10\ns_cbranch_scc1 L_g1_loop')
if OPT['peel']:
    a('L_g1_last:')
    lq.q = qsave
    g1_half(1, True)
    ts(4)
    for mb in range(4):
        for e in h_out(1, mb): a(e)
else:
    ts(4)
    a('s_waitcnt lgkmcnt(0)\ns_nop 4')
    for p in range(2):
        for mb in range(4):
            for e in h_out(p, mb): a(e)
DH = 4
WR = 8; WT = 88; HR = 108; ACC2 = 176
a(f'v_mov_b32 v173, {CNT}\nv_mov_b32 v175, 1')
lds_add(173, 175, C_H)
lds_wait(173, 1, C_OK, 1, 1)
a('L_g2:')
ts(2)
a(f'''s_mul_i32 s66, s{S_WAVE}, 10240
v_add_u32 v172, s66, v{VL16}
v_add_u32 v174, {STA}, v172''')
vq = Q('vmcnt', 63)
def ld_wd(s):
    r = WR + 20 * (s % 4)
    a(f's_mul_i32 s79, s77, 5120\ns_add_u32 s79, s79, s75')
    for _ in range(5 if s == 3 else 1): step12(77, S_INC, 66)
    for db in range(4): vq.issue(('w', s), f'buffer_load_dwordx4 {vr(r+4*db)}, v{VL16}, {sr(S_WS)}, s79 offen offset:{db*1024} sc1')
    vq.issue(('w', s), f'buffer_load_dwordx4 {vr(r+16)}, v{VL16B}, {sr(S_WS)}, s79 offen sc1')
def ld_h(s):
    r = HR + 16 * (s % DH)
    a(f's_lshl_b32 s79, s76, 12\ns_add_u32 s79, s79, s74')
    step12(76, S_INC, 66)
    for mb in range(4): vq.issue(('h', s), f'buffer_load_dwordx4 {vr(r+4*mb)}, v{VL16}, {sr(S_WS)}, s79 offen offset:{mb*1024} sc1')
for s in range(OPT['wpre']): ld_wd(s)
for i in range(80): a(f'v_mov_b32 v{ACC2+i}, 0')
a(f's_waitcnt vmcnt({5*OPT["wpre"]})')
flag_store(73, 1, 2)
if OPT['cprio']: a('s_setprio 0')
ts(5)
for s in range(OPT['wpre'], 4): ld_wd(s)
if OPT['tsg']: a('s_waitcnt vmcnt(0)\ns_memrealtime s[100:101]\ns_waitcnt lgkmcnt(0)\nv_writelane_b32 v175, s100, 12')
poll([VF2], 1, OPT['hsl'])
if OPT['tsg']: a('v_writelane_b32 v175, s64, 13')
vq.q = []
ts(7)
if OPT['hpf']:
    a(f'''v_min_u32 v1, 47, v0
    s_and_b32 s66, s{S_J2}, 3
    s_mul_i32 s66, s66, {96*128}
    v_lshl_add_u32 v1, v1, 7, s66''')
    vq.issue('pf', f'buffer_load_dword v2, v1, {sr(S_WS)}, s74 offen sc1')
    a(f'v_add_u32 v1, {48*128}, v1')
    vq.issue('pf', f'buffer_load_dword v2, v1, {sr(S_WS)}, s74 offen sc1')
for s in range(DH): ld_h(s)
def rd_st(s, db):
    base = 174 if s < 6 else 172
    return f'ds_read_b128 {vr(WT+4*db)}, v{base} offset:{(s & 1) * 5120 + db*1024}'
lq = Q('lgkmcnt', 15)
def sig():
    a('v_mov_b32 v1, 1'); lds_add(173, 1, C_H, lq)
sig()
QR = HR
def red_write(db):
    for o in range(4):
        t = db * 4 + o
        a(f'ds_write_b128 v{174 if t < 10 else 172}, {vr(ACC2+4*t)} offset:{(t % 10)*1024}')
for s in range(12):
    vq.need({('h', s), ('w', s)})
    if OPT['tsg']: a(f's_memrealtime s[100:101]\ns_waitcnt lgkmcnt(0)\nv_writelane_b32 v175, s100, {s}')
    r = HR + 16 * (s % DH); w = WT if 4 <= s < 8 else WR + 20 * (s % 4)
    if s == 3:
        lds_wait(173, 1, C_ST, 1); lq.q = []
        for db in range(5): lq.issue(('t', 4, db), rd_st(4, db))
    for db in range(5):
        if 4 <= s < 8: lq.need(('t', s, db))
        for mb in range(4):
            acc = ACC2 + 4 * (db * 4 + mb)
            a(f'v_mfma_f32_16x16x32_bf16 {vr(acc)}, {vr(w+4*db)}, {vr(r+4*mb)}, {vr(acc)}')
        if s == 11 and OPT['redi'] and db >= 1:
            if db == 1: a('s_nop 1')
            red_write(db - 1)
        if s == 5 and db == 0:
            lds_wait(173, 1, C_ST, 2); lq.q = []
        if 4 <= s < 7: lq.issue(('t', s + 1, db), rd_st(s + 1, db))
    if s + DH < 12: ld_h(s + DH)
    if 0 <= s - OPT['rf'] < 4: ld_wd(s - OPT['rf'] + 8)
    if s == OPT['ysig']: sig()
    if s == 8:
        vq.issue('q', f'buffer_load_dword v{QR+10}, v{VGO}, {sr(S_WS)}, 0 offen sc1')
        for db in range(5): vq.issue('q', f'buffer_load_dwordx2 {vr(QR+2*db,2)}, v{VQO}, {sr(S_X)}, 0 offen offset:{32*db}' + (' nt' if OPT['qnt'] else ''))
ts(8)
if OPT['redi']:
    a(f's_lshl_b32 s66, s{S_WAVE}, 10\nv_add_u32 v88, s66, v{VL16}\nv_add_u32 v89, {STA}, v88')
    a(f's_mov_b32 s66, {STA + 8192}\ns_cmp_lt_u32 s{S_WAVE}, 2\ns_cselect_b32 s66, s66, {-2048 & 0xffffffff}\nv_add_u32 v90, s66, v88')
    red_write(4)
else:
    a('s_nop 7')
    for w in range(4):
        L = a.label('L_red')
        a(f's_cmp_lg_u32 s{S_WAVE}, {w}\ns_cbranch_scc1 {L}')
        for k in range(3):
            o = (w + 1 + k) & 3
            for db in range(5):
                a(f'ds_write_b128 v{174 if k < 2 else 172}, {vr(ACC2+4*(db*4+o))} offset:{(k & 1)*5120 + db*1024}')
        for db in range(5):
            for i in range(4): a(f'v_mov_b32 v{8+4*db+i}, v{ACC2+4*(db*4+w)+i}')
        for k in range(3):
            sw = (w - 1 - k) & 3
            a(f'v_add_u32 v{88+k}, {(STA if k < 2 else STB) + sw*10240 + (k & 1)*5120}, v{VL16}')
        a(f'{L}:')
a(f'''v_lshrrev_b32 v2, 2, v0
v_bfe_u32 v1, v2, 1, 2
v_xor_b32 v1, s{S_WAVE}, v1
v_lshlrev_b32 v1, 5, v1
v_lshl_add_u32 v2, v2, 7, v1
v_and_b32 v1, 3, v0
v_lshl_add_u32 v2, v1, 3, v2
v_add_u32 v2, {Y2L}, v2
s_waitcnt vmcnt(0)
v_sub_f32 v{QR+11}, 1.0, v{QR+10}
s_waitcnt lgkmcnt(0)
s_barrier''')
ts(6)
YR = 92
for db in range(5): a(f'ds_read_b64_tr_b16 {vr(YR+2*db,2)}, v2 offset:{db*2048}')
if OPT['redi']:
    for k in range(4):
        for db in range(5):
            base, off = (89, db*4096) if db < 2 else (90, 0) if db == 2 else (88, (4*db-10)*1024)
            a(f'ds_read_b128 {vr(8+20*k+4*db)}, v{base} offset:{off + k*10240}')
    a('s_waitcnt lgkmcnt(15)')
else:
    for k in range(3):
        for db in range(5): a(f'ds_read_b128 {vr(28+20*k+4*db)}, v{88+k} offset:{db*1024}')
    a('s_waitcnt lgkmcnt(15)')
PR = 132
for db in range(5):
    for h in range(2):
        q = QR + 2*db + h; y = YR + 2*db + h; p = PR + 4*db + 2*h
        a(f'''v_lshlrev_b32 v124, 16, v{q}
        v_and_b32 v125, 0xffff0000, v{q}
        v_lshlrev_b32 v126, 16, v{y}
        v_and_b32 v127, 0xffff0000, v{y}
        v_mul_f32 v124, v124, v126
        v_mul_f32 v125, v125, v127
        v_mul_f32 v{p}, v{QR+10}, v124
        v_mul_f32 v{p+1}, v{QR+10}, v125''')
for k in range(3):
    a(f's_waitcnt lgkmcnt({10-5*k})')
    for i in range(20): a(f'v_add_f32 v{8+i}, v{8+i}, v{28+20*k+i}')
for db in range(5):
    for i in range(4): a(f'v_fma_f32 v{PR+4*db+i}, v{QR+11}, v{8+4*db+i}, v{PR+4*db+i}')
    a(f'v_cvt_pk_bf16_f32 v{152+2*db}, v{PR+4*db}, v{PR+1+4*db}\nv_cvt_pk_bf16_f32 v{153+2*db}, v{PR+2+4*db}, v{PR+3+4*db}')
    a(f'buffer_store_dwordx2 {vr(152+2*db,2)}, v{VQO}, {sr(S_A)}, 0 offen offset:{32*db}' + ['', ' sc1', ' nt', ' sc1 nt'][OPT['osc']])
ts(9)
if OPT['tsg']:
    a(f's_lshl_b32 s64, s2, 2\ns_add_u32 s64, s64, s{S_WAVE}\ns_lshl_b32 s64, s64, 6\ns_add_u32 s64, s64, {DIAG + 0x30000}\nv_lshlrev_b32 v1, 2, v0\ns_mov_b64 exec, 0xffff')
    a(f'buffer_store_dword v175, v1, {sr(S_WS)}, s64 offen\ns_mov_b64 exec, -1')
ts_dump()
a('s_endpgm')

LW = 66
CACC = 32; CA = [64, 128]; CB = [96, 160]
def conv_T():
    srd(a, S_A, P_SSM, 640*4096)
    srd(a, S_B, P_SSMD, 1280)
    a(f's_lshl_b32 s69, s67, 12\ns_add_u32 s70, s68, {TSZ}\nv_lshlrev_b32 v10, 4, v0')
    for phi in (0, 2):
        a(f's_add_u32 s71, s69, {2*phi}')
        a(f's_add_u32 m0, s68, {phi*CS + 32}\ns_nop 0')
        for i in range(4): a(f'buffer_load_dwordx4 v10, {sr(S_A)}, s71 offen offset:{i*1024}{NTS} lds')
    a(f'''v_lshrrev_b32 v1, 4, v0
    v_and_b32 v2, 15, v0
    v_add3_u32 v3, v1, v2, -16
    v_lshlrev_b32 v4, 1, v3
    v_add_u32 v4, s69, v4
    v_cmp_gt_i32 vcc, 0, v3
    s_lshl_b32 s71, s67, 1
    v_mov_b32 v7, s71
    v_cndmask_b32 v4, v4, -1, vcc
    buffer_load_ushort v5, v4, {sr(S_A)}, 0 offen
    buffer_load_ushort v7, v7, {sr(S_B)}, 0 offen''')
def conv_uT():
    a(f's_add_u32 s71, s69, {UT}\ns_mov_b32 m0, s70\ns_nop 0')
    for i in range(4): a(f'buffer_load_dwordx4 v10, {sr(S_WS)}, s71 offen offset:{i*1024} sc1 lds')
def conv_addr():
    a(f'''v_mul_u32_u24 v8, {CS}, v1
    v_add_u32 v8, s68, v8
    v_lshl_add_u32 v9, v2, 1, v8
    v_add_u32 v11, s68, v10
    v_mov_b32 v12, 0
    v_mov_b32 v13, 0
    v_lshl_add_u32 v14, v0, 3, s70
    ds_write_b64 v14, v[12:13] offset:4096
    v_add_u32 v3, 1, v2
    v_and_b32 v4, 3, v3
    v_sub_u32 v3, v3, v4
    v_lshl_add_u32 v3, v1, 3, v3
    v_mul_u32_u24 v4, {CS}, v4
    v_lshl_add_u32 v20, v3, 1, v4
    v_add_u32 v20, s68, v20
    v_lshlrev_b32 v3, 4, v1
    v_lshlrev_b32 v4, 5, v2
    v_sub_u32 v3, v3, v4
    v_add_u32 v3, {2*(2032-1792)}, v3
    v_add_u32 v21, s70, v3''')
    for i in range(32): a(f'v_mov_b32 v{CACC+i}, 0')
def conv_build():
    for i in range(4):
        b = 64 + 16 * i
        a(f'''ds_read_b128 {vr(b)}, v11 offset:{32 + i*1024}
        ds_read_b128 {vr(b+4)}, v11 offset:{2*CS + 32 + i*1024}
        ds_read_b64 {vr(b+10,2)}, v11 offset:{32 + i*1024 + 16}''')
    a('ds_write_b16 v9, v5\nv_lshlrev_b32 v7, 16, v7')
    for i in range(4):
        b = 64 + 16 * i
        a(f's_waitcnt lgkmcnt({min(15, 3*(3-i) + 1 + 2*i)})')
        for k in range(4): a(f'v_alignbit_b32 v{b+12+k}, v{b+4+k}, v{b+k}, 16')
        C = [b+2, b+3, b+10, b+11]
        for k in range(4): a(f'v_alignbit_b32 v{b+4+k}, v{C[k]}, v{b+4+k}, 16')
        a(f'ds_write_b128 v11, {vr(b+12)} offset:{CS + 32 + i*1024}\nds_write_b128 v11, {vr(b+4)} offset:{3*CS + 32 + i*1024}')

a('L_loader:')
tsx(4)
a(f'''s_sub_u32 s{LW}, s{S_WAVE}, 4
v_lshrrev_b32 v3, 3, v0
s_lshl_b32 s67, s{LW}, 5
s_lshl_b32 s68, s{S_MT}, 7
s_add_u32 s67, s67, s68
v_bfe_u32 v4, v3, 1, 3
v_and_b32 v5, 7, v0
v_xor_b32 v4, v4, v5
v_add_u32 v3, s67, v3
v_mul_u32_u24 v3, 1280, v3
v_lshl_add_u32 v200, v4, 4, v3
v_xor_b32 v4, 4, v4
v_lshl_add_u32 v201, v4, 4, v3
v_add_u32 v201, {8*1280}, v201
v_add_u32 v202, {16*1280}, v200
v_add_u32 v203, {16*1280}, v201
v_bfe_u32 v3, v0, 2, 2
s_lshl_b32 s67, s{LW}, 4
v_add_u32 v3, s67, v3
v_mul_u32_u24 v3, 3072, v3
v_lshrrev_b32 v4, 4, v0
v_lshl_add_u32 v3, v4, 6, v3
v_and_b32 v4, 3, v0
v_lshl_add_u32 v3, v4, 4, v3
s_lshl_b32 s67, s{S_NT}, 8
v_add_u32 v204, s67, v3
v_add_u32 v205, {4*3072}, v204
v_xor_b32 v206, 32, v204
v_add_u32 v206, {8*3072}, v206
v_add_u32 v207, {4*3072}, v206
s_add_u32 s68, s{S_MT}, s{S_NT}
s_mul_i32 s69, s68, 6554
s_lshr_b32 s69, s69, 16
s_mul_i32 s69, s69, 10
s_sub_u32 s68, s68, s69
s_lshl_b32 s69, s{LW}, 12
s_mov_b32 s71, 0
s_waitcnt lgkmcnt(0)
s_load_dword s{S_TAG}, s[{P_WS}:{P_WS+1}], {EPOCH}''')
tsx(5)
srd(a, S_X, P_Q, 2048*1280)
srd(a, S_WG, P_WG, 640*3072)
srd(a, S_WU, P_WU, 640*3072)
if OPT['bpre']: a('s_barrier')
def g1_issue():
    a(f's_lshl_b32 s72, s68, 7\ns_mul_i32 s73, s68, {64*3072}\ns_add_u32 s74, s71, s69')
    for j in range(4):
        a(f's_add_u32 m0, s74, {j*1024}\n' + ('s_add_u32 s68, s68, 1' if j == 0 else 's_nop 0'))
        a(f'buffer_load_dwordx4 v{200+j}, {sr(S_X)}, s72 offen{NTX} lds')
    for n in range(4):
        a(f's_add_u32 m0, s74, {16384 + n*1024}\ns_nop 0')
        a(f'buffer_load_dwordx4 v{204+n}, {sr(S_WG)}, s73 offen{NTG} lds')
        a(f's_add_u32 m0, s74, {32768 + n*1024}\ns_nop 0')
        a(f'buffer_load_dwordx4 v{204+n}, {sr(S_WU)}, s73 offen{NTG} lds')
    a(f'''s_cmp_ge_u32 s68, 10
    s_cselect_b32 s68, 0, s68
    s_add_u32 s71, s71, {STAGE}
    s_cmp_eq_u32 s71, {3*STAGE}
    s_cselect_b32 s71, 0, s71''')
tsx(6)
g1_issue()
tsx(7)
srd(a, S_WS, P_WS, WS_SIZE)
a(f'''v_lshlrev_b32 v15, 7, v0
v_add_u32 v16, {F1 + 0x2000}, v15
v_add_u32 v17, {F1 + 0x4000}, v15
v_add_u32 v18, {F1 + 0x6000}, v15
v_add_u32 v15, {F1}, v15
v_lshl_add_u32 v3, v0, 2, 0
v_add_u32 v3, {CNT}, v3
v_mov_b32 v4, 0
ds_write_b32 v3, v4
v_mov_b32 v196, {CNT}
v_mov_b32 v199, 1
s_waitcnt lgkmcnt(0)''')
make_tag()
g1_issue()
a('s_mov_b32 s76, 0')
ts(1)
a('L_ld_loop:\ns_waitcnt vmcnt(12)')
a('s_barrier')
if TS == 1: a('s_memrealtime s[100:101]\ns_waitcnt lgkmcnt(0)\ns_mov_b32 m0, s76\ns_nop 0\nv_writelane_b32 v220, s100, m0')
g1_issue()
a('s_add_u32 s76, s76, 1\ns_cmp_lt_u32 s76, 8\ns_cbranch_scc1 L_ld_loop')
assert OPT['fl'] + 2 <= 7
a('s_waitcnt vmcnt(12)\ns_barrier')
ts(2)
if TS == 1:
    a(f's_lshl_b32 s64, s2, 2\ns_add_u32 s64, s64, s{LW}\ns_lshl_b32 s64, s64, 6\ns_add_u32 s64, s64, {DIAG + 0x20000}\nv_lshlrev_b32 v1, 2, v0\ns_mov_b64 exec, 0xff')
    a(f'buffer_store_dword v220, v1, {sr(S_WS)}, s64 offen\ns_mov_b64 exec, -1')
NT_ = 1 if TS == 1 else 0
a(f's_cmp_ge_u32 s{LW}, 2\ns_cbranch_scc1 L_ld67')
a(f'''s_and_b32 s67, s2, 7
s_mul_i32 s67, s67, 24
s_lshr_b32 s68, s2, 3
s_add_u32 s67, s67, s68
s_lshl_b32 s67, s67, 1
s_add_u32 s67, s67, s{LW}
s_mul_i32 s68, s{LW}, {CVSZ}
s_add_u32 s68, s68, {CVREG[0]}''')
conv_T()
conv_addr()
a(f's_waitcnt vmcnt({10 + NT_})\ns_barrier')
ts(5)
if OPT['tb'] == 2:
    a(f'ds_read_b32 v197, v196 offset:{C_OK}\ns_waitcnt lgkmcnt(0)\nv_readfirstlane_b32 s57, v197\ns_nop 0\ns_cmp_eq_u32 s57, 0\ns_cbranch_scc1 L_cv_late')
    conv_uT()
    a('s_barrier\ns_waitcnt vmcnt(4)')
    conv_build()
    a('s_branch L_conv_main\nL_cv_late:\ns_barrier\ns_waitcnt vmcnt(0)')
    conv_build()
    lds_wait(196, 197, C_OK, 1, 1)
    conv_uT()
elif OPT['tb']:
    lds_wait(196, 197, C_OK, 1, 1)
    conv_uT()
    a('s_barrier')
    ts(4)
    a('s_waitcnt vmcnt(4)')
    conv_build()
else:
    a('s_waitcnt vmcnt(0)')
    conv_build()
    a('s_barrier')
    ts(4)
    lds_wait(196, 197, C_OK, 1, 1)
    conv_uT()
a('L_conv_main:\ns_waitcnt vmcnt(0)')
ts(6)
a(f's_setprio {OPT["prio"]}')
def conv_reads(fs):
    r = []
    def A(k): return [(f'A{k}{fs}', f'ds_read_b64 {vr(CA[fs]+4*k,2)}, v20 offset:{k*512}'), (f'A{k}{fs}', f'ds_read_b64 {vr(CA[fs]+4*k+2,2)}, v20 offset:{k*512+8}')]
    def B(d): return [(f'B{d}{fs}', f'ds_read_b128 {vr(CB[fs]+4*d)}, v21 offset:{(7-d)*512}')]
    r += A(0)
    for d in range(8): r += B(d)
    for k in range(1, 8): r += A(k)
    return r
lq = Q('lgkmcnt', 15)
for tag, ins in conv_reads(0): lq.issue(tag, ins)
a('s_mov_b32 s71, 0\n.p2align 3\nL_conv_loop:')
for fs in range(2):
    nxt = conv_reads(fs ^ 1)
    a('v_add_u32 v20, 64, v20\nv_add_u32 v21, 64, v21')
    n = 0
    for k in range(8):
        for q in range(k, 8):
            lq.need({f'A{k}{fs}', f'B{q-k}{fs}'})
            a(f'v_mfma_f32_16x16x32_bf16 {vr(CACC+4*q)}, {vr(CA[fs]+4*k)}, {vr(CB[fs]+4*(q-k))}, {vr(CACC+4*q)}')
            n += 1
            if n >= 9 and nxt:
                tag, ins = nxt.pop(0); lq.issue(tag, ins)
    assert not nxt
a('s_add_u32 s71, s71, 1\ns_cmp_lt_u32 s71, 4\ns_cbranch_scc1 L_conv_loop')
ts(7)
a(f'''s_waitcnt lgkmcnt(0)
v_lshlrev_b32 v3, 3, v1
v_lshl_add_u32 v3, v2, 5, v3
v_sub_u32 v4, {2*(2044-1792)}, v3
v_add_u32 v4, s70, v4
v_add_u32 v3, s68, v3''')
for q in range(8): a(f'ds_read_b64 {vr(64+2*q,2)}, v4 offset:{(7-q)*512}')
for q in range(8):
    u = 64 + 2*q; y = CACC + 4*q; t = 96 + 4*q
    a(f'''s_waitcnt lgkmcnt(7)
    v_and_b32 v{t}, 0xffff0000, v{u+1}
    v_lshlrev_b32 v{t+1}, 16, v{u+1}
    v_and_b32 v{t+2}, 0xffff0000, v{u}
    v_lshlrev_b32 v{t+3}, 16, v{u}''')
    for i in range(4): a(f'v_fma_f32 v{y+i}, v{t+i}, v7, v{y+i}')
    a(f'v_cvt_pk_bf16_f32 v{u}, v{y}, v{y+1}\nv_cvt_pk_bf16_f32 v{u+1}, v{y+2}, v{y+3}')
    a(f'ds_write_b64 v3, {vr(u,2)} offset:{q*512}')
a(f's_add_u32 s71, s69, {Y2T}\ns_waitcnt lgkmcnt(0)')
for i in range(4): a(f'ds_read_b128 {vr(96+4*i)}, v11 offset:{i*1024}')
for i in range(4):
    a(f's_waitcnt lgkmcnt({3-i})')
    a(f'buffer_store_dwordx4 {vr(96+4*i)}, v10, {sr(S_WS)}, s71 offen offset:{i*1024} sc1')
lds_add(196, 199, C_CV)
a(f's_lshl_b32 s71, s67, 7\ns_add_u32 s71, s71, {F3}\ns_waitcnt vmcnt(0)')
flag_store(71, 3, 4)
ts(8)
a(f's_setprio 0\ns_cmp_lg_u32 s{LW}, 3\ns_cbranch_scc1 L_join')
lds_wait(196, 197, C_CV, 4, 2)
lds_wait(196, 197, C_OKW, 1, 2)
a('s_branch L_w7')
if OPT['tb'] == 2:
    a('L_ld67:')
    a(f's_cmp_eq_u32 s{LW}, 3\ns_cbranch_scc1 L_ld7a')
    for i in range(4): a(f'buffer_load_dword v{20+i}, v{15+i}, {sr(S_WS)}, 0 offen sc1')
    a(f's_waitcnt vmcnt({NT_ + 4})\ns_barrier\ns_waitcnt vmcnt(0)')
    for i in range(4): a(f'v_xor_b32 v{20+i}, s{S_TAG}, v{20+i}')
    a('v_or3_b32 v20, v20, v21, v22\nv_or_b32 v20, v20, v23\nv_cmp_ne_u32 vcc, 0, v20\ns_cmp_eq_u64 vcc, 0\ns_cbranch_scc0 L_w6_late')
    lds_add(196, 199, C_OK)
    ts(5)
    a('s_barrier\ns_branch L_w6_done\nL_ld7a:')
    a(f's_waitcnt vmcnt({NT_})\ns_barrier\ns_branch L_ld7\nL_w6_late:\ns_barrier')
    poll([15, 16, 17, 18], 20, 2)
    lds_add(196, 199, C_OK)
    ts(5)
    a('L_w6_done:')
else:
    a('L_ld67:')
    for i in range(4): a(f'buffer_load_dword v{20+i}, v{15+i}, {sr(S_WS)}, 0 offen sc1')
    a(f's_waitcnt vmcnt({NT_ + 4})\ns_barrier\ns_cmp_eq_u32 s{LW}, 3\ns_cbranch_scc1 L_ld7' + ('' if OPT['tb'] else '\ns_barrier') + '\ns_waitcnt vmcnt(0)')
    for i in range(4): a(f'v_xor_b32 v{20+i}, s{S_TAG}, v{20+i}')
    a('v_or3_b32 v20, v20, v21, v22\nv_or_b32 v20, v20, v23\nv_cmp_ne_u32 vcc, 0, v20\ns_cmp_eq_u64 vcc, 0\ns_cbranch_scc1 L_nochk1')
    poll([15, 16, 17, 18], 20, 2)
    a('L_nochk1:')
    lds_add(196, 199, C_OK)
    ts(5)
    if OPT['tb']: a('s_barrier')
a(f's_cmp_lg_u32 s2, 0\ns_cbranch_scc1 L_join\ns_mov_b32 s71, {EPOCH}')
flag_store(71, 3, 4)
a('s_branch L_join\nL_ld7:\ns_barrier')
lds_wait(196, 197, C_OK, 1, 1)
a('L_w7:')
g2_roles(67, 68, 78, 79, 64)
a(f'''v_lshlrev_b32 v10, 4, v0
v_add_u32 v11, 4096, v10
s_mul_i32 s75, s68, {48*5120}
s_add_u32 s75, s75, {WDP}''')
for _ in range(4): step12(78, 79, 64)
def stash(ldsbase):
    for i in range(2):
        a('s_mul_i32 s72, s78, 5120\ns_add_u32 s72, s72, s75')
        step12(78, 79, 64)
        for w in range(4):
            a(f's_mov_b32 m0, {ldsbase + w*10240 + i*5120}\ns_nop 0')
            for db in range(4): a(f'buffer_load_dwordx4 v10, {sr(S_WS)}, s72 offen offset:{db*1024} sc1 lds')
            a(f's_mov_b32 m0, {ldsbase + w*10240 + i*5120 + 4096}\ns_nop 0')
            a(f'buffer_load_dwordx4 v11, {sr(S_WS)}, s72 offen sc1 lds')
            if w < 3: a(f's_add_u32 s72, s72, {12*5120}')
a(f'''s_mul_i32 s68, s68, 80
v_add_lshl_u32 v3, v0, s68, 7
v_add_u32 v12, {F3}, v3
v_and_b32 v3, 15, v0
v_add_lshl_u32 v3, v3, s68, 7
v_add_u32 v13, {F3 + 64*128}, v3
v_lshrrev_b32 v3, 3, v0
v_and_b32 v4, 7, v0
v_lshlrev_b32 v5, 4, v4
v_lshl_add_u32 v5, v3, 12, v5
v_and_b32 v6, 6, v3
v_xor_b32 v6, v6, v4
v_lshlrev_b32 v6, 4, v6
v_lshl_add_u32 v6, v3, 7, v6
v_add_u32 v6, {Y2L}, v6
s_lshl_b32 s69, s68, 12
s_lshl_b32 s70, s67, 7
s_add_u32 s69, s69, s70
s_add_u32 s69, s69, {Y2T}''')
lds_wait(196, 197, C_H, 4, 2)
ts(4)
stash(STA)
if OPT['lateb']:
    a('s_waitcnt vmcnt(0)')
    lds_add(196, 199, C_ST)
    lds_wait(196, 197, C_H, 8, 2)
    stash(STB)
else:
    stash(STB)
    a('s_waitcnt vmcnt(40)')
    lds_add(196, 199, C_ST)
a('s_waitcnt vmcnt(0)')
lds_add(196, 199, C_ST)
ts(5)
lds_wait(196, 197, C_H, 12, 4)
poll([12, 13], 8, 4)
ts(1)
for i in range(10):
    a(f'buffer_load_dwordx4 {vr(16+4*i)}, v5, {sr(S_WS)}, s69 offen sc1')
    if i < 9: a(f's_add_u32 s69, s69, {8*4096}')
for i in range(10):
    a(f's_waitcnt vmcnt({9-i})')
    a(f'ds_write_b128 v6, {vr(16+4*i)} offset:{i*1024}')
ts(2)
a('L_join:\ns_waitcnt lgkmcnt(0)\ns_barrier')
ts(9)
ts_dump()
a('s_endpgm')

a('L_aux:')
tsx(4)
WDL = 92160
a(f'''s_and_b32 s3, s2, 7
s_lshl_b32 s3, s3, 3
s_bfe_u32 s64, s2, 0x30003
s_add_u32 s3, s3, s64
s_sub_u32 s{LW}, s{S_WAVE}, 4
v_lshrrev_b32 v1, 2, v0
v_and_b32 v18, 3, v0
v_mul_u32_u24 v12, 1280, v1
v_lshl_add_u32 v12, v18, 4, v12
s_lshl_b32 s67, s3, 5
s_sub_u32 s67, s67, 4
s_mul_i32 s67, s67, 1280
s_lshl_b32 s73, s{S_WAVE}, 6
s_add_u32 s67, s67, s73
v_add_u32 v13, s67, v12
v_add_u32 v14, {16*1280}, v13
v_add_u32 v15, {32*1280}, v13
v_and_b32 v6, 31, v0
s_lshl_b32 s72, s{S_WAVE}, 5
v_add_lshl_u32 v7, v6, s72, 3
v_lshlrev_b32 v8, 4, v0
v_lshlrev_b32 v9, 2, v0
v_add_u32 v3, {CNT}, v9
v_mov_b32 v4, 0
ds_write_b32 v3, v4
v_mov_b32 v196, {CNT}
v_mov_b32 v199, 1
s_mul_i32 s77, s{S_WAVE}, 4608
s_cmp_lt_u32 s{S_WAVE}, 4
s_cselect_b32 s76, 3, 2
s_waitcnt lgkmcnt(0)
s_load_dword s{S_TAG}, s[{P_WS}:{P_WS+1}], {EPOCH}''')
tsx(5)
if OPT['cpf']:
    a(f'''s_cmp_lg_u32 s{S_WAVE}, 7
    s_cbranch_scc1 L_nocpf
    s_getpc_b64 s[72:73]
    L_pc:
    s_sub_u32 s72, s72, L_pc - {NAME}_kernel
    s_subb_u32 s73, s73, 0
    s_and_b32 s64, s3, 7
    s_mul_i32 s64, s64, (L_end - {NAME}_kernel) >> 10
    v_min_u32 v3, ((L_end - {NAME}_kernel) >> 10) - 1, v0
    v_add_lshl_u32 v3, v3, s64, 7
    global_load_dword v39, v3, s[72:73]
    L_nocpf:''')
srd(a, S_A, P_K, 2048*1280); srd(a, S_B, P_V, 2048*1280); srd(a, S_C, P_SHK, 640*8)
for p in range(3):
    a(f's_mov_b32 s64, {p*2048}\nbuffer_load_dwordx2 v[{26+2*p}:{27+2*p}], v7, {sr(S_C)}, s64 offen')
for p in range(3):
    if p == 2: a(f's_cmp_ge_u32 s{S_WAVE}, 4\ns_cbranch_scc1 L_ax_no3')
    for i in range(3):
        if i == 2: a('s_mov_b64 exec, 0xffff')
        a(f's_add_u32 m0, s77, {p*8*4608 + i*1024 - p*512}\ns_nop 0')
        a(f'buffer_load_dwordx4 v{13+i}, {sr(S_A)}, 0 offen offset:{p*512}{NTK} lds')
        a(f's_add_u32 m0, s77, {p*8*4608 + 2304 + i*1024 - p*512}\ns_nop 0')
        a(f'buffer_load_dwordx4 v{13+i}, {sr(S_B)}, 0 offen offset:{p*512}{NTK} lds')
        if i == 2: a('s_mov_b64 exec, -1')
a('L_ax_no3:')
ts(1)
srd(a, S_WS, P_WS, WS_SIZE)
a(f'''v_bfe_u32 v36, v1, 1, 2
v_xor_b32 v36, v36, v18
v_lshlrev_b32 v36, 4, v36
v_lshl_add_u32 v36, v1, 6, v36
v_add_u32 v36, s77, v36
v_lshlrev_b32 v37, 12, v1
v_lshl_add_u32 v37, v18, 4, v37
v_lshlrev_b32 v38, 6, v1
v_lshl_add_u32 v38, v18, 3, v38
v_lshrrev_b32 v1, 5, v0
v_lshlrev_b32 v2, 10, v1
v_bfe_u32 v19, v0, 2, 2
v_lshl_add_u32 v2, v19, 6, v2
v_bfe_u32 v19, v0, 4, 1
v_lshl_add_u32 v2, v19, 5, v2
v_lshl_add_u32 v2, v18, 3, v2
v_add_u32 v2, s77, v2
v_sub_u32 v1, 1, v1
v_lshlrev_b32 v1, 1, v1
v_bfe_u32 v19, v6, 1, 2
v_xor_b32 v1, v1, v19
v_lshlrev_b32 v1, 4, v1
v_lshl_add_u32 v19, v6, 6, v1
v_add_u32 v35, s77, v19
v_xor_b32 v19, 16, v35
s_sub_u32 s78, 63, s3
s_lshl_b32 s78, s78, 6
s_add_u32 s78, s78, {UT}
s_lshl_b32 s67, s{S_WAVE}, 17
s_add_u32 s78, s78, s67
s_waitcnt lgkmcnt(0)
s_barrier''')
make_tag()
a(f's_cmp_lt_u32 s{S_WAVE}, 4\ns_cbranch_scc1 L_ax_w0\ns_waitcnt vmcnt(6)\ns_branch L_ax_w1\nL_ax_w0:\ns_waitcnt vmcnt(12)\nL_ax_w1:')
ts(2)
a('L_ax_loop:')
wreg = 26
for n in range(5): a(f'ds_read_b64_tr_b16 v[{40+2*n}:{41+2*n}], v2 offset:{256*n}')
for n in range(1, 5): a(f'ds_read_b64_tr_b16 v[{50+2*(n-1)}:{51+2*(n-1)}], v2 offset:{2304+256*n}')
a(f'v_alignbit_b32 v10, v26, v26, 16\nv_alignbit_b32 v11, v27, v27, 16\nv_mov_b32 v26, v28\nv_mov_b32 v27, v29\nv_mov_b32 v28, v30\nv_mov_b32 v29, v31')
wreg = 10
a('s_waitcnt lgkmcnt(4)')
for e in range(1, 10): a(f'v_alignbit_b32 v{57+e}, v{40+e}, v{40+e-1}, 16')
for e in range(8):
    a(f'v_dot2_f32_bf16 v{68+2*e}, v{57+e+1}, v{wreg+1}, 0')
    a(f'v_dot2_f32_bf16 v{69+2*e}, v{40+e+1}, v{wreg+1}, 0')
for e in range(8):
    a(f'v_dot2_f32_bf16 v{68+2*e}, v{57+e+2}, v{wreg}, v{68+2*e}')
    a(f'v_dot2_f32_bf16 v{69+2*e}, v{40+e+2}, v{wreg}, v{69+2*e}')
a('s_waitcnt lgkmcnt(0)')
for e in range(8):
    a(f'v_lshlrev_b32 v{40+e}, 16, v{50+e}')
    a(f'v_and_b32 v{58+e}, 0xffff0000, v{50+e}')
for e in range(8):
    a(f'v_mul_f32 v{68+2*e}, v{68+2*e}, v{40+e}')
    a(f'v_mul_f32 v{69+2*e}, v{69+2*e}, v{58+e}')
for o in range(8):
    e = 7 - o
    a(f'v_cvt_pk_bf16_f32 v{40+o}, v{69+2*e}, v{68+2*e}')
a(f'''ds_write_b128 v35, v[40:43]
ds_write_b128 v19, v[44:47]
s_waitcnt lgkmcnt(0)
ds_read_b128 v[48:51], v36
ds_read_b128 v[52:55], v36 offset:1024
s_add_u32 s67, s78, {16*4096}
v_add_u32 v2, {8*4608}, v2
v_add_u32 v35, {8*4608}, v35
v_add_u32 v19, {8*4608}, v19
v_add_u32 v36, {8*4608}, v36
s_waitcnt lgkmcnt(1)
buffer_store_dwordx4 v[48:51], v37, {sr(S_WS)}, s78 offen sc1
s_waitcnt lgkmcnt(0)
buffer_store_dwordx4 v[52:55], v37, {sr(S_WS)}, s67 offen sc1
s_add_u32 s78, s78, {256*4096}
s_sub_u32 s76, s76, 1
s_cmp_eq_u32 s76, 0
s_cbranch_scc1 L_ax_done
s_cmp_eq_u32 s76, 2
s_cbranch_scc1 L_ax_w9
s_waitcnt vmcnt(2)
s_branch L_ax_loop
L_ax_w9:
s_waitcnt vmcnt(8)
s_branch L_ax_loop
L_ax_done:''')
a(f'''s_waitcnt vmcnt(0)
s_mov_b64 exec, 1
ds_add_rtn_u32 v39, v196, v199 offset:{C_P}
s_mov_b64 exec, -1
s_waitcnt lgkmcnt(0)
v_readfirstlane_b32 s67, v39
s_lshl_b32 s72, s3, 7
s_add_u32 s72, s72, {F1 + 192*128}
s_cmp_lg_u32 s67, 7
s_cbranch_scc1 L_ax_nof1''')
flag_store(72, 1, 39)
a('L_ax_nof1:')
ts(3)
a(f's_cmp_lt_u32 s{S_WAVE}, 4\ns_cbranch_scc1 L_ax_c')
lds_wait(196, 197, C_P, 8, 2)
a(f'''s_lshl_b32 s67, s3, 2
s_add_u32 s67, s67, s{LW}
s_add_u32 s67, s67, 384
s_mov_b32 s68, {CVREG[0]}
s_cmp_eq_u32 s{LW}, 1
s_cselect_b32 s68, {CVREG[1]}, s68
s_cmp_eq_u32 s{LW}, 2
s_cselect_b32 s68, {CVREG[2]}, s68
s_cmp_eq_u32 s{LW}, 3
s_cselect_b32 s68, {CVREG[3]}, s68''')
conv_T()
conv_addr()
a('s_waitcnt vmcnt(0)')
conv_build()
lds_wait(196, 197, C_OK, 1, 2)
conv_uT()
a('s_branch L_conv_main')
a('L_ax_c:')
a(f'''s_and_b32 s64, s3, 7
s_lshl_b32 s64, s64, 2
s_add_u32 s64, s64, s{S_WAVE}        ; 0..31
s_lshr_b32 s65, s3, 3                ; x
s_cmp_lg_u32 s{S_WAVE}, 0
s_cbranch_scc1 L_ax_c1
v_lshlrev_b32 v15, 7, v0
v_add_u32 v16, {F1 + 0x2000}, v15
v_add_u32 v17, {F1 + 0x4000}, v15
v_add_u32 v18, {F1 + 0x6000}, v15
v_add_u32 v15, {F1}, v15''')
poll([18], 20, OPT['asl'], 72)
lds_add(196, 199, C_OK)
poll([15, 16, 17], 20, OPT['asl'], 72)
lds_add(196, 199, C_OKW)
a('L_ax_c1:')
if OPT['pfe']:
    srd(a, S_A, P_SSM, 640*4096)
    a(f's_mul_i32 s67, s65, {48*4096}\ns_mul_i32 s72, s64, 6144\ns_add_u32 s67, s67, s72\ns_add_u32 s72, s67, 3072')
    for i in range(6): a(f'buffer_load_dwordx4 v[60:63], v8, {sr(S_A)}, s{67 if i < 3 else 72} offen offset:{(i%3)*1024}')
lds_wait(196, 197, C_OKW, 1, 2)
ts(4)
if OPT['pfe']:
    a(f'''s_and_b32 s73, s65, 4
    s_mul_i32 s73, s73, {48*5120}
    s_mul_i32 s74, s64, 30720
    s_add_u32 s73, s73, s74
    s_add_u32 s73, s73, {WDP}''')
    for i in range(30):
        a(f'buffer_load_dwordx4 v[60:63], v8, {sr(S_WS)}, s73 offen offset:{(i%3)*1024} sc1')
        if i % 3 == 2: a('s_add_u32 s73, s73, 3072')
    a(f's_add_u32 s67, s67, {UT}\ns_add_u32 s72, s72, {UT}')
    for i in range(6): a(f'buffer_load_dwordx4 v[60:63], v8, {sr(S_WS)}, s{67 if i < 3 else 72} offen offset:{(i%3)*1024} sc1')
    a('s_waitcnt vmcnt(0)')
    ts(1)
g2_setup()
a(f'v_mov_b32 v173, {CNT}\nv_mov_b32 v175, 1')
lds_add(173, 175, C_H)
a(f's_mov_b32 s73, {WS_SIZE}\ns_branch L_g2')
a('L_end:\ns_endpgm')
print(wrap(a.text(), grid=256, block=512, lds=LDS_TOTAL, vgpr=256, accum=256))
```

```python
import sys
from asmlib import *

OPT = dict(ts=0, sta9=1, tsa=0, gsl=4, agg=1, xg=0, nt=7, osc=0, qnt=0, cpf=1, tsx=0, wpre=1, tb=1, peel=1, redi=1, hsl=2, pfit=1, bpre=0, tsg=0, rot2=1, prio=1, cprio=3, hpf=0, rf=3, lateb=0, ysig=5, fl=3, pfe=0, asl=12, nrot=5)
for x in sys.argv[1:]:
    k, v = x.split('='); OPT[k] = int(v)
TS = OPT['ts']

EPOCH = 0; SUMU = 0x400; SUMW = 0x800; F1 = 0x1000; F3 = 0xC000; F2 = 0x20000; GATE = 0x40000; DIAG = 0x80000
UT = 0x100000; Y2T = 0x380000; HB = 0x600000; WDP = 0xC00000; WS_SIZE = 0xE00000
STAGE = 49152
SPARE = 3 * STAGE
LDS_TOTAL = 163840
CS = 4160
TSZ = 4 * CS
CVSZ = TSZ + 4608
CVREG = [STAGE, STAGE + CVSZ, 2 * STAGE, 0]
Y2L = SPARE
CNT = SPARE + 10240
C_ST, C_H, C_P, C_OK, C_CV, C_OKW, C_P2 = 0, 4, 8, 12, 16, 20, 24
STA = 2 * STAGE
STB = 0
S_X, S_WG, S_WU, S_WS, S_A, S_B, S_C = 4, 8, 12, 16, 20, 24, 28
P_Q, P_K, P_V, P_SHK, P_SSM, P_SSMD, P_WG, P_WU, P_WD, P_GW, P_OUT, P_WS = 32, 34, 36, 38, 40, 42, 46, 48, 50, 52, 54, 58
S_WAVE, S_TAG, S_MT, S_NT = 60, 61, 62, 63
a = Asm()
NTK = ' nt' if OPT['nt'] & 1 else ''
NTW = ' nt' if OPT['nt'] & 2 else ''
NTS = ' nt' if OPT['nt'] & 4 else ''
NTG = ' nt' if OPT['nt'] & 8 else ''
NTX = ' nt' if OPT['nt'] & 16 else ''
def tsx(i):
    if OPT['tsx']: a(f's_memrealtime s[{80+2*i}:{81+2*i}]')
def ts(i):
    if OPT['tsx'] and i >= 4: return
    if TS == 1: a(f's_memrealtime s[{80+2*i}:{81+2*i}]')
    if TS == 2: a(f's_memtime s[{80+2*i}:{81+2*i}]')
def ts_dump():
    if not TS: return
    a('s_waitcnt lgkmcnt(0)')
    a(f's_lshl_b32 s64, s2, 3\ns_add_u32 s64, s64, s{S_WAVE}\ns_lshl_b32 s64, s64, 6\ns_add_u32 s64, s64, {DIAG}')
    for i in range(10): a(f'v_mov_b32 v{2+i}, s{80+2*i}')
    a('v_mov_b32 v1, 0\ns_mov_b64 exec, 1')
    a(f'buffer_store_dwordx4 v[2:5], v1, s[{S_WS}:{S_WS+3}], s64 offen')
    a(f'buffer_store_dwordx4 v[6:9], v1, s[{S_WS}:{S_WS+3}], s64 offen offset:16')
    a(f'buffer_store_dwordx2 v[10:11], v1, s[{S_WS}:{S_WS+3}], s64 offen offset:32')
def sr(s): return f's[{s}:{s+3}]'
def vr(v, n=4): return f'v[{v}:{v+n-1}]'

class Q:
    def __init__(self, name, cap): self.q = []; self.name = name; self.cap = cap
    def issue(self, tag, ins=None):
        if ins: a(ins)
        self.q.append(tag)
    def need(self, tags):
        if not isinstance(tags, set): tags = {tags}
        idx = max([i for i, t in enumerate(self.q) if t in tags], default=-1)
        if idx >= 0:
            n = len(self.q) - 1 - idx
            a(f's_waitcnt {self.name}({min(n, self.cap)})')
            self.q = self.q[idx+1:]
    def drain(self):
        a(f's_waitcnt {self.name}(0)'); self.q = []

def poll(addr_regs, tmp, slp=1, sc=64):
    L = a.label('L_poll'); D = a.label('L_pdone')
    a(f's_mov_b32 s{sc}, 0')
    a(f'{L}:')
    for i, r in enumerate(addr_regs):
        a(f'buffer_load_dword v{tmp+i}, v{r}, {sr(S_WS)}, 0 offen sc1')
    a('s_waitcnt vmcnt(0)')
    for i in range(len(addr_regs)): a(f'v_xor_b32 v{tmp+i}, s{S_TAG}, v{tmp+i}')
    for i in range(1, len(addr_regs)): a(f'v_or_b32 v{tmp}, v{tmp}, v{tmp+i}')
    a(f'''v_cmp_ne_u32 vcc, 0, v{tmp}
    s_add_u32 s{sc}, s{sc}, 1
    s_cmp_eq_u64 vcc, 0
    s_cbranch_scc1 {D}
    s_sleep {slp}
    s_cmp_lt_u32 s{sc}, 0x8000
    s_cbranch_scc1 {L}
    {D}:''')
def stamp(slot):
    if not OPT['tsa']: return
    a(f"""s_memrealtime s[100:101]
    s_waitcnt lgkmcnt(0)
    v_mov_b32 v62, s100
    v_mov_b32 v63, s72
    s_lshl_b32 s100, s2, 5
    s_add_u32 s100, s100, {DIAG + 0x60000 + slot*8}
    v_mov_b32 v198, 0
    s_mov_b64 exec, 1
    buffer_store_dwordx2 v[62:63], v198, {sr(S_WS)}, s100 offen
    s_mov_b64 exec, -1""")
def poll4(r, tmp, slp=1, sc=64):
    L = a.label('L_poll'); D = a.label('L_pdone')
    a(f"""s_mov_b32 s{sc}, 0
    {L}:
    buffer_load_dwordx4 {vr(tmp)}, v{r}, {sr(S_WS)}, 0 offen sc1
    s_waitcnt vmcnt(0)""")
    for i in range(4): a(f'v_xor_b32 v{tmp+i}, s{S_TAG}, v{tmp+i}')
    a(f"""v_or3_b32 v{tmp}, v{tmp}, v{tmp+1}, v{tmp+2}
    v_or_b32 v{tmp}, v{tmp}, v{tmp+3}
    v_cmp_ne_u32 vcc, 0, v{tmp}
    s_add_u32 s{sc}, s{sc}, 1
    s_cmp_eq_u64 vcc, 0
    s_cbranch_scc1 {D}
    s_sleep {slp}
    s_cmp_lt_u32 s{sc}, 0x8000
    s_cbranch_scc1 {L}
    {D}:""")
def packed_off(dst, idx, base, tmp):
    a(f"""s_lshr_b32 s{dst}, s{idx}, 3
    s_lshl_b32 s{dst}, s{dst}, 7
    s_and_b32 s{tmp}, s{idx}, 7
    s_lshl_b32 s{tmp}, s{tmp}, 2
    s_add_u32 s{dst}, s{dst}, s{tmp}
    s_add_u32 s{dst}, s{dst}, {base}""")
def packed_lane(dst, nlanes, base, first_line_sreg=None):
    a(f"""v_min_u32 v{dst}, {nlanes-1}, v0
    v_and_b32 v197, 1, v{dst}
    v_lshrrev_b32 v{dst}, 1, v{dst}
    v_lshlrev_b32 v{dst}, 7, v{dst}
    v_lshl_add_u32 v{dst}, v197, 4, v{dst}
    v_add_u32 v{dst}, {base}, v{dst}""")
def lds_wait(vaddr, vt, off, val, slp=0, s0=56, s1=57):
    L = a.label('L_lw')
    a(f'''s_mov_b32 s{s0}, 0
    {L}:
    ds_read_b32 v{vt}, v{vaddr} offset:{off}
    s_add_u32 s{s0}, s{s0}, 1
    s_waitcnt lgkmcnt(0)
    v_readfirstlane_b32 s{s1}, v{vt}
    s_cmp_ge_u32 s{s0}, 0x100000
    s_cselect_b32 s{s1}, {val}, s{s1}
    s_cmp_ge_u32 s{s1}, {val}''')
    if slp:
        D = a.label('L_lwd')
        a(f's_cbranch_scc1 {D}\ns_sleep {slp}\ns_branch {L}\n{D}:')
    else:
        a(f's_cbranch_scc0 {L}')
def lds_add(vaddr, vone, off, q=None):
    a('s_mov_b64 exec, 1')
    ins = f'ds_add_u32 v{vaddr}, v{vone} offset:{off}'
    if q: q.issue('sig', ins)
    else: a(ins)
    a('s_mov_b64 exec, -1')
def flag_store(soff_reg, vt0, vt1):
    a(f'''v_mov_b32 v{vt0}, s{S_TAG}
    v_mov_b32 v{vt1}, 0
    s_mov_b64 exec, 1
    buffer_store_dword v{vt0}, v{vt1}, {sr(S_WS)}, s{soff_reg} offen sc1
    s_mov_b64 exec, -1''')
def make_tag():
    a(f's_mul_i32 s{S_TAG}, s{S_TAG}, 1664525\ns_add_u32 s{S_TAG}, s{S_TAG}, 1013904223')
def g2_roles(sa, sj, sstart, sinc, t0):
    a(f'''s_and_b32 s{sa}, s2, 1
    s_lshl_b32 s{sa}, s{sa}, 4
    s_and_b32 s{t0}, s2, 2
    s_lshl_b32 s{t0}, s{t0}, 2
    s_add_u32 s{sa}, s{sa}, s{t0}
    s_bfe_u32 s{t0}, s2, 0x30003
    s_add_u32 s{sa}, s{sa}, s{t0}
    s_and_b32 s{sj}, s2, 4
    s_lshr_b32 s{sinc}, s2, 6
    s_add_u32 s{sj}, s{sj}, s{sinc}
    s_lshl_b32 s{sinc}, s{sinc}, 1
    s_add_u32 s{t0}, s{t0}, s{sinc}
    s_and_b32 s{sstart}, s{t0}, 3
    s_mul_i32 s{sstart}, s{sstart}, {3 if OPT['rot2'] else 0}
    s_bitcmp1_b32 s{t0}, 2
    s_cselect_b32 s{t0}, {2 if OPT['rot2'] else 0}, 0
    s_cselect_b32 s{sinc}, {11 if OPT['rot2'] else 1}, 1
    s_add_u32 s{sstart}, s{sstart}, s{t0}''')
def step12(cur, inc, tmp):
    a(f'''s_add_u32 s{cur}, s{cur}, s{inc}
    s_cmp_ge_u32 s{cur}, 12
    s_cselect_b32 s{tmp}, 12, 0
    s_sub_u32 s{cur}, s{cur}, s{tmp}''')
S_A2, S_J2, S_INC = 69, 70, 78
VL16, VL16B, VQO, VGO, VF2 = 4, 5, 3, 6, 7
def g2_setup():
    srd(a, S_A, P_OUT, 2048*1280)
    srd(a, S_X, P_Q, 2048*1280)
    g2_roles(S_A2, S_J2, 76, S_INC, 66)
    a(f'''s_mul_i32 s74, s{S_A2}, {48*4096}
    s_mul_i32 s66, s{S_WAVE}, {12*4096}
    s_add_u32 s74, s74, s66
    s_add_u32 s74, s74, {HB}
    s_mul_i32 s75, s{S_J2}, {48*5120}
    s_mul_i32 s66, s{S_WAVE}, {12*5120}
    s_add_u32 s75, s75, s66
    s_add_u32 s75, s75, {WDP}
    s_mov_b32 s77, s76
    v_and_b32 v1, 15, v0
    v_lshrrev_b32 v2, 4, v0
    s_lshl_b32 s66, s{S_A2}, 6
    s_lshl_b32 s67, s{S_WAVE}, 4
    s_add_u32 s66, s66, s67
    v_add_u32 v8, s66, v1
    v_mul_u32_u24 v{VQO}, 1280, v8
    v_lshl_add_u32 v{VQO}, v2, 3, v{VQO}
    s_mul_i32 s67, s{S_J2}, 160
    v_add_u32 v{VQO}, s67, v{VQO}
    v_lshrrev_b32 v9, 3, v8
    v_lshlrev_b32 v9, 7, v9
    v_and_b32 v8, 7, v8
    v_lshl_add_u32 v9, v8, 2, v9
    v_add_u32 v{VGO}, {GATE}, v9
    v_min_u32 v1, 5, v0
    v_lshlrev_b32 v1, 1, v1
    s_lshr_b32 s66, s{S_A2}, 1
    s_mul_i32 s66, s66, 12
    s_mul_i32 s67, s{S_WAVE}, 3
    s_add_u32 s66, s66, s67
    s_lshl_b32 s66, s66, 2
    s_and_b32 s67, s{S_A2}, 1
    s_add_u32 s66, s66, s67
    v_add_lshl_u32 v1, v1, s66, 7
    v_add_u32 v{VF2}, {F2}, v1
    v_lshlrev_b32 v{VL16}, 4, v0
    v_add_u32 v{VL16B}, 4096, v{VL16}''')

def pass_setup_loads(s_tt, s_pass, s_lds):
    a(f"""v_lshrrev_b32 v1, 2, v0
    v_and_b32 v18, 3, v0
    v_mul_u32_u24 v12, 1280, v1
    v_lshl_add_u32 v12, v18, 4, v12
    s_lshl_b32 s67, s{s_tt}, 5
    s_sub_u32 s67, s67, 4
    s_mul_i32 s67, s67, 1280
    s_lshl_b32 s73, s{s_pass}, 6
    s_add_u32 s67, s67, s73
    v_add_u32 v13, s67, v12
    v_add_u32 v14, {16*1280}, v13
    v_add_u32 v15, {32*1280}, v13
    v_and_b32 v16, 31, v0
    s_lshl_b32 s73, s{s_pass}, 5
    v_add_lshl_u32 v17, v16, s73, 3
    s_waitcnt lgkmcnt(0)
    s_load_dword s{S_TAG}, s[{P_WS}:{P_WS+1}], {EPOCH}""")
    srd(a, S_A, P_K, 2048*1280); srd(a, S_B, P_V, 2048*1280); srd(a, S_C, P_SHK, 640*8)
    a(f'buffer_load_dwordx2 v[10:11], v17, {sr(S_C)}, 0 offen')
    for i in range(3):
        if i == 2: a('s_mov_b64 exec, 0xffff')
        a(f's_add_u32 m0, s{s_lds}, {i*1024}\ns_nop 0')
        a(f'buffer_load_dwordx4 v{13+i}, {sr(S_A)}, 0 offen{NTK} lds')
        a(f's_add_u32 m0, s{s_lds}, {2304 + i*1024}\ns_nop 0')
        a(f'buffer_load_dwordx4 v{13+i}, {sr(S_B)}, 0 offen{NTK} lds')
        if i == 2: a('s_mov_b64 exec, -1')
def pass_addr(s_tt, s_pass, s_lds, s_ut):
    a(f"""v_lshrrev_b32 v25, 2, v0
    v_bfe_u32 v23, v25, 1, 2
    v_xor_b32 v23, v23, v18
    v_lshlrev_b32 v23, 4, v23
    v_lshl_add_u32 v23, v25, 6, v23
    v_add_u32 v23, s{s_lds}, v23
    v_lshlrev_b32 v24, 12, v25
    v_lshl_add_u32 v24, v18, 4, v24
    v_lshrrev_b32 v25, 5, v0
    v_lshlrev_b32 v20, 10, v25
    v_bfe_u32 v22, v0, 2, 2
    v_lshl_add_u32 v20, v22, 6, v20
    v_bfe_u32 v22, v0, 4, 1
    v_lshl_add_u32 v20, v22, 5, v20
    v_lshl_add_u32 v20, v18, 3, v20
    v_add_u32 v20, s{s_lds}, v20
    v_sub_u32 v25, 1, v25
    v_lshlrev_b32 v25, 1, v25
    v_bfe_u32 v22, v16, 1, 2
    v_xor_b32 v25, v25, v22
    v_lshlrev_b32 v25, 4, v25
    v_lshl_add_u32 v22, v16, 6, v25
    v_add_u32 v21, s{s_lds}, v22
    v_xor_b32 v22, 16, v21
    s_sub_u32 s{s_ut}, 63, s{s_tt}
    s_lshl_b32 s{s_ut}, s{s_ut}, 6
    s_add_u32 s{s_ut}, s{s_ut}, {UT}
    s_lshl_b32 s67, s{s_pass}, 17
    s_add_u32 s{s_ut}, s{s_ut}, s67""")
def pass_body(s_ut, s_tmp, B):
    P, V, Qr, K = B, B + 10, B + 17, B + 28
    for n in range(5): a(f'ds_read_b64_tr_b16 v[{P+2*n}:{P+1+2*n}], v20 offset:{256*n}')
    for n in range(1, 5): a(f'ds_read_b64_tr_b16 v[{V+2*(n-1)}:{V+1+2*(n-1)}], v20 offset:{2304+256*n}')
    a('v_alignbit_b32 v10, v10, v10, 16\nv_alignbit_b32 v11, v11, v11, 16\ns_waitcnt lgkmcnt(4)')
    for e in range(1, 10): a(f'v_alignbit_b32 v{Qr+e}, v{P+e}, v{P+e-1}, 16')
    for e in range(8):
        a(f'v_dot2_f32_bf16 v{K+2*e}, v{Qr+e+1}, v11, 0')
        a(f'v_dot2_f32_bf16 v{K+1+2*e}, v{P+e+1}, v11, 0')
    for e in range(8):
        a(f'v_dot2_f32_bf16 v{K+2*e}, v{Qr+e+2}, v10, v{K+2*e}')
        a(f'v_dot2_f32_bf16 v{K+1+2*e}, v{P+e+2}, v10, v{K+1+2*e}')
    a('s_waitcnt lgkmcnt(0)')
    for e in range(8):
        a(f'v_lshlrev_b32 v{P+e}, 16, v{V+e}')
        a(f'v_and_b32 v{Qr+1+e}, 0xffff0000, v{V+e}')
    for e in range(8):
        a(f'v_mul_f32 v{K+2*e}, v{K+2*e}, v{P+e}')
        a(f'v_mul_f32 v{K+1+2*e}, v{K+1+2*e}, v{Qr+1+e}')
    for o in range(8):
        e = 7 - o
        a(f'v_cvt_pk_bf16_f32 v{P+o}, v{K+1+2*e}, v{K+2*e}')
    a(f"""ds_write_b128 v21, {vr(P)}
    ds_write_b128 v22, {vr(P+4)}
    s_waitcnt lgkmcnt(0)
    ds_read_b128 {vr(P+8)}, v23
    ds_read_b128 {vr(P+12)}, v23 offset:1024
    s_add_u32 s{s_tmp}, s{s_ut}, {16*4096}
    s_waitcnt lgkmcnt(1)
    buffer_store_dwordx4 {vr(P+8)}, v24, {sr(S_WS)}, s{s_ut} offen sc1
    s_waitcnt lgkmcnt(0)
    buffer_store_dwordx4 {vr(P+12)}, v24, {sr(S_WS)}, s{s_tmp} offen sc1""")
def gate_math(GX, GW, G):
    for k in range(5):
        for i in range(4):
            a(f'v_dot2_f32_bf16 v{G+i}, v{GX+6*i+k}, v{GW+k}, ' + ('0' if k == 0 else f'v{G+i}'))
    a('s_nop 0')
    for sh in ('row_shr:1', 'row_shr:2', 'row_shr:4', 'row_shr:8'):
        for i in range(4): a(f'v_add_f32_dpp v{G+i}, v{G+i}, v{G+i} {sh} row_mask:0xf bank_mask:0xf bound_ctrl:0')
    for sh in ('row_bcast:15 row_mask:0xa', 'row_bcast:31 row_mask:0xc'):
        for i in range(4): a(f'v_add_f32_dpp v{G+i}, v{G+i}, v{G+i} {sh} bank_mask:0xf')
    for op in ('v_cvt_pk_bf16_f32 v{0}, v{0}, v{0}', 'v_and_b32 v{0}, 0xffff0000, v{0}', 'v_mul_f32 v{0}, 0xbfb8aa3b, v{0}', 'v_exp_f32 v{0}, v{0}',
               'v_add_f32 v{0}, 1.0, v{0}', 'v_rcp_f32 v{0}, v{0}', 'v_cvt_pk_bf16_f32 v{0}, v{0}, v{0}', 'v_and_b32 v{0}, 0xffff0000, v{0}'):
        for i in range(4): a(op.format(G + i))
a(f'''s_cmp_ge_u32 s2, 256
s_cbranch_scc1 L_end
s_load_dwordx16 s[32:47], s[0:1], 0
s_load_dwordx8 s[48:55], s[0:1], 64
s_load_dwordx2 s[58:59], s[0:1], 104''')
ts(0)
a(f'''v_lshrrev_b32 v1, 6, v0
v_and_b32 v0, 63, v0
s_and_b32 s{S_MT}, s2, 1
s_lshl_b32 s{S_MT}, s{S_MT}, 3
v_readfirstlane_b32 s{S_WAVE}, v1
s_bfe_u32 s64, s2, 0x30003
s_add_u32 s{S_MT}, s{S_MT}, s64
s_bfe_u32 s{S_NT}, s2, 0x20001
s_mul_i32 s{S_NT}, s{S_NT}, 3
s_lshr_b32 s64, s2, 6
s_add_u32 s{S_NT}, s{S_NT}, s64
s_cmp_ge_u32 s2, 192
s_cbranch_scc1 L_aux
{'s_endpgm' if OPT['xg'] else ''}
s_cmp_ge_u32 s{S_WAVE}, 4
s_cbranch_scc1 L_loader''')

ACC = 128; XF = [96, 112]; WF = 64; XA = [58, 59]; WA = [60, 61]
def acc1(mat, b, mb): return ACC + 4 * ((mat * 4 + b) * 4 + mb)
a(f'''s_and_b32 s64, s2, 7
s_mul_i32 s64, s64, 24
s_lshr_b32 s65, s2, 3
s_add_u32 s64, s64, s65
s_mul_i32 s76, s64, 21846
s_lshr_b32 s76, s76, 16
s_mul_i32 s65, s76, 3
s_sub_u32 s65, s64, s65
s_lshl_b32 s77, s65, 2
s_add_u32 s77, s77, s{S_WAVE}
s_add_u32 s77, s77, 8
s_mul_i32 s78, s{S_WAVE}, 4608
s_add_u32 s78, s78, {2*STAGE}
''')
packed_off(79, 2, F1, 65)
pass_setup_loads(76, 77, 78)
if OPT['bpre']: a('s_barrier')
srd(a, S_WS, P_WS, WS_SIZE)
pass_addr(76, 77, 78, 44)
a(f'''s_and_b32 s64, s{S_WAVE}, 1        ; wm
s_lshr_b32 s65, s{S_WAVE}, 1        ; wn
v_and_b32 v1, 15, v0
s_lshl_b32 s66, s64, 6
v_add_u32 v1, s66, v1
v_lshrrev_b32 v2, 4, v0
v_bfe_u32 v3, v1, 1, 3
v_lshlrev_b32 v1, 7, v1
v_xor_b32 v4, v2, v3
v_lshl_add_u32 v{XA[0]}, v4, 4, v1
v_xor_b32 v4, 4, v4
v_lshl_add_u32 v{XA[1]}, v4, 4, v1
v_lshlrev_b32 v5, 11, v2
v_bfe_u32 v7, v0, 2, 2
v_lshl_add_u32 v5, v7, 6, v5
v_and_b32 v8, 3, v0
v_lshl_add_u32 v5, v8, 3, v5
s_lshl_b32 s66, s65, 9
s_add_u32 s66, s66, 16384
v_add_u32 v5, s66, v5
v_and_b32 v4, 1, v2
v_lshl_add_u32 v{WA[0]}, v4, 5, v5
v_xor_b32 v{WA[1]}, 32, v{WA[0]}''')
for i in range(128): a(f'v_mov_b32 v{ACC+i}, 0')
a(f'''s_lshl_b32 s66, s{S_MT}, 1
s_add_u32 s66, s66, s64
s_mul_i32 s66, s66, 48
s_lshl_b32 s67, s{S_NT}, 2
s_add_u32 s66, s66, s67
s_lshl_b32 s67, s65, 1
s_add_u32 s66, s66, s67
s_lshl_b32 s66, s66, 12
s_add_u32 s71, s66, {HB}
s_add_u32 s72, s71, 4096
s_mul_i32 s66, s{S_MT}, 12
s_add_u32 s66, s66, s{S_NT}
s_lshl_b32 s66, s66, 2
s_add_u32 s66, s66, s{S_WAVE}
s_lshl_b32 s66, s66, 7
s_add_u32 s73, s66, {F2}''')
g2_setup()
a('s_waitcnt lgkmcnt(0)')
make_tag()
a('s_waitcnt vmcnt(0)')
pass_body(44, 45, 64)
ts(1)
def rdX(st, fs, mb): return (f'X{mb}{fs}', f'ds_read_b128 {vr(XF[fs]+4*mb)}, v{XA[st]} offset:{mb*2048}')
def rdW(st, w):
    mat, b = w // 4, w % 4
    o = st * 8192 + mat * 16384 + (b >> 1) * 256
    return [(f'W{w}', f'ds_read_b64_tr_b16 {vr(WF+4*w,2)}, v{WA[b & 1]} offset:{o}'),
            (f'W{w}', f'ds_read_b64_tr_b16 {vr(WF+4*w+2,2)}, v{WA[b & 1]} offset:{o+1024}')]
WORD = [0, 4, 1, 5, 2, 6, 3, 7]
if OPT['cprio']: a(f's_setprio {OPT["cprio"]}')
a('s_barrier')
ts(3)
lq = Q('lgkmcnt', 15)
init = [rdX(0, 0, 0)] + rdW(0, WORD[0]) + [rdX(0, 0, m) for m in (1, 2, 3)]
for w in WORD[1:]: init += rdW(0, w)
for tag, ins in init: lq.issue(tag, ins)
a(f's_mov_b32 s64, 0\ns_mov_b32 s65, 0\ns_mov_b32 s67, {-2*STAGE & 0xffffffff}\ns_mov_b32 s68, {STAGE}')
def hprod(b, mb, dst):
    g = acc1(0, b, mb); u = acc1(1, b, mb)
    r = [f'v_mul_f32 v{g+i}, v{g+i}, v{u+i}' for i in range(4)]
    return r + [f'v_cvt_pk_bf16_f32 v{dst}, v{g}, v{g+1}', f'v_cvt_pk_bf16_f32 v{dst+1}, v{g+2}, v{g+3}']
def h_out(p, mb):
    d = 16 + 16 * p + 4 * mb
    return hprod(2 * p, mb, d) + hprod(2 * p + 1, mb, d + 2) + [f'buffer_store_dwordx4 {vr(d)}, v{VL16}, {sr(S_WS)}, s{71+p} offen offset:{mb*1024} sc1']
def g1_half(st, last):
    pend = []; extra = []
    for wi, w in enumerate(WORD):
        for mb in range(4):
            lq.need({f'W{w}', f'X{mb}{st}'})
            acc = acc1(w // 4, w % 4, mb)
            a(f'v_mfma_f32_16x16x32_bf16 {vr(acc)}, {vr(WF+4*w)}, {vr(XF[st]+4*mb)}, {vr(acc)}')
            n = wi * 4 + mb
            if st == 0:
                if n == 0: pend += [rdX(1, 1, m) for m in range(4)]
                if mb == 3: pend += rdW(1, w)
            elif last:
                if n == 21:
                    for m in range(4): extra += h_out(0, m)
                for _ in range(3):
                    if extra: a(extra.pop(0))
            else:
                if n == 0:
                    a(f's_cmp_lg_u32 s64, {OPT["pfit"]}\ns_cbranch_scc1 L_g1_nw\ns_waitcnt vmcnt(0)\nL_g1_nw:')
                if n == 21:
                    a(f's_lshl_b32 s66, s{S_WAVE}, 4\ns_add_u32 s66, s66, s64\ns_cmp_lg_u32 s66, {OPT["pfit"]}\ns_cbranch_scc1 L_g1_nf')
                    flag_store(79, 1, 2)
                    stamp(3)
                    a('L_g1_nf:')
                if n == 1:
                    a('s_add_u32 s65, s65, 1\ns_cmp_eq_u32 s65, 3\ns_cselect_b32 s66, s67, s68\ns_cselect_b32 s65, 0, s65')
                if n in (2, 3, 4, 5):
                    r = (XA + WA)[n - 2]
                    a(f'v_add_u32 v{r}, s66, v{r}')
                if n == 7:
                    lq.drain(); a('s_barrier')
                    pend += [rdX(0, 0, 0)] + rdW(0, WORD[0]) + [rdX(0, 0, m) for m in (1, 2, 3)] + rdW(0, WORD[1])
                if n > 7 and mb == 3: pend += rdW(0, w)
            if pend and not (st == 1 and n < 7):
                tag, ins = pend.pop(0); lq.issue(tag, ins)
    for tag, ins in pend: lq.issue(tag, ins)
    for e in extra: a(e)
a('.p2align 3\nL_g1_loop:')
g1_half(0, False)
if OPT['peel']:
    qsave = list(lq.q)
    a('s_cmp_eq_u32 s64, 9\ns_cbranch_scc1 L_g1_last')
g1_half(1, False)
a('s_add_u32 s64, s64, 1\ns_cmp_lt_u32 s64, 10\ns_cbranch_scc1 L_g1_loop')
if OPT['peel']:
    a('L_g1_last:')
    lq.q = qsave
    g1_half(1, True)
    ts(4)
    for mb in range(4):
        for e in h_out(1, mb): a(e)
else:
    ts(4)
    a('s_waitcnt lgkmcnt(0)\ns_nop 4')
    for p in range(2):
        for mb in range(4):
            for e in h_out(p, mb): a(e)
DH = 4
WR = 8; WT = 88; HR = 108; ACC2 = 176
a(f'v_mov_b32 v173, {CNT}\nv_mov_b32 v175, 1')
lds_add(173, 175, C_H)
lds_wait(173, 1, C_OK, 1, 1)
a('L_g2:')
ts(2)
a(f'''s_mul_i32 s66, s{S_WAVE}, 10240
v_add_u32 v172, s66, v{VL16}
v_add_u32 v174, {STA}, v172''')
vq = Q('vmcnt', 63)
def ld_wd(s):
    r = WR + 20 * (s % 4)
    a(f's_mul_i32 s79, s77, 5120\ns_add_u32 s79, s79, s75')
    for _ in range(5 if s == 3 else 1): step12(77, S_INC, 66)
    for db in range(4): vq.issue(('w', s), f'buffer_load_dwordx4 {vr(r+4*db)}, v{VL16}, {sr(S_WS)}, s79 offen offset:{db*1024} sc1')
    vq.issue(('w', s), f'buffer_load_dwordx4 {vr(r+16)}, v{VL16B}, {sr(S_WS)}, s79 offen sc1')
def ld_h(s):
    r = HR + 16 * (s % DH)
    a(f's_lshl_b32 s79, s76, 12\ns_add_u32 s79, s79, s74')
    step12(76, S_INC, 66)
    for mb in range(4): vq.issue(('h', s), f'buffer_load_dwordx4 {vr(r+4*mb)}, v{VL16}, {sr(S_WS)}, s79 offen offset:{mb*1024} sc1')
for s in range(OPT['wpre']): ld_wd(s)
for i in range(80): a(f'v_mov_b32 v{ACC2+i}, 0')
a(f's_waitcnt vmcnt({5*OPT["wpre"]})')
flag_store(73, 1, 2)
if OPT['cprio']: a('s_setprio 0')
ts(5)
for s in range(OPT['wpre'], 4): ld_wd(s)
if OPT['tsg']: a('s_waitcnt vmcnt(0)\ns_memrealtime s[100:101]\ns_waitcnt lgkmcnt(0)\nv_writelane_b32 v175, s100, 12')
poll([VF2], 1, OPT['hsl'])
if OPT['tsg']: a('v_writelane_b32 v175, s64, 13')
vq.q = []
ts(7)
if OPT['hpf']:
    a(f'''v_min_u32 v1, 47, v0
    s_and_b32 s66, s{S_J2}, 3
    s_mul_i32 s66, s66, {96*128}
    v_lshl_add_u32 v1, v1, 7, s66''')
    vq.issue('pf', f'buffer_load_dword v2, v1, {sr(S_WS)}, s74 offen sc1')
    a(f'v_add_u32 v1, {48*128}, v1')
    vq.issue('pf', f'buffer_load_dword v2, v1, {sr(S_WS)}, s74 offen sc1')
for s in range(DH): ld_h(s)
def rd_st(s, db):
    base = 174 if s < 6 else 172
    return f'ds_read_b128 {vr(WT+4*db)}, v{base} offset:{(s & 1) * 5120 + db*1024}'
lq = Q('lgkmcnt', 15)
def sig():
    a('v_mov_b32 v1, 1'); lds_add(173, 1, C_H, lq)
sig()
QR = HR
def red_write(db):
    for o in range(4):
        t = db * 4 + o
        a(f'ds_write_b128 v{174 if t < 10 else 172}, {vr(ACC2+4*t)} offset:{(t % 10)*1024}')
for s in range(12):
    vq.need({('h', s), ('w', s)})
    if OPT['tsg']: a(f's_memrealtime s[100:101]\ns_waitcnt lgkmcnt(0)\nv_writelane_b32 v175, s100, {s}')
    r = HR + 16 * (s % DH); w = WT if 4 <= s < 8 else WR + 20 * (s % 4)
    if s == 3:
        lds_wait(173, 1, C_ST, 1); lq.q = []
        for db in range(5): lq.issue(('t', 4, db), rd_st(4, db))
    for db in range(5):
        if 4 <= s < 8: lq.need(('t', s, db))
        for mb in range(4):
            acc = ACC2 + 4 * (db * 4 + mb)
            a(f'v_mfma_f32_16x16x32_bf16 {vr(acc)}, {vr(w+4*db)}, {vr(r+4*mb)}, {vr(acc)}')
        if s == 11 and OPT['redi'] and db >= 1:
            if db == 1: a('s_nop 1')
            red_write(db - 1)
        if s == 5 and db == 0:
            lds_wait(173, 1, C_ST, 2); lq.q = []
        if 4 <= s < 7: lq.issue(('t', s + 1, db), rd_st(s + 1, db))
    if s + DH < 12: ld_h(s + DH)
    if 0 <= s - OPT['rf'] < 4: ld_wd(s - OPT['rf'] + 8)
    if s == OPT['ysig']: sig()
    if s == 8:
        vq.issue('q', f'buffer_load_dword v{QR+10}, v{VGO}, {sr(S_WS)}, 0 offen sc1')
        for db in range(5): vq.issue('q', f'buffer_load_dwordx2 {vr(QR+2*db,2)}, v{VQO}, {sr(S_X)}, 0 offen offset:{32*db}' + (' nt' if OPT['qnt'] else ''))
ts(8)
if OPT['redi']:
    a(f's_lshl_b32 s66, s{S_WAVE}, 10\nv_add_u32 v88, s66, v{VL16}\nv_add_u32 v89, {STA}, v88')
    a(f's_mov_b32 s66, {STA + 8192}\ns_cmp_lt_u32 s{S_WAVE}, 2\ns_cselect_b32 s66, s66, {-2048 & 0xffffffff}\nv_add_u32 v90, s66, v88')
    red_write(4)
else:
    a('s_nop 7')
    for w in range(4):
        L = a.label('L_red')
        a(f's_cmp_lg_u32 s{S_WAVE}, {w}\ns_cbranch_scc1 {L}')
        for k in range(3):
            o = (w + 1 + k) & 3
            for db in range(5):
                a(f'ds_write_b128 v{174 if k < 2 else 172}, {vr(ACC2+4*(db*4+o))} offset:{(k & 1)*5120 + db*1024}')
        for db in range(5):
            for i in range(4): a(f'v_mov_b32 v{8+4*db+i}, v{ACC2+4*(db*4+w)+i}')
        for k in range(3):
            sw = (w - 1 - k) & 3
            a(f'v_add_u32 v{88+k}, {(STA if k < 2 else STB) + sw*10240 + (k & 1)*5120}, v{VL16}')
        a(f'{L}:')
a(f'''v_lshrrev_b32 v2, 2, v0
v_bfe_u32 v1, v2, 1, 2
v_xor_b32 v1, s{S_WAVE}, v1
v_lshlrev_b32 v1, 5, v1
v_lshl_add_u32 v2, v2, 7, v1
v_and_b32 v1, 3, v0
v_lshl_add_u32 v2, v1, 3, v2
v_add_u32 v2, {Y2L}, v2
s_waitcnt vmcnt(0)
v_sub_f32 v{QR+11}, 1.0, v{QR+10}
s_waitcnt lgkmcnt(0)
s_barrier''')
ts(6)
YR = 92
for db in range(5): a(f'ds_read_b64_tr_b16 {vr(YR+2*db,2)}, v2 offset:{db*2048}')
if OPT['redi']:
    for k in range(4):
        for db in range(5):
            base, off = (89, db*4096) if db < 2 else (90, 0) if db == 2 else (88, (4*db-10)*1024)
            a(f'ds_read_b128 {vr(8+20*k+4*db)}, v{base} offset:{off + k*10240}')
    a('s_waitcnt lgkmcnt(15)')
else:
    for k in range(3):
        for db in range(5): a(f'ds_read_b128 {vr(28+20*k+4*db)}, v{88+k} offset:{db*1024}')
    a('s_waitcnt lgkmcnt(15)')
PR = 132
for db in range(5):
    for h in range(2):
        q = QR + 2*db + h; y = YR + 2*db + h; p = PR + 4*db + 2*h
        a(f'''v_lshlrev_b32 v124, 16, v{q}
        v_and_b32 v125, 0xffff0000, v{q}
        v_lshlrev_b32 v126, 16, v{y}
        v_and_b32 v127, 0xffff0000, v{y}
        v_mul_f32 v124, v124, v126
        v_mul_f32 v125, v125, v127
        v_mul_f32 v{p}, v{QR+10}, v124
        v_mul_f32 v{p+1}, v{QR+10}, v125''')
for k in range(3):
    a(f's_waitcnt lgkmcnt({10-5*k})')
    for i in range(20): a(f'v_add_f32 v{8+i}, v{8+i}, v{28+20*k+i}')
for db in range(5):
    for i in range(4): a(f'v_fma_f32 v{PR+4*db+i}, v{QR+11}, v{8+4*db+i}, v{PR+4*db+i}')
    a(f'v_cvt_pk_bf16_f32 v{152+2*db}, v{PR+4*db}, v{PR+1+4*db}\nv_cvt_pk_bf16_f32 v{153+2*db}, v{PR+2+4*db}, v{PR+3+4*db}')
    a(f'buffer_store_dwordx2 {vr(152+2*db,2)}, v{VQO}, {sr(S_A)}, 0 offen offset:{32*db}' + ['', ' sc1', ' nt', ' sc1 nt'][OPT['osc']])
ts(9)
if OPT['tsg']:
    a(f's_lshl_b32 s64, s2, 2\ns_add_u32 s64, s64, s{S_WAVE}\ns_lshl_b32 s64, s64, 6\ns_add_u32 s64, s64, {DIAG + 0x30000}\nv_lshlrev_b32 v1, 2, v0\ns_mov_b64 exec, 0xffff')
    a(f'buffer_store_dword v175, v1, {sr(S_WS)}, s64 offen\ns_mov_b64 exec, -1')
ts_dump()
a('s_endpgm')

LW = 66
CACC = 32; CA = [64, 128]; CB = [96, 160]
def conv_T():
    srd(a, S_A, P_SSM, 640*4096)
    srd(a, S_B, P_SSMD, 1280)
    a(f's_lshl_b32 s69, s67, 12\ns_add_u32 s70, s68, {TSZ}\nv_lshlrev_b32 v10, 4, v0')
    for phi in (0, 2):
        a(f's_add_u32 s71, s69, {2*phi}')
        a(f's_add_u32 m0, s68, {phi*CS + 32}\ns_nop 0')
        for i in range(4): a(f'buffer_load_dwordx4 v10, {sr(S_A)}, s71 offen offset:{i*1024}{NTS} lds')
    a(f'''v_lshrrev_b32 v1, 4, v0
    v_and_b32 v2, 15, v0
    v_add3_u32 v3, v1, v2, -16
    v_lshlrev_b32 v4, 1, v3
    v_add_u32 v4, s69, v4
    v_cmp_gt_i32 vcc, 0, v3
    s_lshl_b32 s71, s67, 1
    v_mov_b32 v7, s71
    v_cndmask_b32 v4, v4, -1, vcc
    buffer_load_ushort v5, v4, {sr(S_A)}, 0 offen
    buffer_load_ushort v7, v7, {sr(S_B)}, 0 offen''')
def conv_uT():
    a(f's_add_u32 s71, s69, {UT}\ns_mov_b32 m0, s70\ns_nop 0')
    for i in range(4): a(f'buffer_load_dwordx4 v10, {sr(S_WS)}, s71 offen offset:{i*1024} sc1 lds')
def conv_addr():
    a(f'''v_mul_u32_u24 v8, {CS}, v1
    v_add_u32 v8, s68, v8
    v_lshl_add_u32 v9, v2, 1, v8
    v_add_u32 v11, s68, v10
    v_mov_b32 v12, 0
    v_mov_b32 v13, 0
    v_lshl_add_u32 v14, v0, 3, s70
    ds_write_b64 v14, v[12:13] offset:4096
    v_add_u32 v3, 1, v2
    v_and_b32 v4, 3, v3
    v_sub_u32 v3, v3, v4
    v_lshl_add_u32 v3, v1, 3, v3
    v_mul_u32_u24 v4, {CS}, v4
    v_lshl_add_u32 v20, v3, 1, v4
    v_add_u32 v20, s68, v20
    v_lshlrev_b32 v3, 4, v1
    v_lshlrev_b32 v4, 5, v2
    v_sub_u32 v3, v3, v4
    v_add_u32 v3, {2*(2032-1792)}, v3
    v_add_u32 v21, s70, v3''')
    for i in range(32): a(f'v_mov_b32 v{CACC+i}, 0')
def conv_build():
    for i in range(4):
        b = 64 + 16 * i
        a(f'''ds_read_b128 {vr(b)}, v11 offset:{32 + i*1024}
        ds_read_b128 {vr(b+4)}, v11 offset:{2*CS + 32 + i*1024}
        ds_read_b64 {vr(b+10,2)}, v11 offset:{32 + i*1024 + 16}''')
    a('ds_write_b16 v9, v5\nv_lshlrev_b32 v7, 16, v7')
    for i in range(4):
        b = 64 + 16 * i
        a(f's_waitcnt lgkmcnt({min(15, 3*(3-i) + 1 + 2*i)})')
        for k in range(4): a(f'v_alignbit_b32 v{b+12+k}, v{b+4+k}, v{b+k}, 16')
        C = [b+2, b+3, b+10, b+11]
        for k in range(4): a(f'v_alignbit_b32 v{b+4+k}, v{C[k]}, v{b+4+k}, 16')
        a(f'ds_write_b128 v11, {vr(b+12)} offset:{CS + 32 + i*1024}\nds_write_b128 v11, {vr(b+4)} offset:{3*CS + 32 + i*1024}')

a('L_loader:')
tsx(4)
a(f'''s_sub_u32 s{LW}, s{S_WAVE}, 4
v_lshrrev_b32 v3, 3, v0
s_lshl_b32 s67, s{LW}, 5
s_lshl_b32 s68, s{S_MT}, 7
s_add_u32 s67, s67, s68
v_bfe_u32 v4, v3, 1, 3
v_and_b32 v5, 7, v0
v_xor_b32 v4, v4, v5
v_add_u32 v3, s67, v3
v_mul_u32_u24 v3, 1280, v3
v_lshl_add_u32 v200, v4, 4, v3
v_xor_b32 v4, 4, v4
v_lshl_add_u32 v201, v4, 4, v3
v_add_u32 v201, {8*1280}, v201
v_add_u32 v202, {16*1280}, v200
v_add_u32 v203, {16*1280}, v201
v_bfe_u32 v3, v0, 2, 2
s_lshl_b32 s67, s{LW}, 4
v_add_u32 v3, s67, v3
v_mul_u32_u24 v3, 3072, v3
v_lshrrev_b32 v4, 4, v0
v_lshl_add_u32 v3, v4, 6, v3
v_and_b32 v4, 3, v0
v_lshl_add_u32 v3, v4, 4, v3
s_lshl_b32 s67, s{S_NT}, 8
v_add_u32 v204, s67, v3
v_add_u32 v205, {4*3072}, v204
v_xor_b32 v206, 32, v204
v_add_u32 v206, {8*3072}, v206
v_add_u32 v207, {4*3072}, v206
s_add_u32 s68, s{S_MT}, s{S_NT}
s_mul_i32 s69, s68, 6554
s_lshr_b32 s69, s69, 16
s_mul_i32 s69, s69, 10
s_sub_u32 s68, s68, s69''')
if OPT['nrot'] >= 100:
    cm, cn = (OPT['nrot'] // 10) % 10, OPT['nrot'] % 10
    a(f's_mul_i32 s68, s{S_MT}, {cm}\ns_mul_i32 s69, s{S_NT}, {cn}\ns_add_u32 s68, s68, s69\ns_mul_i32 s69, s68, 13108\ns_lshr_b32 s69, s69, 16\ns_mul_i32 s69, s69, 5\ns_sub_u32 s68, s68, s69\ns_lshl_b32 s68, s68, 1')
if OPT['nrot'] == 1: a('s_mov_b32 s68, 0')
if OPT['nrot'] == 2: a('s_and_b32 s68, s68, 1\ns_mul_i32 s68, s68, 5')
if OPT['nrot'] == 5: a('s_and_b32 s68, s68, 14')
if OPT['nrot'] == 3: a('s_mul_i32 s69, s68, 86\ns_lshr_b32 s69, s69, 8\ns_mul_i32 s69, s69, 3\ns_sub_u32 s68, s68, s69\ns_mul_i32 s68, s68, 3')
a(f'''s_lshl_b32 s69, s{LW}, 12
s_mov_b32 s71, 0
s_waitcnt lgkmcnt(0)
s_load_dword s{S_TAG}, s[{P_WS}:{P_WS+1}], {EPOCH}''')
tsx(5)
srd(a, S_X, P_Q, 2048*1280)
srd(a, S_WG, P_WG, 640*3072)
srd(a, S_WU, P_WU, 640*3072)
if OPT['bpre']: a('s_barrier')
def g1_issue():
    a(f's_lshl_b32 s72, s68, 7\ns_mul_i32 s73, s68, {64*3072}\ns_add_u32 s74, s71, s69')
    for j in range(4):
        a(f's_add_u32 m0, s74, {j*1024}\n' + ('s_add_u32 s68, s68, 1' if j == 0 else 's_nop 0'))
        a(f'buffer_load_dwordx4 v{200+j}, {sr(S_X)}, s72 offen{NTX} lds')
    for n in range(4):
        a(f's_add_u32 m0, s74, {16384 + n*1024}\ns_nop 0')
        a(f'buffer_load_dwordx4 v{204+n}, {sr(S_WG)}, s73 offen{NTG} lds')
        a(f's_add_u32 m0, s74, {32768 + n*1024}\ns_nop 0')
        a(f'buffer_load_dwordx4 v{204+n}, {sr(S_WU)}, s73 offen{NTG} lds')
    a(f'''s_cmp_ge_u32 s68, 10
    s_cselect_b32 s68, 0, s68
    s_add_u32 s71, s71, {STAGE}
    s_cmp_eq_u32 s71, {3*STAGE}
    s_cselect_b32 s71, 0, s71''')
tsx(6)
g1_issue()
tsx(7)
srd(a, S_WS, P_WS, WS_SIZE)
a(f'''v_lshlrev_b32 v15, 7, v0
v_add_u32 v16, {F1 + 0x2000}, v15
v_add_u32 v17, {F1 + 0x4000}, v15
v_add_u32 v18, {F1 + 0x6000}, v15
v_add_u32 v19, {F1 + 0x8000}, v15
v_add_u32 v15, {F1}, v15
v_lshl_add_u32 v3, v0, 2, 0
v_add_u32 v3, {CNT}, v3
v_mov_b32 v4, 0
ds_write_b32 v3, v4
v_mov_b32 v196, {CNT}
v_mov_b32 v199, 1
s_waitcnt lgkmcnt(0)''')
make_tag()
g1_issue()
a('s_mov_b32 s76, 0')
ts(1)
a('L_ld_loop:\ns_waitcnt vmcnt(12)')
a('s_barrier')
if TS == 1: a('s_memrealtime s[100:101]\ns_waitcnt lgkmcnt(0)\ns_mov_b32 m0, s76\ns_nop 0\nv_writelane_b32 v220, s100, m0')
g1_issue()
a('s_add_u32 s76, s76, 1\ns_cmp_lt_u32 s76, 8\ns_cbranch_scc1 L_ld_loop')
assert OPT['fl'] + 2 <= 7
a(f'''s_and_b32 s64, s2, 7
s_lshl_b32 s64, s64, 7
v_and_b32 v15, 1, v0
v_lshlrev_b32 v15, 10, v15
v_add_u32 v15, s64, v15
v_add_u32 v15, {SUMU}, v15
buffer_load_dword v222, v15, {sr(S_WS)}, 0 offen sc1
s_waitcnt vmcnt(13)
s_barrier''')
ts(2)
if TS == 1:
    a(f's_lshl_b32 s64, s2, 2\ns_add_u32 s64, s64, s{LW}\ns_lshl_b32 s64, s64, 6\ns_add_u32 s64, s64, {DIAG + 0x20000}\nv_lshlrev_b32 v1, 2, v0\ns_mov_b64 exec, 0xff')
    a(f'buffer_store_dword v220, v1, {sr(S_WS)}, s64 offen\ns_mov_b64 exec, -1')
NT_ = 1 if TS == 1 else 0
a(f's_cmp_ge_u32 s{LW}, 2\ns_cbranch_scc1 L_ld67')
a(f'''s_and_b32 s67, s2, 7
s_mul_i32 s67, s67, 24
s_lshr_b32 s68, s2, 3
s_add_u32 s67, s67, s68
s_lshl_b32 s67, s67, 1
s_add_u32 s67, s67, s{LW}
s_mul_i32 s68, s{LW}, {CVSZ}
s_add_u32 s68, s68, {CVREG[0]}''')
conv_T()
conv_addr()
a(f's_waitcnt vmcnt({11 + NT_})\ns_barrier')
ts(5)
lds_wait(196, 197, C_OK, 1, 1)
conv_uT()
ts(4)
a('s_waitcnt vmcnt(4)')
conv_build()
a('L_conv_main:\ns_waitcnt vmcnt(0)')
ts(6)
a(f's_setprio {OPT["prio"]}')
def conv_reads(fs):
    r = []
    def A(k): return [(f'A{k}{fs}', f'ds_read_b64 {vr(CA[fs]+4*k,2)}, v20 offset:{k*512}'), (f'A{k}{fs}', f'ds_read_b64 {vr(CA[fs]+4*k+2,2)}, v20 offset:{k*512+8}')]
    def B(d): return [(f'B{d}{fs}', f'ds_read_b128 {vr(CB[fs]+4*d)}, v21 offset:{(7-d)*512}')]
    r += A(0)
    for d in range(8): r += B(d)
    for k in range(1, 8): r += A(k)
    return r
lq = Q('lgkmcnt', 15)
for tag, ins in conv_reads(0): lq.issue(tag, ins)
a('s_mov_b32 s71, 0\n.p2align 3\nL_conv_loop:')
for fs in range(2):
    nxt = conv_reads(fs ^ 1)
    a('v_add_u32 v20, 64, v20\nv_add_u32 v21, 64, v21')
    n = 0
    for k in range(8):
        for q in range(k, 8):
            lq.need({f'A{k}{fs}', f'B{q-k}{fs}'})
            a(f'v_mfma_f32_16x16x32_bf16 {vr(CACC+4*q)}, {vr(CA[fs]+4*k)}, {vr(CB[fs]+4*(q-k))}, {vr(CACC+4*q)}')
            n += 1
            if n >= 9 and nxt:
                tag, ins = nxt.pop(0); lq.issue(tag, ins)
    assert not nxt
a('s_add_u32 s71, s71, 1\ns_cmp_lt_u32 s71, 4\ns_cbranch_scc1 L_conv_loop')
ts(7)
a(f'''s_waitcnt lgkmcnt(0)
v_lshlrev_b32 v3, 3, v1
v_lshl_add_u32 v3, v2, 5, v3
v_sub_u32 v4, {2*(2044-1792)}, v3
v_add_u32 v4, s70, v4
v_add_u32 v3, s68, v3''')
for q in range(8): a(f'ds_read_b64 {vr(64+2*q,2)}, v4 offset:{(7-q)*512}')
for q in range(8):
    u = 64 + 2*q; y = CACC + 4*q; t = 96 + 4*q
    a(f'''s_waitcnt lgkmcnt(7)
    v_and_b32 v{t}, 0xffff0000, v{u+1}
    v_lshlrev_b32 v{t+1}, 16, v{u+1}
    v_and_b32 v{t+2}, 0xffff0000, v{u}
    v_lshlrev_b32 v{t+3}, 16, v{u}''')
    for i in range(4): a(f'v_fma_f32 v{y+i}, v{t+i}, v7, v{y+i}')
    a(f'v_cvt_pk_bf16_f32 v{u}, v{y}, v{y+1}\nv_cvt_pk_bf16_f32 v{u+1}, v{y+2}, v{y+3}')
    a(f'ds_write_b64 v3, {vr(u,2)} offset:{q*512}')
a(f's_add_u32 s71, s69, {Y2T}\ns_waitcnt lgkmcnt(0)')
for i in range(4): a(f'ds_read_b128 {vr(96+4*i)}, v11 offset:{i*1024}')
for i in range(4):
    a(f's_waitcnt lgkmcnt({3-i})')
    a(f'buffer_store_dwordx4 {vr(96+4*i)}, v10, {sr(S_WS)}, s71 offen offset:{i*1024} sc1')
lds_add(196, 199, C_CV)
packed_off(71, 67, F3, 72)
a('s_waitcnt vmcnt(0)')
flag_store(71, 3, 4)
ts(8)
a(f's_setprio 0\ns_cmp_lg_u32 s{LW}, 3\ns_cbranch_scc1 L_join')
lds_wait(196, 197, C_CV, 4, 2)
lds_wait(196, 197, C_OKW, 1, 2)
a('s_branch L_w7')
a('L_ld67:')
a(f's_waitcnt vmcnt({NT_})\ns_cmp_eq_u32 s{LW}, 3\ns_cbranch_scc1 L_ld7a')
a(f'v_cmp_ne_u32 vcc, s{S_TAG}, v222\ns_cmp_eq_u64 vcc, 0\ns_cbranch_scc0 L_w6_late')
lds_add(196, 199, C_OK)
ts(5)
a('s_barrier\ns_branch L_w6e\nL_w6_late:\ns_barrier')
poll([15], 20, 2)
lds_add(196, 199, C_OK)
ts(5)
a(f's_branch L_w6e\nL_ld7a:\ns_barrier\ns_branch L_ld7\nL_w6e:')
a(f's_cmp_lg_u32 s2, 0\ns_cbranch_scc1 L_join\ns_mov_b32 s71, {EPOCH}')
flag_store(71, 3, 4)
a('s_branch L_join\nL_ld7:')
if not OPT['sta9']:
    lds_wait(196, 197, C_OK, 1, 1)
a('s_mov_b32 s3, 1\ns_branch L_w7b')
a('L_w7:\ns_mov_b32 s3, 0\nL_w7b:')
g2_roles(67, 68, 78, 79, 64)
a(f'''v_lshlrev_b32 v10, 4, v0
v_add_u32 v11, 4096, v10
s_mul_i32 s75, s68, {48*5120}
s_add_u32 s75, s75, {WDP}''')
for _ in range(4): step12(78, 79, 64)
def stash(ldsbase):
    for i in range(2):
        a('s_mul_i32 s72, s78, 5120\ns_add_u32 s72, s72, s75')
        step12(78, 79, 64)
        for w in range(4):
            a(f's_mov_b32 m0, {ldsbase + w*10240 + i*5120}\ns_nop 0')
            for db in range(4): a(f'buffer_load_dwordx4 v10, {sr(S_WS)}, s72 offen offset:{db*1024} sc1 lds')
            a(f's_mov_b32 m0, {ldsbase + w*10240 + i*5120 + 4096}\ns_nop 0')
            a(f'buffer_load_dwordx4 v11, {sr(S_WS)}, s72 offen sc1 lds')
            if w < 3: a(f's_add_u32 s72, s72, {12*5120}')
a(f'''s_mul_i32 s68, s68, 80
s_lshl_b32 s69, s68, 4
''')
packed_lane(12, 20, F3)
a(f'''v_add_u32 v12, s69, v12
v_lshrrev_b32 v3, 3, v0
v_and_b32 v4, 7, v0
v_lshlrev_b32 v5, 4, v4
v_lshl_add_u32 v5, v3, 12, v5
v_and_b32 v6, 6, v3
v_xor_b32 v6, v6, v4
v_lshlrev_b32 v6, 4, v6
v_lshl_add_u32 v6, v3, 7, v6
v_add_u32 v6, {Y2L}, v6
s_lshl_b32 s69, s68, 12
s_lshl_b32 s70, s67, 7
s_add_u32 s69, s69, s70
s_add_u32 s69, s69, {Y2T}''')
if OPT['sta9']:
    a('s_cmp_eq_u32 s3, 0\ns_cbranch_scc1 L_w7c')
    lds_wait(196, 197, C_OK, 1, 1)
    a('L_w7c:')
    stash(STA)
lds_wait(196, 197, C_H, 4, 2)
ts(4)
if not OPT['sta9']: stash(STA)
if OPT['lateb']:
    a('s_waitcnt vmcnt(0)')
    lds_add(196, 199, C_ST)
    lds_wait(196, 197, C_H, 8, 2)
    stash(STB)
else:
    stash(STB)
    a('s_waitcnt vmcnt(40)')
    lds_add(196, 199, C_ST)
a('s_waitcnt vmcnt(0)')
lds_add(196, 199, C_ST)
ts(5)
lds_wait(196, 197, C_H, 12, 4)
poll4(12, 16, 4)
ts(1)
for i in range(10):
    a(f'buffer_load_dwordx4 {vr(16+4*i)}, v5, {sr(S_WS)}, s69 offen sc1')
    if i < 9: a(f's_add_u32 s69, s69, {8*4096}')
for i in range(10):
    a(f's_waitcnt vmcnt({9-i})')
    a(f'ds_write_b128 v6, {vr(16+4*i)} offset:{i*1024}')
ts(2)
a('L_join:\ns_waitcnt lgkmcnt(0)\ns_barrier')
ts(9)
ts_dump()
a('s_endpgm')

a('L_aux:')
WDL = 40960
GX = 104; GW = 132; G = 140
a(f'''s_and_b32 s3, s2, 7
s_lshl_b32 s3, s3, 3
s_bfe_u32 s64, s2, 0x30003
s_add_u32 s3, s3, s64
s_sub_u32 s{LW}, s{S_WAVE}, 4
v_lshlrev_b32 v8, 4, v0
v_lshlrev_b32 v9, 2, v0
v_add_u32 v3, {CNT}, v9
v_mov_b32 v4, 0
ds_write_b32 v3, v4
v_mov_b32 v196, {CNT}
v_mov_b32 v199, 1
s_mul_i32 s77, s{S_WAVE}, 4608''')
pass_setup_loads(3, S_WAVE, 77)
srd(a, S_WG, P_WD, 1536*1280); srd(a, S_WU, P_GW, 1280); srd(a, S_X, P_Q, 2048*1280)
a(f's_lshl_b32 s79, s{S_WAVE}, 12\ns_add_u32 s79, s79, {WDL}')
for i in range(2):
    a(f'''s_mul_i32 s64, s3, 15
    s_lshl_b32 s65, s{S_WAVE}, 1
    s_add_u32 s65, s65, {i}
    s_add_u32 s64, s64, s65
    s_mul_i32 s{68+2*i}, s64, 3277
    s_lshr_b32 s{68+2*i}, s{68+2*i}, 16
    s_mul_i32 s72, s{68+2*i}, 20
    s_sub_u32 s{69+2*i}, s64, s72
    s_cmp_ge_u32 s65, 15
    s_cselect_b32 s{68+2*i}, 100, s{68+2*i}
    s_mul_i32 s72, s{68+2*i}, {32*1280}
    s_lshl_b32 s73, s{69+2*i}, 6
    s_add_u32 s72, s72, s73
    s_add_u32 s73, s72, {16*1280}
    s_add_u32 m0, s79, {2048*i}
    s_nop 0
    buffer_load_dwordx4 v12, {sr(S_WG)}, s72 offen{NTW} lds
    s_add_u32 m0, s79, {2048*i + 1024}
    s_nop 0
    buffer_load_dwordx4 v12, {sr(S_WG)}, s73 offen{NTW} lds''')
a(f'''s_lshl_b32 s76, s3, 3
s_add_u32 s76, s76, s{S_WAVE}
s_mul_i32 s67, s76, {4*1280}
s_add_u32 s72, s67, {3*1280}
buffer_load_dwordx4 {vr(GW)}, v8, {sr(S_WU)}, 0 offen
buffer_load_dword v{GW+4}, v9, {sr(S_WU)}, 0 offen offset:1024''')
for i in range(4):
    so, o = (67, 1280 * i) if i < 3 else (72, 0)
    a(f'buffer_load_dwordx4 {vr(GX+6*i)}, v8, {sr(S_X)}, s{so} offen offset:{o}')
    a(f'buffer_load_dword v{GX+6*i+4}, v9, {sr(S_X)}, s{so} offen offset:{o+1024}')
if OPT['cpf']:
    a(f'''s_getpc_b64 s[72:73]
    L_pc:
    s_sub_u32 s72, s72, L_pc - {NAME}_kernel
    s_subb_u32 s73, s73, 0
    s_and_b32 s64, s3, 7
    s_mul_i32 s64, s64, (L_end - {NAME}_kernel) >> 10
    s_cmp_lg_u32 s{S_WAVE}, 7
    s_cselect_b32 s65, 0, ((L_end - {NAME}_kernel) >> 10) - 1
    v_min_u32 v3, s65, v0
    v_add_lshl_u32 v3, v3, s64, 7
    global_load_dword v39, v3, s[72:73]''')
NC = 1 if OPT['cpf'] else 0
ts(1)
srd(a, S_WS, P_WS, WS_SIZE)
pass_addr(3, S_WAVE, 77, 78)
a(f'''v_lshrrev_b32 v38, 2, v0
v_lshlrev_b32 v38, 6, v38
v_lshl_add_u32 v38, v18, 3, v38
v_add_u32 v38, s79, v38
s_waitcnt lgkmcnt(0)
s_barrier''')
make_tag()
a(f's_waitcnt vmcnt({14 + NC})')
ts(2)
pass_body(78, 67, 40)
def count_flag(coff, foff, L):
    a(f'''s_mov_b64 exec, 1
    ds_add_rtn_u32 v39, v196, v199 offset:{coff}
    s_mov_b64 exec, -1
    s_waitcnt lgkmcnt(0)
    v_readfirstlane_b32 s67, v39
    ''')
    packed_off(72, 3, foff, 73)
    a(f'''s_cmp_lg_u32 s67, 7
    s_cbranch_scc1 {L}''')
    flag_store(72, 1, 39)
    a(f'{L}:')
a(f's_waitcnt vmcnt({12 + NC})')
for i in range(4):
    o = 2048 * (i >> 1) + 32 * (i & 1)
    a(f'ds_read_b64_tr_b16 {vr(148+4*i,2)}, v38 offset:{o}\nds_read_b64_tr_b16 {vr(150+4*i,2)}, v38 offset:{o+1024}')
a('s_waitcnt vmcnt(0)')
count_flag(C_P, F1 + 24*128, 'L_ax_nf1')
ts(3)
for i in range(4):
    ks, pr = 68 + 2 * (i >> 1), 69 + 2 * (i >> 1)
    a(f'''s_lshl_b32 s64, s{pr}, 1
    s_add_u32 s64, s64, {i & 1}
    s_mul_i32 s65, s64, 13108
    s_lshr_b32 s65, s65, 16
    s_mul_i32 s72, s65, 5
    s_sub_u32 s64, s64, s72
    s_mul_i32 s65, s65, 48
    s_add_u32 s65, s65, s{ks}
    s_mul_i32 s65, s65, 5
    s_add_u32 s65, s65, s64
    s_lshl_b32 s65, s65, 10
    s_add_u32 s65, s65, {WDP}
    s_cmp_ge_u32 s{ks}, 48
    s_cselect_b32 s65, {WS_SIZE}, s65
    buffer_store_dwordx4 {vr(148+4*i)}, v8, {sr(S_WS)}, s65 offen sc1''')
gate_math(GX, GW, G)
a(f'''s_lshr_b32 s67, s76, 1
s_lshl_b32 s67, s67, 7
s_and_b32 s72, s76, 1
s_lshl_b32 s72, s72, 4
s_add_u32 s67, s67, s72
s_add_u32 s67, s67, {GATE}
v_mov_b32 v1, 0
s_mov_b32 exec_lo, 0
s_mov_b32 exec_hi, 0x80000000
buffer_store_dwordx4 {vr(G)}, v1, {sr(S_WS)}, s67 offen sc1
s_mov_b64 exec, -1
s_waitcnt vmcnt(0)''')
count_flag(C_P2, F1 + 32*128, 'L_ax_nf2')
stamp(3)
a(f's_cmp_lt_u32 s{S_WAVE}, 4\ns_cbranch_scc1 L_ax_c')
lds_wait(196, 197, C_P2, 8, 2)
a(f'''s_lshl_b32 s67, s3, 2
s_add_u32 s67, s67, s{LW}
s_add_u32 s67, s67, 384
s_mov_b32 s68, {CVREG[0]}
s_cmp_eq_u32 s{LW}, 1
s_cselect_b32 s68, {CVREG[1]}, s68
s_cmp_eq_u32 s{LW}, 2
s_cselect_b32 s68, {CVREG[2]}, s68
s_cmp_eq_u32 s{LW}, 3
s_cselect_b32 s68, {CVREG[3]}, s68''')
conv_T()
conv_addr()
a('s_waitcnt vmcnt(0)')
conv_build()
lds_wait(196, 197, C_OK, 1, 2)
conv_uT()
a('s_branch L_conv_main')
a('L_ax_c:')
a(f'''s_and_b32 s64, s3, 7
s_lshl_b32 s64, s64, 2
s_add_u32 s64, s64, s{S_WAVE}        ; 0..31
s_lshr_b32 s65, s3, 3                ; x
s_cmp_lg_u32 s{S_WAVE}, 0
s_cbranch_scc1 L_ax_c1
v_lshlrev_b32 v15, 7, v0
v_add_u32 v16, {F1 + 0x2000}, v15
v_add_u32 v17, {F1 + 0x4000}, v15
v_add_u32 v18, {F1 + 0x6000}, v15
v_add_u32 v19, {F1 + 0x8000}, v15
v_add_u32 v15, {F1}, v15''')
a(f's_lshl_b32 s73, s65, 7\ns_add_u32 s73, s73, {SUMU}\ns_and_b32 s72, s3, 7\ns_cmp_eq_u32 s72, 0\ns_cbranch_scc1 L_agg')
a('v_mov_b32 v15, s73\nv_add_u32 v16, 1024, v15')
poll([15], 20, OPT['asl'], 72)
lds_add(196, 199, C_OK)
poll([16], 20, OPT['asl'], 72)
lds_add(196, 199, C_OKW)
a('s_branch L_ax_c1\nL_agg:')
packed_lane(15, 64, F1)
packed_lane(16, 16, F1 + 32*128)
stamp(0)
poll4(15, 20, OPT['gsl'], 72)
stamp(1)
flag_store(73, 1, 2)
lds_add(196, 199, C_OK)
poll4(16, 20, OPT['gsl'], 72)
stamp(2)
a('s_add_u32 s73, s73, 1024')
flag_store(73, 1, 2)
lds_add(196, 199, C_OKW)
a('L_ax_c1:')
if OPT['pfe'] & 1:
    srd(a, S_A, P_SSM, 640*4096)
    a(f's_mul_i32 s67, s65, {48*4096}\ns_mul_i32 s72, s64, 6144\ns_add_u32 s67, s67, s72\ns_add_u32 s72, s67, 3072')
    for i in range(6): a(f'buffer_load_dwordx4 v[60:63], v8, {sr(S_A)}, s{67 if i < 3 else 72} offen offset:{(i%3)*1024}')
lds_wait(196, 197, C_OKW, 1, 2)
ts(4)
if OPT['pfe'] & 2:
    a(f'''s_and_b32 s73, s65, 4
    s_mul_i32 s73, s73, {48*5120}
    s_mul_i32 s74, s64, 30720
    s_add_u32 s73, s73, s74
    s_add_u32 s73, s73, {WDP}''')
    for i in range(30):
        a(f'buffer_load_dwordx4 v[60:63], v8, {sr(S_WS)}, s73 offen offset:{(i%3)*1024} sc1')
        if i % 3 == 2: a('s_add_u32 s73, s73, 3072')
if OPT['pfe'] & 4:
    a(f's_add_u32 s67, s67, {UT}\ns_add_u32 s72, s72, {UT}')
    for i in range(6): a(f'buffer_load_dwordx4 v[60:63], v8, {sr(S_WS)}, s{67 if i < 3 else 72} offen offset:{(i%3)*1024} sc1')
if OPT['pfe']:
    a('s_waitcnt vmcnt(0)')
    ts(1)
g2_setup()
a(f'v_mov_b32 v173, {CNT}\nv_mov_b32 v175, 1')
lds_add(173, 175, C_H)
a(f's_mov_b32 s73, {WS_SIZE}\ns_branch L_g2')
a('L_end:\ns_endpgm')
print(wrap(a.text(), grid=256, block=512, lds=LDS_TOTAL, vgpr=256, accum=256))
```

```python
import sys
from asmlib import *

OPT = dict(ts=0, helpc=0, ut8=1, sta9=1, tsa=0, gsl=4, agg=1, xg=0, nt=7, osc=0, qnt=0, cpf=1, tsx=0, wpre=1, tb=1, peel=1, redi=1, hsl=2, pfit=1, bpre=0, tsg=0, rot2=1, prio=1, cprio=3, hpf=0, rf=3, lateb=0, ysig=4, lates=1, adir=1, aord=0, bn=6, fastp=1, lprio=0, fl=3, pfe=0, asl=12, nrot=5)
for x in sys.argv[1:]:
    k, v = x.split('='); OPT[k] = int(v)
TS = OPT['ts']

EPOCH = 0; SUMU = 0x400; SUMW = 0x800; F1 = 0x1000; F3 = 0xC000; F2 = 0x20000; GATE = 0x40000; DIAG = 0x80000
UT = 0x100000; Y2T = 0x380000; HB = 0x600000; WDP = 0xC00000; WS_SIZE = 0xE00000
STAGE = 49152
SPARE = 3 * STAGE
LDS_TOTAL = 163840
CS = 4160
TSZ = 4 * CS
CVSZ = TSZ + 4608
CVREG = [STAGE, STAGE + CVSZ, 2 * STAGE, 0]
Y2L = SPARE
CNT = SPARE + 10240
C_ST, C_H, C_P, C_OK, C_CV, C_OKW, C_P2 = 0, 4, 8, 12, 16, 20, 24
C_RD, C_HD = 32, 40
PART = [40960, 139264]
STA = 2 * STAGE
STB = 0
S_X, S_WG, S_WU, S_WS, S_A, S_B, S_C = 4, 8, 12, 16, 20, 24, 28
P_Q, P_K, P_V, P_SHK, P_SSM, P_SSMD, P_WG, P_WU, P_WD, P_GW, P_OUT, P_WS = 32, 34, 36, 38, 40, 42, 46, 48, 50, 52, 54, 58
S_WAVE, S_TAG, S_MT, S_NT = 60, 61, 62, 63
a = Asm()
NTK = ' nt' if OPT['nt'] & 1 else ''
NTW = ' nt' if OPT['nt'] & 2 else ''
NTS = ' nt' if OPT['nt'] & 4 else ''
NTG = ' nt' if OPT['nt'] & 8 else ''
NTX = ' nt' if OPT['nt'] & 16 else ''
def tsx(i):
    if OPT['tsx']: a(f's_memrealtime s[{80+2*i}:{81+2*i}]')
def ts(i):
    if OPT['tsx'] and i >= 4: return
    if TS == 1: a(f's_memrealtime s[{80+2*i}:{81+2*i}]')
    if TS == 2: a(f's_memtime s[{80+2*i}:{81+2*i}]')
def ts_dump():
    if not TS: return
    a('s_waitcnt lgkmcnt(0)')
    a(f's_lshl_b32 s64, s2, 3\ns_add_u32 s64, s64, s{S_WAVE}\ns_lshl_b32 s64, s64, 6\ns_add_u32 s64, s64, {DIAG}')
    for i in range(10): a(f'v_mov_b32 v{2+i}, s{80+2*i}')
    a('v_mov_b32 v1, 0\ns_mov_b64 exec, 1')
    a(f'buffer_store_dwordx4 v[2:5], v1, s[{S_WS}:{S_WS+3}], s64 offen')
    a(f'buffer_store_dwordx4 v[6:9], v1, s[{S_WS}:{S_WS+3}], s64 offen offset:16')
    a(f'buffer_store_dwordx2 v[10:11], v1, s[{S_WS}:{S_WS+3}], s64 offen offset:32')
def sr(s): return f's[{s}:{s+3}]'
def vr(v, n=4): return f'v[{v}:{v+n-1}]'

class Q:
    def __init__(self, name, cap): self.q = []; self.name = name; self.cap = cap
    def issue(self, tag, ins=None):
        if ins: a(ins)
        self.q.append(tag)
    def need(self, tags):
        if not isinstance(tags, set): tags = {tags}
        idx = max([i for i, t in enumerate(self.q) if t in tags], default=-1)
        if idx >= 0:
            n = len(self.q) - 1 - idx
            a(f's_waitcnt {self.name}({min(n, self.cap)})')
            self.q = self.q[idx+1:]
    def drain(self):
        a(f's_waitcnt {self.name}(0)'); self.q = []

def poll(addr_regs, tmp, slp=1, sc=64):
    L = a.label('L_poll'); D = a.label('L_pdone')
    a(f's_mov_b32 s{sc}, 0')
    a(f'{L}:')
    for i, r in enumerate(addr_regs):
        a(f'buffer_load_dword v{tmp+i}, v{r}, {sr(S_WS)}, 0 offen sc1')
    a('s_waitcnt vmcnt(0)')
    for i in range(len(addr_regs)): a(f'v_xor_b32 v{tmp+i}, s{S_TAG}, v{tmp+i}')
    for i in range(1, len(addr_regs)): a(f'v_or_b32 v{tmp}, v{tmp}, v{tmp+i}')
    a(f'''v_cmp_ne_u32 vcc, 0, v{tmp}
    s_add_u32 s{sc}, s{sc}, 1
    s_cmp_eq_u64 vcc, 0
    s_cbranch_scc1 {D}
    s_sleep {slp}
    s_cmp_lt_u32 s{sc}, 0x8000
    s_cbranch_scc1 {L}
    {D}:''')
def stamp(slot):
    if not OPT['tsa']: return
    a(f"""s_memrealtime s[100:101]
    s_waitcnt lgkmcnt(0)
    v_mov_b32 v62, s100
    v_mov_b32 v63, s72
    s_lshl_b32 s100, s2, 5
    s_add_u32 s100, s100, {DIAG + 0x60000 + slot*8}
    v_mov_b32 v198, 0
    s_mov_b64 exec, 1
    buffer_store_dwordx2 v[62:63], v198, {sr(S_WS)}, s100 offen
    s_mov_b64 exec, -1""")
def poll4(r, tmp, slp=1, sc=64):
    L = a.label('L_poll'); D = a.label('L_pdone')
    a(f"""s_mov_b32 s{sc}, 0
    {L}:
    buffer_load_dwordx4 {vr(tmp)}, v{r}, {sr(S_WS)}, 0 offen sc1
    s_waitcnt vmcnt(0)""")
    for i in range(4): a(f'v_xor_b32 v{tmp+i}, s{S_TAG}, v{tmp+i}')
    a(f"""v_or3_b32 v{tmp}, v{tmp}, v{tmp+1}, v{tmp+2}
    v_or_b32 v{tmp}, v{tmp}, v{tmp+3}
    v_cmp_ne_u32 vcc, 0, v{tmp}
    s_add_u32 s{sc}, s{sc}, 1
    s_cmp_eq_u64 vcc, 0
    s_cbranch_scc1 {D}
    s_sleep {slp}
    s_cmp_lt_u32 s{sc}, 0x8000
    s_cbranch_scc1 {L}
    {D}:""")
def packed_off(dst, idx, base, tmp):
    a(f"""s_lshr_b32 s{dst}, s{idx}, 3
    s_lshl_b32 s{dst}, s{dst}, 7
    s_and_b32 s{tmp}, s{idx}, 7
    s_lshl_b32 s{tmp}, s{tmp}, 2
    s_add_u32 s{dst}, s{dst}, s{tmp}
    s_add_u32 s{dst}, s{dst}, {base}""")
def packed_lane(dst, nlanes, base, first_line_sreg=None):
    a(f"""v_min_u32 v{dst}, {nlanes-1}, v0
    v_and_b32 v197, 1, v{dst}
    v_lshrrev_b32 v{dst}, 1, v{dst}
    v_lshlrev_b32 v{dst}, 7, v{dst}
    v_lshl_add_u32 v{dst}, v197, 4, v{dst}
    v_add_u32 v{dst}, {base}, v{dst}""")
def lds_wait(vaddr, vt, off, val, slp=0, s0=56, s1=57):
    L = a.label('L_lw')
    a(f'''s_mov_b32 s{s0}, 0
    {L}:
    ds_read_b32 v{vt}, v{vaddr} offset:{off}
    s_add_u32 s{s0}, s{s0}, 1
    s_waitcnt lgkmcnt(0)
    v_readfirstlane_b32 s{s1}, v{vt}
    s_cmp_ge_u32 s{s0}, 0x100000
    s_cselect_b32 s{s1}, {val}, s{s1}
    s_cmp_ge_u32 s{s1}, {val}''')
    if slp:
        D = a.label('L_lwd')
        a(f's_cbranch_scc1 {D}\ns_sleep {slp}\ns_branch {L}\n{D}:')
    else:
        a(f's_cbranch_scc0 {L}')
def lds_add(vaddr, vone, off, q=None):
    a('s_mov_b64 exec, 1')
    ins = f'ds_add_u32 v{vaddr}, v{vone} offset:{off}'
    if q: q.issue('sig', ins)
    else: a(ins)
    a('s_mov_b64 exec, -1')
def flag_store(soff_reg, vt0, vt1):
    a(f'''v_mov_b32 v{vt0}, s{S_TAG}
    v_mov_b32 v{vt1}, 0
    s_mov_b64 exec, 1
    buffer_store_dword v{vt0}, v{vt1}, {sr(S_WS)}, s{soff_reg} offen sc1
    s_mov_b64 exec, -1''')
def make_tag():
    a(f's_mul_i32 s{S_TAG}, s{S_TAG}, 1664525\ns_add_u32 s{S_TAG}, s{S_TAG}, 1013904223')
def g2_roles(sa, sj, sstart, sinc, t0):
    a(f'''s_and_b32 s{sa}, s2, 1
    s_lshl_b32 s{sa}, s{sa}, 4
    s_and_b32 s{t0}, s2, 2
    s_lshl_b32 s{t0}, s{t0}, 2
    s_add_u32 s{sa}, s{sa}, s{t0}
    s_bfe_u32 s{t0}, s2, 0x30003
    s_add_u32 s{sa}, s{sa}, s{t0}
    s_and_b32 s{sj}, s2, 4
    s_lshr_b32 s{sinc}, s2, 6
    s_add_u32 s{sj}, s{sj}, s{sinc}
    s_lshl_b32 s{sinc}, s{sinc}, 1
    s_add_u32 s{t0}, s{t0}, s{sinc}
    s_and_b32 s{sstart}, s{t0}, 3
    s_mul_i32 s{sstart}, s{sstart}, {3 if OPT['rot2'] else 0}
    s_bitcmp1_b32 s{t0}, 2
    s_cselect_b32 s{t0}, {2 if OPT['rot2'] else 0}, 0
    s_cselect_b32 s{sinc}, {11 if OPT['rot2'] else 1}, 1
    s_add_u32 s{sstart}, s{sstart}, s{t0}''')
def step12(cur, inc, tmp):
    a(f'''s_add_u32 s{cur}, s{cur}, s{inc}
    s_cmp_ge_u32 s{cur}, 12
    s_cselect_b32 s{tmp}, 12, 0
    s_sub_u32 s{cur}, s{cur}, s{tmp}''')
S_A2, S_J2, S_INC = 69, 70, 78
VL16, VL16B, VQO, VGO, VF2 = 4, 5, 3, 6, 7
def g2_setup():
    srd(a, S_A, P_OUT, 2048*1280)
    srd(a, S_X, P_Q, 2048*1280)
    g2_roles(S_A2, S_J2, 76, S_INC, 66)
    a(f'''s_mul_i32 s74, s{S_A2}, {48*4096}
    s_mul_i32 s66, s{S_WAVE}, {12*4096}
    s_add_u32 s74, s74, s66
    s_add_u32 s74, s74, {HB}
    s_mul_i32 s75, s{S_J2}, {48*5120}
    s_mul_i32 s66, s{S_WAVE}, {12*5120}
    s_add_u32 s75, s75, s66
    s_add_u32 s75, s75, {WDP}
    s_mov_b32 s77, s76
    v_and_b32 v1, 15, v0
    v_lshrrev_b32 v2, 4, v0
    s_lshl_b32 s66, s{S_A2}, 6
    s_lshl_b32 s67, s{S_WAVE}, 4
    s_add_u32 s66, s66, s67
    v_add_u32 v8, s66, v1
    v_mul_u32_u24 v{VQO}, 1280, v8
    v_lshl_add_u32 v{VQO}, v2, 3, v{VQO}
    s_mul_i32 s67, s{S_J2}, 160
    v_add_u32 v{VQO}, s67, v{VQO}
    v_lshrrev_b32 v9, 3, v8
    v_lshlrev_b32 v9, 7, v9
    v_and_b32 v8, 7, v8
    v_lshl_add_u32 v9, v8, 2, v9
    v_add_u32 v{VGO}, {GATE}, v9
    v_min_u32 v1, 5, v0
    v_lshlrev_b32 v1, 1, v1
    s_lshr_b32 s66, s{S_A2}, 1
    s_mul_i32 s66, s66, 12
    s_mul_i32 s67, s{S_WAVE}, 3
    s_add_u32 s66, s66, s67
    s_lshl_b32 s66, s66, 2
    s_and_b32 s67, s{S_A2}, 1
    s_add_u32 s66, s66, s67
    v_add_lshl_u32 v1, v1, s66, 7
    v_add_u32 v{VF2}, {F2}, v1
    v_lshlrev_b32 v{VL16}, 4, v0
    v_add_u32 v{VL16B}, 4096, v{VL16}''')

def pass_setup_loads(s_tt, s_pass, s_lds):
    a(f"""v_lshrrev_b32 v1, 2, v0
    v_and_b32 v18, 3, v0
    v_mul_u32_u24 v12, 1280, v1
    v_lshl_add_u32 v12, v18, 4, v12
    s_lshl_b32 s67, s{s_tt}, 5
    s_sub_u32 s67, s67, 4
    s_mul_i32 s67, s67, 1280
    s_lshl_b32 s73, s{s_pass}, 6
    s_add_u32 s67, s67, s73
    v_add_u32 v13, s67, v12
    v_add_u32 v14, {16*1280}, v13
    v_add_u32 v15, {32*1280}, v13
    v_and_b32 v16, 31, v0
    s_lshl_b32 s73, s{s_pass}, 5
    v_add_lshl_u32 v17, v16, s73, 3
    s_waitcnt lgkmcnt(0)
    s_load_dword s{S_TAG}, s[{P_WS}:{P_WS+1}], {EPOCH}""")
    srd(a, S_A, P_K, 2048*1280); srd(a, S_B, P_V, 2048*1280); srd(a, S_C, P_SHK, 640*8)
    a(f'buffer_load_dwordx2 v[10:11], v17, {sr(S_C)}, 0 offen')
    for i in range(3):
        if i == 2: a('s_mov_b64 exec, 0xffff')
        a(f's_add_u32 m0, s{s_lds}, {i*1024}\ns_nop 0')
        a(f'buffer_load_dwordx4 v{13+i}, {sr(S_A)}, 0 offen{NTK} lds')
        a(f's_add_u32 m0, s{s_lds}, {2304 + i*1024}\ns_nop 0')
        a(f'buffer_load_dwordx4 v{13+i}, {sr(S_B)}, 0 offen{NTK} lds')
        if i == 2: a('s_mov_b64 exec, -1')
def pass_addr(s_tt, s_pass, s_lds, s_ut):
    a(f"""v_lshrrev_b32 v25, 2, v0
    v_bfe_u32 v23, v25, 1, 2
    v_xor_b32 v23, v23, v18
    v_lshlrev_b32 v23, 4, v23
    v_lshl_add_u32 v23, v25, 6, v23
    v_add_u32 v23, s{s_lds}, v23
    v_lshlrev_b32 v24, 12, v25
    v_lshl_add_u32 v24, v18, 4, v24
    v_lshrrev_b32 v25, 5, v0
    v_lshlrev_b32 v20, 10, v25
    v_bfe_u32 v22, v0, 2, 2
    v_lshl_add_u32 v20, v22, 6, v20
    v_bfe_u32 v22, v0, 4, 1
    v_lshl_add_u32 v20, v22, 5, v20
    v_lshl_add_u32 v20, v18, 3, v20
    v_add_u32 v20, s{s_lds}, v20
    v_sub_u32 v25, 1, v25
    v_lshlrev_b32 v25, 1, v25
    v_bfe_u32 v22, v16, 1, 2
    v_xor_b32 v25, v25, v22
    v_lshlrev_b32 v25, 4, v25
    v_lshl_add_u32 v22, v16, 6, v25
    v_add_u32 v21, s{s_lds}, v22
    v_xor_b32 v22, 16, v21
    s_sub_u32 s{s_ut}, 63, s{s_tt}
    s_lshl_b32 s{s_ut}, s{s_ut}, 6
    s_add_u32 s{s_ut}, s{s_ut}, {UT}
    s_lshl_b32 s67, s{s_pass}, 17
    s_add_u32 s{s_ut}, s{s_ut}, s67""")
def pass_body(s_ut, s_tmp, B):
    P, V, Qr, K = B, B + 10, B + 17, B + 28
    for n in range(5): a(f'ds_read_b64_tr_b16 v[{P+2*n}:{P+1+2*n}], v20 offset:{256*n}')
    for n in range(1, 5): a(f'ds_read_b64_tr_b16 v[{V+2*(n-1)}:{V+1+2*(n-1)}], v20 offset:{2304+256*n}')
    a('v_alignbit_b32 v10, v10, v10, 16\nv_alignbit_b32 v11, v11, v11, 16\ns_waitcnt lgkmcnt(4)')
    for e in range(1, 10): a(f'v_alignbit_b32 v{Qr+e}, v{P+e}, v{P+e-1}, 16')
    for e in range(8):
        a(f'v_dot2_f32_bf16 v{K+2*e}, v{Qr+e+1}, v11, 0')
        a(f'v_dot2_f32_bf16 v{K+1+2*e}, v{P+e+1}, v11, 0')
    for e in range(8):
        a(f'v_dot2_f32_bf16 v{K+2*e}, v{Qr+e+2}, v10, v{K+2*e}')
        a(f'v_dot2_f32_bf16 v{K+1+2*e}, v{P+e+2}, v10, v{K+1+2*e}')
    a('s_waitcnt lgkmcnt(0)')
    for e in range(8):
        a(f'v_lshlrev_b32 v{P+e}, 16, v{V+e}')
        a(f'v_and_b32 v{Qr+1+e}, 0xffff0000, v{V+e}')
    for e in range(8):
        a(f'v_mul_f32 v{K+2*e}, v{K+2*e}, v{P+e}')
        a(f'v_mul_f32 v{K+1+2*e}, v{K+1+2*e}, v{Qr+1+e}')
    for o in range(8):
        e = 7 - o
        a(f'v_cvt_pk_bf16_f32 v{P+o}, v{K+1+2*e}, v{K+2*e}')
    a(f"""ds_write_b128 v21, {vr(P)}
    ds_write_b128 v22, {vr(P+4)}
    s_waitcnt lgkmcnt(0)
    ds_read_b128 {vr(P+8)}, v23
    ds_read_b128 {vr(P+12)}, v23 offset:1024
    s_add_u32 s{s_tmp}, s{s_ut}, {16*4096}
    s_waitcnt lgkmcnt(1)
    buffer_store_dwordx4 {vr(P+8)}, v24, {sr(S_WS)}, s{s_ut} offen sc1
    s_waitcnt lgkmcnt(0)
    buffer_store_dwordx4 {vr(P+12)}, v24, {sr(S_WS)}, s{s_tmp} offen sc1""")
def gate_math(GX, GW, G):
    for k in range(5):
        for i in range(4):
            a(f'v_dot2_f32_bf16 v{G+i}, v{GX+6*i+k}, v{GW+k}, ' + ('0' if k == 0 else f'v{G+i}'))
    a('s_nop 0')
    for sh in ('row_shr:1', 'row_shr:2', 'row_shr:4', 'row_shr:8'):
        for i in range(4): a(f'v_add_f32_dpp v{G+i}, v{G+i}, v{G+i} {sh} row_mask:0xf bank_mask:0xf bound_ctrl:0')
    for sh in ('row_bcast:15 row_mask:0xa', 'row_bcast:31 row_mask:0xc'):
        for i in range(4): a(f'v_add_f32_dpp v{G+i}, v{G+i}, v{G+i} {sh} bank_mask:0xf')
    for op in ('v_cvt_pk_bf16_f32 v{0}, v{0}, v{0}', 'v_and_b32 v{0}, 0xffff0000, v{0}', 'v_mul_f32 v{0}, 0xbfb8aa3b, v{0}', 'v_exp_f32 v{0}, v{0}',
               'v_add_f32 v{0}, 1.0, v{0}', 'v_rcp_f32 v{0}, v{0}', 'v_cvt_pk_bf16_f32 v{0}, v{0}, v{0}', 'v_and_b32 v{0}, 0xffff0000, v{0}'):
        for i in range(4): a(op.format(G + i))
a(f'''s_cmp_ge_u32 s2, 256
s_cbranch_scc1 L_end
s_load_dwordx16 s[32:47], s[0:1], 0
s_load_dwordx8 s[48:55], s[0:1], 64
s_load_dwordx2 s[58:59], s[0:1], 104''')
ts(0)
a(f'''v_lshrrev_b32 v1, 6, v0
v_and_b32 v0, 63, v0
s_and_b32 s{S_MT}, s2, 1
s_lshl_b32 s{S_MT}, s{S_MT}, 3
v_readfirstlane_b32 s{S_WAVE}, v1
s_bfe_u32 s64, s2, 0x30003
s_add_u32 s{S_MT}, s{S_MT}, s64
s_bfe_u32 s{S_NT}, s2, 0x20001
s_mul_i32 s{S_NT}, s{S_NT}, 3
s_lshr_b32 s64, s2, 6
s_add_u32 s{S_NT}, s{S_NT}, s64
s_cmp_ge_u32 s2, 192
s_cbranch_scc1 L_aux
{'s_endpgm' if OPT['xg'] else ''}
s_cmp_ge_u32 s{S_WAVE}, 4
s_cbranch_scc1 L_loader''')

ACC = 128; XF = [96, 112]; WF = 64; XA = [58, 59]; WA = [60, 61]
def acc1(mat, b, mb): return ACC + 4 * ((mat * 4 + b) * 4 + mb)
a(f'''s_and_b32 s64, s2, 7
s_mul_i32 s64, s64, 24
s_lshr_b32 s65, s2, 3
s_add_u32 s64, s64, s65
s_mul_i32 s76, s64, 21846
s_lshr_b32 s76, s76, 16
s_mul_i32 s65, s76, 3
s_sub_u32 s65, s64, s65
s_lshl_b32 s77, s65, 2
s_add_u32 s77, s77, s{S_WAVE}
s_add_u32 s77, s77, 8
s_mul_i32 s78, s{S_WAVE}, 4608
s_add_u32 s78, s78, {2*STAGE}
''')
packed_off(79, 2, F1, 65)
pass_setup_loads(76, 77, 78)
if OPT['bpre']: a('s_barrier')
srd(a, S_WS, P_WS, WS_SIZE)
pass_addr(76, 77, 78, 44)
a(f'''s_and_b32 s64, s{S_WAVE}, 1        ; wm
s_lshr_b32 s65, s{S_WAVE}, 1        ; wn
v_and_b32 v1, 15, v0
s_lshl_b32 s66, s64, 6
v_add_u32 v1, s66, v1
v_lshrrev_b32 v2, 4, v0
v_bfe_u32 v3, v1, 1, 3
v_lshlrev_b32 v1, 7, v1
v_xor_b32 v4, v2, v3
v_lshl_add_u32 v{XA[0]}, v4, 4, v1
v_xor_b32 v4, 4, v4
v_lshl_add_u32 v{XA[1]}, v4, 4, v1
v_lshlrev_b32 v5, 11, v2
v_bfe_u32 v7, v0, 2, 2
v_lshl_add_u32 v5, v7, 6, v5
v_and_b32 v8, 3, v0
v_lshl_add_u32 v5, v8, 3, v5
s_lshl_b32 s66, s65, 9
s_add_u32 s66, s66, 16384
v_add_u32 v5, s66, v5
v_and_b32 v4, 1, v2
v_lshl_add_u32 v{WA[0]}, v4, 5, v5
v_xor_b32 v{WA[1]}, 32, v{WA[0]}''')
for i in range(128): a(f'v_mov_b32 v{ACC+i}, 0')
a(f'''s_lshl_b32 s66, s{S_MT}, 1
s_add_u32 s66, s66, s64
s_mul_i32 s66, s66, 48
s_lshl_b32 s67, s{S_NT}, 2
s_add_u32 s66, s66, s67
s_lshl_b32 s67, s65, 1
s_add_u32 s66, s66, s67
s_lshl_b32 s66, s66, 12
s_add_u32 s71, s66, {HB}
s_add_u32 s72, s71, 4096
s_mul_i32 s66, s{S_MT}, 12
s_add_u32 s66, s66, s{S_NT}
s_lshl_b32 s66, s66, 2
s_add_u32 s66, s66, s{S_WAVE}
s_lshl_b32 s66, s66, 7
s_add_u32 s73, s66, {F2}''')
g2_setup()
a('s_waitcnt lgkmcnt(0)')
make_tag()
a('s_waitcnt vmcnt(0)')
pass_body(44, 45, 64)
ts(1)
def rdX(st, fs, mb): return (f'X{mb}{fs}', f'ds_read_b128 {vr(XF[fs]+4*mb)}, v{XA[st]} offset:{mb*2048}')
def rdW(st, w):
    mat, b = w // 4, w % 4
    o = st * 8192 + mat * 16384 + (b >> 1) * 256
    return [(f'W{w}', f'ds_read_b64_tr_b16 {vr(WF+4*w,2)}, v{WA[b & 1]} offset:{o}'),
            (f'W{w}', f'ds_read_b64_tr_b16 {vr(WF+4*w+2,2)}, v{WA[b & 1]} offset:{o+1024}')]
WORD = [0, 4, 1, 5, 2, 6, 3, 7]
if OPT['cprio']: a(f's_setprio {OPT["cprio"]}')
a('s_barrier')
ts(3)
lq = Q('lgkmcnt', 15)
init = [rdX(0, 0, 0)] + rdW(0, WORD[0]) + [rdX(0, 0, m) for m in (1, 2, 3)]
for w in WORD[1:]: init += rdW(0, w)
for tag, ins in init: lq.issue(tag, ins)
a(f's_mov_b32 s64, 0\ns_mov_b32 s65, 0\ns_mov_b32 s67, {-2*STAGE & 0xffffffff}\ns_mov_b32 s68, {STAGE}')
def hprod(b, mb, dst):
    g = acc1(0, b, mb); u = acc1(1, b, mb)
    r = [f'v_mul_f32 v{g+i}, v{g+i}, v{u+i}' for i in range(4)]
    return r + [f'v_cvt_pk_bf16_f32 v{dst}, v{g}, v{g+1}', f'v_cvt_pk_bf16_f32 v{dst+1}, v{g+2}, v{g+3}']
def h_out(p, mb):
    d = 16 + 16 * p + 4 * mb
    return hprod(2 * p, mb, d) + hprod(2 * p + 1, mb, d + 2) + [f'buffer_store_dwordx4 {vr(d)}, v{VL16}, {sr(S_WS)}, s{71+p} offen offset:{mb*1024} sc1']
def g1_half(st, last):
    pend = []; extra = []
    for wi, w in enumerate(WORD):
        for mb in range(4):
            lq.need({f'W{w}', f'X{mb}{st}'})
            acc = acc1(w // 4, w % 4, mb)
            a(f'v_mfma_f32_16x16x32_bf16 {vr(acc)}, {vr(WF+4*w)}, {vr(XF[st]+4*mb)}, {vr(acc)}')
            n = wi * 4 + mb
            if st == 0:
                if n == 0: pend += [rdX(1, 1, m) for m in range(4)]
                if mb == 3: pend += rdW(1, w)
            elif last:
                if n == 21:
                    for m in range(4): extra += h_out(0, m)
                    if OPT['lates']:
                        st_ = [e for e in extra if e.startswith('buffer')]
                        extra = [e for e in extra if not e.startswith('buffer')]
                        extra = extra[:33] + st_[:2] + extra[33:] + st_[2:]
                for _ in range(3):
                    if extra: a(extra.pop(0))
            else:
                if n == 0:
                    a(f's_cmp_lg_u32 s64, {OPT["pfit"]}\ns_cbranch_scc1 L_g1_nw\ns_waitcnt vmcnt(0)\nL_g1_nw:')
                if n == 21:
                    a(f's_lshl_b32 s66, s{S_WAVE}, 4\ns_add_u32 s66, s66, s64\ns_cmp_lg_u32 s66, {OPT["pfit"]}\ns_cbranch_scc1 L_g1_nf')
                    flag_store(79, 1, 2)
                    stamp(3)
                    a('L_g1_nf:')
                if n == 1:
                    a('s_add_u32 s65, s65, 1\ns_cmp_eq_u32 s65, 3\ns_cselect_b32 s66, s67, s68\ns_cselect_b32 s65, 0, s65')
                if n in (2, 3, 4, 5):
                    r = (XA + WA)[n - 2]
                    a(f'v_add_u32 v{r}, s66, v{r}')
                if n == OPT['bn']:
                    lq.drain(); a('s_barrier')
                    pend += [rdX(0, 0, 0)] + rdW(0, WORD[0]) + [rdX(0, 0, m) for m in (1, 2, 3)]
                    for ww in range(1, (n + 1) // 4): pend += rdW(0, WORD[ww])
                if n > OPT['bn'] and mb == 3: pend += rdW(0, w)
            if pend and not (st == 1 and n < OPT['bn']):
                tag, ins = pend.pop(0); lq.issue(tag, ins)
    for tag, ins in pend: lq.issue(tag, ins)
    for e in extra: a(e)
a('.p2align 3\nL_g1_loop:')
g1_half(0, False)
if OPT['peel']:
    qsave = list(lq.q)
    a('s_cmp_eq_u32 s64, 9\ns_cbranch_scc1 L_g1_last')
g1_half(1, False)
a('s_add_u32 s64, s64, 1\ns_cmp_lt_u32 s64, 10\ns_cbranch_scc1 L_g1_loop')
if OPT['peel']:
    a('L_g1_last:')
    lq.q = qsave
    g1_half(1, True)
    ts(4)
    for mb in range(4):
        for e in h_out(1, mb): a(e)
else:
    ts(4)
    a('s_waitcnt lgkmcnt(0)\ns_nop 4')
    for p in range(2):
        for mb in range(4):
            for e in h_out(p, mb): a(e)
DH = 4
WR = 8; WT = 88; HR = 108; ACC2 = 176
a(f'v_mov_b32 v173, {CNT}\nv_mov_b32 v175, 1')
lds_add(173, 175, C_H)
lds_wait(173, 1, C_OKW, 1, 1)
a('L_g2:')
ts(2)
a(f'''s_mul_i32 s66, s{S_WAVE}, 10240
v_add_u32 v172, s66, v{VL16}
v_add_u32 v174, {STA}, v172''')
vq = Q('vmcnt', 63)
def ld_wd(s):
    r = WR + 20 * (s % 4)
    a(f's_mul_i32 s79, s77, 5120\ns_add_u32 s79, s79, s75')
    for _ in range(5 if s == 3 else 1): step12(77, S_INC, 66)
    for db in range(4): vq.issue(('w', s), f'buffer_load_dwordx4 {vr(r+4*db)}, v{VL16}, {sr(S_WS)}, s79 offen offset:{db*1024} sc1')
    vq.issue(('w', s), f'buffer_load_dwordx4 {vr(r+16)}, v{VL16B}, {sr(S_WS)}, s79 offen sc1')
def ld_h(s):
    r = HR + 16 * (s % DH)
    a(f's_lshl_b32 s79, s76, 12\ns_add_u32 s79, s79, s74')
    step12(76, S_INC, 66)
    for mb in range(4): vq.issue(('h', s), f'buffer_load_dwordx4 {vr(r+4*mb)}, v{VL16}, {sr(S_WS)}, s79 offen offset:{mb*1024} sc1')
if OPT['fastp']: a(f'buffer_load_dword v170, v{VF2}, {sr(S_WS)}, 0 offen sc1')
for s in range(OPT['wpre']): ld_wd(s)
for i in range(80): a(f'v_mov_b32 v{ACC2+i}, 0')
a(f's_waitcnt vmcnt({5*OPT["wpre"]})')
flag_store(73, 1, 2)
if OPT['cprio']: a('s_setprio 0')
ts(5)
for s in range(OPT['wpre'], 4): ld_wd(s)
if OPT['tsg']: a('s_waitcnt vmcnt(0)\ns_memrealtime s[100:101]\ns_waitcnt lgkmcnt(0)\nv_writelane_b32 v175, s100, 12')
if OPT['fastp']: a(f'v_cmp_ne_u32 vcc, s{S_TAG}, v170\ns_cmp_eq_u64 vcc, 0\ns_cbranch_scc1 L_hready')
if OPT['fastp'] == 2:
    pass
poll([VF2], 1, OPT['hsl'])
a('L_hready:')
if OPT['tsg']: a('v_writelane_b32 v175, s64, 13')
vq.q = []
ts(7)
if OPT['hpf']:
    a(f'''v_min_u32 v1, 47, v0
    s_and_b32 s66, s{S_J2}, 3
    s_mul_i32 s66, s66, {96*128}
    v_lshl_add_u32 v1, v1, 7, s66''')
    vq.issue('pf', f'buffer_load_dword v2, v1, {sr(S_WS)}, s74 offen sc1')
    a(f'v_add_u32 v1, {48*128}, v1')
    vq.issue('pf', f'buffer_load_dword v2, v1, {sr(S_WS)}, s74 offen sc1')
for s in range(DH): ld_h(s)
def rd_st(s, db):
    base = 174 if s < 6 else 172
    return f'ds_read_b128 {vr(WT+4*db)}, v{base} offset:{(s & 1) * 5120 + db*1024}'
lq = Q('lgkmcnt', 15)
def sig():
    a('v_mov_b32 v1, 1'); lds_add(173, 1, C_H, lq)
sig()
QR = HR
def red_write(db):
    for o in range(4):
        t = db * 4 + o
        a(f'ds_write_b128 v{174 if t < 10 else 172}, {vr(ACC2+4*t)} offset:{(t % 10)*1024}')
for s in range(12):
    vq.need({('h', s), ('w', s)})
    if OPT['tsg']: a(f's_memrealtime s[100:101]\ns_waitcnt lgkmcnt(0)\nv_writelane_b32 v175, s100, {s}')
    r = HR + 16 * (s % DH); w = WT if 4 <= s < 8 else WR + 20 * (s % 4)
    if s == 3:
        lds_wait(173, 1, C_ST, 1); lq.q = []
        for db in range(5): lq.issue(('t', 4, db), rd_st(4, db))
    for db in range(5):
        if 4 <= s < 8: lq.need(('t', s, db))
        for mb in range(4):
            acc = ACC2 + 4 * (db * 4 + mb)
            a(f'v_mfma_f32_16x16x32_bf16 {vr(acc)}, {vr(w+4*db)}, {vr(r+4*mb)}, {vr(acc)}')
        if s == 11 and OPT['redi'] and db >= 1:
            if db == 1: a('s_nop 1')
            red_write(db - 1)
        if s == 5 and db == 0:
            lds_wait(173, 1, C_ST, 2); lq.q = []
        if 4 <= s < 7: lq.issue(('t', s + 1, db), rd_st(s + 1, db))
    if s + DH < 12: ld_h(s + DH)
    if 0 <= s - OPT['rf'] < 4: ld_wd(s - OPT['rf'] + 8)
    if s == OPT['ysig']: sig()
    if s == 8:
        vq.issue('q', f'buffer_load_dword v{QR+10}, v{VGO}, {sr(S_WS)}, 0 offen sc1')
        for db in range(5): vq.issue('q', f'buffer_load_dwordx2 {vr(QR+2*db,2)}, v{VQO}, {sr(S_X)}, 0 offen offset:{32*db}' + (' nt' if OPT['qnt'] else ''))
ts(8)
if OPT['redi']:
    a(f's_lshl_b32 s66, s{S_WAVE}, 10\nv_add_u32 v88, s66, v{VL16}\nv_add_u32 v89, {STA}, v88')
    a(f's_mov_b32 s66, {STA + 8192}\ns_cmp_lt_u32 s{S_WAVE}, 2\ns_cselect_b32 s66, s66, {-2048 & 0xffffffff}\nv_add_u32 v90, s66, v88')
    red_write(4)
else:
    a('s_nop 7')
    for w in range(4):
        L = a.label('L_red')
        a(f's_cmp_lg_u32 s{S_WAVE}, {w}\ns_cbranch_scc1 {L}')
        for k in range(3):
            o = (w + 1 + k) & 3
            for db in range(5):
                a(f'ds_write_b128 v{174 if k < 2 else 172}, {vr(ACC2+4*(db*4+o))} offset:{(k & 1)*5120 + db*1024}')
        for db in range(5):
            for i in range(4): a(f'v_mov_b32 v{8+4*db+i}, v{ACC2+4*(db*4+w)+i}')
        for k in range(3):
            sw = (w - 1 - k) & 3
            a(f'v_add_u32 v{88+k}, {(STA if k < 2 else STB) + sw*10240 + (k & 1)*5120}, v{VL16}')
        a(f'{L}:')
a(f'''v_lshrrev_b32 v2, 2, v0
v_bfe_u32 v1, v2, 1, 2
v_xor_b32 v1, s{S_WAVE}, v1
v_lshlrev_b32 v1, 5, v1
v_lshl_add_u32 v2, v2, 7, v1
v_and_b32 v1, 3, v0
v_lshl_add_u32 v2, v1, 3, v2
v_add_u32 v2, {Y2L}, v2
s_waitcnt vmcnt(0)
v_sub_f32 v{QR+11}, 1.0, v{QR+10}
s_waitcnt lgkmcnt(0)
s_barrier''')
ts(6)
YR = 92
for db in range(5): a(f'ds_read_b64_tr_b16 {vr(YR+2*db,2)}, v2 offset:{db*2048}')
if OPT['redi']:
    for k in range(4):
        for db in range(5):
            base, off = (89, db*4096) if db < 2 else (90, 0) if db == 2 else (88, (4*db-10)*1024)
            a(f'ds_read_b128 {vr(8+20*k+4*db)}, v{base} offset:{off + k*10240}')
    a('s_waitcnt lgkmcnt(15)')
else:
    for k in range(3):
        for db in range(5): a(f'ds_read_b128 {vr(28+20*k+4*db)}, v{88+k} offset:{db*1024}')
    a('s_waitcnt lgkmcnt(15)')
PR = 132
for db in range(5):
    for h in range(2):
        q = QR + 2*db + h; y = YR + 2*db + h; p = PR + 4*db + 2*h
        a(f'''v_lshlrev_b32 v124, 16, v{q}
        v_and_b32 v125, 0xffff0000, v{q}
        v_lshlrev_b32 v126, 16, v{y}
        v_and_b32 v127, 0xffff0000, v{y}
        v_mul_f32 v124, v124, v126
        v_mul_f32 v125, v125, v127
        v_mul_f32 v{p}, v{QR+10}, v124
        v_mul_f32 v{p+1}, v{QR+10}, v125''')
for k in range(3):
    a(f's_waitcnt lgkmcnt({10-5*k})')
    for i in range(20): a(f'v_add_f32 v{8+i}, v{8+i}, v{28+20*k+i}')
for db in range(5):
    for i in range(4): a(f'v_fma_f32 v{PR+4*db+i}, v{QR+11}, v{8+4*db+i}, v{PR+4*db+i}')
    a(f'v_cvt_pk_bf16_f32 v{152+2*db}, v{PR+4*db}, v{PR+1+4*db}\nv_cvt_pk_bf16_f32 v{153+2*db}, v{PR+2+4*db}, v{PR+3+4*db}')
    a(f'buffer_store_dwordx2 {vr(152+2*db,2)}, v{VQO}, {sr(S_A)}, 0 offen offset:{32*db}' + ['', ' sc1', ' nt', ' sc1 nt'][OPT['osc']])
ts(9)
if OPT['tsg']:
    a(f's_lshl_b32 s64, s2, 2\ns_add_u32 s64, s64, s{S_WAVE}\ns_lshl_b32 s64, s64, 6\ns_add_u32 s64, s64, {DIAG + 0x30000}\nv_lshlrev_b32 v1, 2, v0\ns_mov_b64 exec, 0xffff')
    a(f'buffer_store_dword v175, v1, {sr(S_WS)}, s64 offen\ns_mov_b64 exec, -1')
ts_dump()
a('s_endpgm')

LW = 66
CACC = 32; CA = [64, 128]; CB = [96, 160]
def conv_T():
    srd(a, S_A, P_SSM, 640*4096)
    srd(a, S_B, P_SSMD, 1280)
    a(f's_lshl_b32 s69, s67, 12\ns_add_u32 s70, s68, {TSZ}\nv_lshlrev_b32 v10, 4, v0')
    for phi in (0, 2):
        a(f's_add_u32 s71, s69, {2*phi}')
        a(f's_add_u32 m0, s68, {phi*CS + 32}\ns_nop 0')
        for i in range(4): a(f'buffer_load_dwordx4 v10, {sr(S_A)}, s71 offen offset:{i*1024}{NTS} lds')
    a(f'''v_lshrrev_b32 v1, 4, v0
    v_and_b32 v2, 15, v0
    v_add3_u32 v3, v1, v2, -16
    v_lshlrev_b32 v4, 1, v3
    v_add_u32 v4, s69, v4
    v_cmp_gt_i32 vcc, 0, v3
    s_lshl_b32 s71, s67, 1
    v_mov_b32 v7, s71
    v_cndmask_b32 v4, v4, -1, vcc
    buffer_load_ushort v5, v4, {sr(S_A)}, 0 offen
    buffer_load_ushort v7, v7, {sr(S_B)}, 0 offen''')
def conv_uT():
    a(f's_add_u32 s71, s69, {UT}\ns_mov_b32 m0, s70\ns_nop 0')
    for i in range(4): a(f'buffer_load_dwordx4 v10, {sr(S_WS)}, s71 offen offset:{i*1024} sc1 lds')
def conv_addr():
    a(f'''v_mul_u32_u24 v8, {CS}, v1
    v_add_u32 v8, s68, v8
    v_lshl_add_u32 v9, v2, 1, v8
    v_add_u32 v11, s68, v10
    v_mov_b32 v12, 0
    v_mov_b32 v13, 0
    v_lshl_add_u32 v14, v0, 3, s70
    ds_write_b64 v14, v[12:13] offset:4096
    v_add_u32 v3, 1, v2
    v_and_b32 v4, 3, v3
    v_sub_u32 v3, v3, v4
    v_lshl_add_u32 v3, v1, 3, v3
    v_mul_u32_u24 v4, {CS}, v4
    v_lshl_add_u32 v20, v3, 1, v4
    v_add_u32 v20, s68, v20
    v_lshlrev_b32 v3, 4, v1
    v_lshlrev_b32 v4, 5, v2
    v_sub_u32 v3, v3, v4
    v_add_u32 v3, {2*(2032-1792)}, v3
    v_add_u32 v21, s70, v3''')
    for i in range(32): a(f'v_mov_b32 v{CACC+i}, 0')
def conv_build():
    for i in range(4):
        b = 64 + 16 * i
        a(f'''ds_read_b128 {vr(b)}, v11 offset:{32 + i*1024}
        ds_read_b128 {vr(b+4)}, v11 offset:{2*CS + 32 + i*1024}
        ds_read_b64 {vr(b+10,2)}, v11 offset:{32 + i*1024 + 16}''')
    a('ds_write_b16 v9, v5\nv_lshlrev_b32 v7, 16, v7')
    for i in range(4):
        b = 64 + 16 * i
        a(f's_waitcnt lgkmcnt({min(15, 3*(3-i) + 1 + 2*i)})')
        for k in range(4): a(f'v_alignbit_b32 v{b+12+k}, v{b+4+k}, v{b+k}, 16')
        C = [b+2, b+3, b+10, b+11]
        for k in range(4): a(f'v_alignbit_b32 v{b+4+k}, v{C[k]}, v{b+4+k}, 16')
        a(f'ds_write_b128 v11, {vr(b+12)} offset:{CS + 32 + i*1024}\nds_write_b128 v11, {vr(b+4)} offset:{3*CS + 32 + i*1024}')

a('L_loader:')
if OPT['lprio']: a(f's_setprio {OPT["lprio"]}')
tsx(4)
a(f'''s_sub_u32 s{LW}, s{S_WAVE}, 4
v_lshrrev_b32 v3, 3, v0
s_lshl_b32 s67, s{LW}, 5
s_lshl_b32 s68, s{S_MT}, 7
s_add_u32 s67, s67, s68
v_bfe_u32 v4, v3, 1, 3
v_and_b32 v5, 7, v0
v_xor_b32 v4, v4, v5
v_add_u32 v3, s67, v3
v_mul_u32_u24 v3, 1280, v3
v_lshl_add_u32 v200, v4, 4, v3
v_xor_b32 v4, 4, v4
v_lshl_add_u32 v201, v4, 4, v3
v_add_u32 v201, {8*1280}, v201
v_add_u32 v202, {16*1280}, v200
v_add_u32 v203, {16*1280}, v201
v_bfe_u32 v3, v0, 2, 2
s_lshl_b32 s67, s{LW}, 4
v_add_u32 v3, s67, v3
v_mul_u32_u24 v3, 3072, v3
v_lshrrev_b32 v4, 4, v0
v_lshl_add_u32 v3, v4, 6, v3
v_and_b32 v4, 3, v0
v_lshl_add_u32 v3, v4, 4, v3
s_lshl_b32 s67, s{S_NT}, 8
v_add_u32 v204, s67, v3
v_add_u32 v205, {4*3072}, v204
v_xor_b32 v206, 32, v204
v_add_u32 v206, {8*3072}, v206
v_add_u32 v207, {4*3072}, v206
s_add_u32 s68, s{S_MT}, s{S_NT}
s_mul_i32 s69, s68, 6554
s_lshr_b32 s69, s69, 16
s_mul_i32 s69, s69, 10
s_sub_u32 s68, s68, s69''')
if OPT['nrot'] >= 100:
    cm, cn = (OPT['nrot'] // 10) % 10, OPT['nrot'] % 10
    a(f's_mul_i32 s68, s{S_MT}, {cm}\ns_mul_i32 s69, s{S_NT}, {cn}\ns_add_u32 s68, s68, s69\ns_mul_i32 s69, s68, 13108\ns_lshr_b32 s69, s69, 16\ns_mul_i32 s69, s69, 5\ns_sub_u32 s68, s68, s69\ns_lshl_b32 s68, s68, 1')
if OPT['nrot'] == 1: a('s_mov_b32 s68, 0')
if OPT['nrot'] == 2: a('s_and_b32 s68, s68, 1\ns_mul_i32 s68, s68, 5')
if OPT['nrot'] == 5: a('s_and_b32 s68, s68, 14')
if OPT['nrot'] == 3: a('s_mul_i32 s69, s68, 86\ns_lshr_b32 s69, s69, 8\ns_mul_i32 s69, s69, 3\ns_sub_u32 s68, s68, s69\ns_mul_i32 s68, s68, 3')
a(f'''s_lshl_b32 s69, s{LW}, 12
s_mov_b32 s71, 0
s_waitcnt lgkmcnt(0)
s_load_dword s{S_TAG}, s[{P_WS}:{P_WS+1}], {EPOCH}''')
tsx(5)
srd(a, S_X, P_Q, 2048*1280)
srd(a, S_WG, P_WG, 640*3072)
srd(a, S_WU, P_WU, 640*3072)
if OPT['bpre']: a('s_barrier')
def g1_issue():
    a(f's_lshl_b32 s72, s68, 7\ns_mul_i32 s73, s68, {64*3072}\ns_add_u32 s74, s71, s69')
    for j in range(4):
        a(f's_add_u32 m0, s74, {j*1024}\n' + ('s_add_u32 s68, s68, 1' if j == 0 else 's_nop 0'))
        a(f'buffer_load_dwordx4 v{200+j}, {sr(S_X)}, s72 offen{NTX} lds')
    for n in range(4):
        a(f's_add_u32 m0, s74, {16384 + n*1024}\ns_nop 0')
        a(f'buffer_load_dwordx4 v{204+n}, {sr(S_WG)}, s73 offen{NTG} lds')
        a(f's_add_u32 m0, s74, {32768 + n*1024}\ns_nop 0')
        a(f'buffer_load_dwordx4 v{204+n}, {sr(S_WU)}, s73 offen{NTG} lds')
    a(f'''s_cmp_ge_u32 s68, 10
    s_cselect_b32 s68, 0, s68
    s_add_u32 s71, s71, {STAGE}
    s_cmp_eq_u32 s71, {3*STAGE}
    s_cselect_b32 s71, 0, s71''')
tsx(6)
g1_issue()
tsx(7)
srd(a, S_WS, P_WS, WS_SIZE)
a(f'''v_lshlrev_b32 v15, 7, v0
v_add_u32 v16, {F1 + 0x2000}, v15
v_add_u32 v17, {F1 + 0x4000}, v15
v_add_u32 v18, {F1 + 0x6000}, v15
v_add_u32 v19, {F1 + 0x8000}, v15
v_add_u32 v15, {F1}, v15
v_lshl_add_u32 v3, v0, 2, 0
v_add_u32 v3, {CNT}, v3
v_mov_b32 v4, 0
ds_write_b32 v3, v4
v_mov_b32 v196, {CNT}
v_mov_b32 v199, 1
s_waitcnt lgkmcnt(0)''')
make_tag()
g1_issue()
a('s_mov_b32 s76, 0')
ts(1)
a('L_ld_loop:\ns_waitcnt vmcnt(12)')
a('s_barrier')
if TS == 1: a('s_memrealtime s[100:101]\ns_waitcnt lgkmcnt(0)\ns_mov_b32 m0, s76\ns_nop 0\nv_writelane_b32 v220, s100, m0')
g1_issue()
a('s_add_u32 s76, s76, 1\ns_cmp_lt_u32 s76, 8\ns_cbranch_scc1 L_ld_loop')
assert OPT['fl'] + 2 <= 7
a(f'''s_and_b32 s64, s2, 7
s_lshl_b32 s64, s64, 7
s_add_u32 s64, s64, {SUMW}
v_mov_b32 v15, s64
s_cmp_lg_u32 s{LW}, 2
s_cbranch_scc1 L_b8n''')
packed_lane(16, 64, F1)
a(f'''buffer_load_dwordx4 v[224:227], v16, {sr(S_WS)}, 0 offen sc1
buffer_load_dword v222, v15, {sr(S_WS)}, 0 offen sc1
s_waitcnt vmcnt(14)
s_branch L_b8
L_b8n:
s_waitcnt vmcnt(12)
L_b8:
s_barrier''')
ts(2)
if TS == 1:
    a(f's_lshl_b32 s64, s2, 2\ns_add_u32 s64, s64, s{LW}\ns_lshl_b32 s64, s64, 6\ns_add_u32 s64, s64, {DIAG + 0x20000}\nv_lshlrev_b32 v1, 2, v0\ns_mov_b64 exec, 0xff')
    a(f'buffer_store_dword v220, v1, {sr(S_WS)}, s64 offen\ns_mov_b64 exec, -1')
NT_ = 1 if TS == 1 else 0
a(f's_cmp_ge_u32 s{LW}, 2\ns_cbranch_scc1 L_ld67')
a(f'''s_and_b32 s67, s2, 7
s_mul_i32 s67, s67, 24
s_lshr_b32 s68, s2, 3
s_add_u32 s67, s67, s68
s_lshl_b32 s67, s67, 1
s_add_u32 s67, s67, s{LW}
s_mul_i32 s68, s{LW}, {CVSZ}
s_add_u32 s68, s68, {CVREG[0]}''')
conv_T()
conv_addr()
a(f's_waitcnt vmcnt({10 + NT_})')
if OPT['ut8']:
    a(f'ds_read_b32 v197, v196 offset:{C_OK}\ns_waitcnt lgkmcnt(0)\nv_readfirstlane_b32 s57, v197\ns_nop 0\ns_cmp_eq_u32 s57, 0\ns_cbranch_scc1 L_cv_l')
    conv_uT()
    a('s_barrier\ns_branch L_cv_b\nL_cv_l:')
a('s_barrier')
lds_wait(196, 197, C_OK, 1, 1)
conv_uT()
a('L_cv_b:')
ts(4)
a('s_waitcnt vmcnt(4)')
conv_build()
a(f's_mov_b32 s74, {3 if OPT["helpc"] else 4}\ns_mov_b32 s75, {1 if OPT["helpc"] else 0}\ns_lshl_b32 s72, s{LW}, 2\nv_add_u32 v198, s72, v196\ns_waitcnt vmcnt(0) lgkmcnt(0)')
lds_add(198, 199, C_RD)
a('L_conv_main:\ns_waitcnt vmcnt(0)')
ts(6)
a(f's_setprio {OPT["prio"]}')
def conv_reads(fs):
    r = []
    def A(k): return [(f'A{k}{fs}', f'ds_read_b64 {vr(CA[fs]+4*k,2)}, v20 offset:{k*512}'), (f'A{k}{fs}', f'ds_read_b64 {vr(CA[fs]+4*k+2,2)}, v20 offset:{k*512+8}')]
    def B(d): return [(f'B{d}{fs}', f'ds_read_b128 {vr(CB[fs]+4*d)}, v21 offset:{(7-d)*512}')]
    r += A(0)
    for d in range(8): r += B(d)
    for k in range(1, 8): r += A(k)
    return r
lq = Q('lgkmcnt', 15)
for tag, ins in conv_reads(0): lq.issue(tag, ins)
a('s_mov_b32 s71, 0\n.p2align 3\nL_conv_loop:')
for fs in range(2):
    nxt = conv_reads(fs ^ 1)
    a('v_add_u32 v20, 64, v20\nv_add_u32 v21, 64, v21')
    n = 0
    for k in range(8):
        for q in range(k, 8):
            lq.need({f'A{k}{fs}', f'B{q-k}{fs}'})
            a(f'v_mfma_f32_16x16x32_bf16 {vr(CACC+4*q)}, {vr(CA[fs]+4*k)}, {vr(CB[fs]+4*(q-k))}, {vr(CACC+4*q)}')
            n += 1
            if n >= 9 and nxt:
                tag, ins = nxt.pop(0); lq.issue(tag, ins)
    assert not nxt
a('s_add_u32 s71, s71, 1\ns_cmp_lt_u32 s71, s74\ns_cbranch_scc1 L_conv_loop')
a('s_cmp_eq_u32 s75, 2\ns_cbranch_scc1 L_help_dump\ns_cmp_eq_u32 s75, 0\ns_cbranch_scc1 L_conv_ep')
lds_wait(198, 197, C_HD, 1, 1)
a(f's_mul_i32 s72, s{LW}, {PART[1] - PART[0]}\ns_add_u32 s72, s72, {PART[0]}\nv_add_u32 v3, s72, v10')
for q in range(8): a(f'ds_read_b128 {vr(128+4*q)}, v3 offset:{q*1024}')
for q in range(8):
    a(f's_waitcnt lgkmcnt({7-q})')
    for i in range(4): a(f'v_add_f32 v{CACC+4*q+i}, v{CACC+4*q+i}, v{128+4*q+i}')
a('L_conv_ep:')
ts(7)
a(f'''s_waitcnt lgkmcnt(0)
v_lshlrev_b32 v3, 3, v1
v_lshl_add_u32 v3, v2, 5, v3
v_sub_u32 v4, {2*(2044-1792)}, v3
v_add_u32 v4, s70, v4
v_add_u32 v3, s68, v3''')
for q in range(8): a(f'ds_read_b64 {vr(64+2*q,2)}, v4 offset:{(7-q)*512}')
for q in range(8):
    u = 64 + 2*q; y = CACC + 4*q; t = 96 + 4*q
    a(f'''s_waitcnt lgkmcnt(7)
    v_and_b32 v{t}, 0xffff0000, v{u+1}
    v_lshlrev_b32 v{t+1}, 16, v{u+1}
    v_and_b32 v{t+2}, 0xffff0000, v{u}
    v_lshlrev_b32 v{t+3}, 16, v{u}''')
    for i in range(4): a(f'v_fma_f32 v{y+i}, v{t+i}, v7, v{y+i}')
    a(f'v_cvt_pk_bf16_f32 v{u}, v{y}, v{y+1}\nv_cvt_pk_bf16_f32 v{u+1}, v{y+2}, v{y+3}')
    a(f'ds_write_b64 v3, {vr(u,2)} offset:{q*512}')
a(f's_add_u32 s71, s69, {Y2T}\ns_waitcnt lgkmcnt(0)')
for i in range(4): a(f'ds_read_b128 {vr(96+4*i)}, v11 offset:{i*1024}')
for i in range(4):
    a(f's_waitcnt lgkmcnt({3-i})')
    a(f'buffer_store_dwordx4 {vr(96+4*i)}, v10, {sr(S_WS)}, s71 offen offset:{i*1024} sc1')
lds_add(196, 199, C_CV)
packed_off(71, 67, F3, 72)
a('s_waitcnt vmcnt(0)')
flag_store(71, 3, 4)
ts(8)
a(f's_setprio 0\ns_cmp_lg_u32 s{LW}, 3\ns_cbranch_scc1 L_join')
lds_wait(196, 197, C_CV, 4, 2)
lds_wait(196, 197, C_OKW, 1, 2)
a('s_branch L_w7')
a('L_ld67:')
a(f's_waitcnt vmcnt({NT_})\ns_cmp_eq_u32 s{LW}, 3\ns_cbranch_scc1 L_ld7a')
for i in range(4): a(f'v_xor_b32 v{224+i}, s{S_TAG}, v{224+i}')
a('v_or3_b32 v224, v224, v225, v226\nv_or_b32 v224, v224, v227\nv_cmp_ne_u32 vcc, 0, v224\ns_cmp_eq_u64 vcc, 0\ns_cselect_b32 s72, 1, 0\ns_cbranch_scc0 L_w6a')
lds_add(196, 199, C_OK)
a(f'L_w6a:\nv_cmp_ne_u32 vcc, s{S_TAG}, v222\ns_cmp_eq_u64 vcc, 0\ns_cselect_b32 s73, 1, 0\ns_cbranch_scc0 L_w6b')
lds_add(196, 199, C_OKW)
a('L_w6b:\ns_barrier\ns_cmp_eq_u32 s72, 1\ns_cbranch_scc1 L_w6c')
poll4(16, 224, 2)
lds_add(196, 199, C_OK)
a('L_w6c:')
ts(4)
a('s_cmp_eq_u32 s73, 1\ns_cbranch_scc1 L_w6e')
poll([15], 20, 2)
lds_add(196, 199, C_OKW)
a('s_branch L_w6e\nL_ld7a:\ns_barrier\ns_branch L_ld7\nL_w6e:')
ts(5)
a(f's_cmp_lg_u32 s2, 0\ns_cbranch_scc1 L_help\ns_mov_b32 s71, {EPOCH}')
flag_store(71, 3, 4)
a('L_help:')
if not OPT['helpc']: a('s_branch L_join')
a(f'''s_mov_b32 s76, 0
s_mov_b32 s74, 1
s_mov_b32 s75, 2
v_lshrrev_b32 v1, 4, v0
v_and_b32 v2, 15, v0
v_lshlrev_b32 v10, 4, v0
v_add_u32 v3, 1, v2
v_and_b32 v4, 3, v3
v_sub_u32 v3, v3, v4
v_lshl_add_u32 v3, v1, 3, v3
v_mul_u32_u24 v4, {CS}, v4
v_lshl_add_u32 v22, v3, 1, v4
v_add_u32 v22, {CVREG[0] + 6*64}, v22
v_lshlrev_b32 v3, 4, v1
v_lshlrev_b32 v4, 5, v2
v_sub_u32 v3, v3, v4
v_add_u32 v23, {CVREG[0] + TSZ + 2*(2032-1792) + 6*64}, v3
v_mov_b32 v198, v196
v_add_u32 v24, {PART[0]}, v10
L_help_next:
v_mov_b32 v20, v22
v_mov_b32 v21, v23''')
for i in range(32): a(f'v_mov_b32 v{CACC+i}, 0')
lds_wait(198, 197, C_RD, 1, 1)
a('s_branch L_conv_main\nL_help_dump:')
lds_wait(196, 197, C_H, 4, 1)
for q in range(8): a(f'ds_write_b128 v24, {vr(CACC+4*q)} offset:{q*1024}')
a('s_waitcnt lgkmcnt(0)')
lds_add(198, 199, C_HD)
a(f'''v_add_u32 v198, 4, v198
v_add_u32 v22, {CVSZ}, v22
v_add_u32 v23, {CVSZ}, v23
v_add_u32 v24, {PART[1] - PART[0]}, v24
s_add_u32 s76, s76, 1
s_cmp_lt_u32 s76, 2
s_cbranch_scc1 L_help_next
s_setprio 0
s_branch L_join
L_ld7:''')
if not OPT['sta9']:
    lds_wait(196, 197, C_OKW, 1, 1)
a('s_mov_b32 s3, 1\ns_branch L_w7b')
a('L_w7:\ns_mov_b32 s3, 0\nL_w7b:')
g2_roles(67, 68, 78, 79, 64)
a(f'''v_lshlrev_b32 v10, 4, v0
v_add_u32 v11, 4096, v10
s_mul_i32 s75, s68, {48*5120}
s_add_u32 s75, s75, {WDP}''')
for _ in range(4): step12(78, 79, 64)
def stash(ldsbase):
    for i in range(2):
        a('s_mul_i32 s72, s78, 5120\ns_add_u32 s72, s72, s75')
        step12(78, 79, 64)
        for w in range(4):
            a(f's_mov_b32 m0, {ldsbase + w*10240 + i*5120}\ns_nop 0')
            for db in range(4): a(f'buffer_load_dwordx4 v10, {sr(S_WS)}, s72 offen offset:{db*1024} sc1 lds')
            a(f's_mov_b32 m0, {ldsbase + w*10240 + i*5120 + 4096}\ns_nop 0')
            a(f'buffer_load_dwordx4 v11, {sr(S_WS)}, s72 offen sc1 lds')
            if w < 3: a(f's_add_u32 s72, s72, {12*5120}')
a(f'''s_mul_i32 s68, s68, 80
s_lshl_b32 s69, s68, 4
''')
packed_lane(12, 20, F3)
a(f'''v_add_u32 v12, s69, v12
v_lshrrev_b32 v3, 3, v0
v_and_b32 v4, 7, v0
v_lshlrev_b32 v5, 4, v4
v_lshl_add_u32 v5, v3, 12, v5
v_and_b32 v6, 6, v3
v_xor_b32 v6, v6, v4
v_lshlrev_b32 v6, 4, v6
v_lshl_add_u32 v6, v3, 7, v6
v_add_u32 v6, {Y2L}, v6
s_lshl_b32 s69, s68, 12
s_lshl_b32 s70, s67, 7
s_add_u32 s69, s69, s70
s_add_u32 s69, s69, {Y2T}''')
if OPT['sta9']:
    a('s_cmp_eq_u32 s3, 0\ns_cbranch_scc1 L_w7c')
    lds_wait(196, 197, C_OKW, 1, 1)
    a('L_w7c:')
    stash(STA)
lds_wait(196, 197, C_H, 4, 2)
ts(4)
if not OPT['sta9']: stash(STA)
if OPT['lateb']:
    a('s_waitcnt vmcnt(0)')
    lds_add(196, 199, C_ST)
    lds_wait(196, 197, C_H, 8, 2)
    stash(STB)
else:
    stash(STB)
    a('s_waitcnt vmcnt(40)')
    lds_add(196, 199, C_ST)
a('s_waitcnt vmcnt(0)')
lds_add(196, 199, C_ST)
ts(5)
lds_wait(196, 197, C_H, 12, 4)
poll4(12, 16, 4)
ts(1)
for i in range(10):
    a(f'buffer_load_dwordx4 {vr(16+4*i)}, v5, {sr(S_WS)}, s69 offen sc1')
    if i < 9: a(f's_add_u32 s69, s69, {8*4096}')
for i in range(10):
    a(f's_waitcnt vmcnt({9-i})')
    a(f'ds_write_b128 v6, {vr(16+4*i)} offset:{i*1024}')
ts(2)
a('L_join:\ns_waitcnt lgkmcnt(0)\ns_barrier')
ts(9)
ts_dump()
a('s_endpgm')

a('L_aux:')
WDL = 40960
GX = 104; GW = 132; G = 140
a(f'''s_and_b32 s3, s2, 7
s_lshl_b32 s3, s3, 3
s_bfe_u32 s64, s2, 0x30003
s_add_u32 s3, s3, s64
s_sub_u32 s{LW}, s{S_WAVE}, 4
v_lshlrev_b32 v8, 4, v0
v_lshlrev_b32 v9, 2, v0
v_add_u32 v3, {CNT}, v9
v_mov_b32 v4, 0
ds_write_b32 v3, v4
v_mov_b32 v196, {CNT}
v_mov_b32 v199, 1
s_mul_i32 s77, s{S_WAVE}, 4608''')
pass_setup_loads(3, S_WAVE, 77)
def aux_wdg_loads():
    srd(a, S_WG, P_WD, 1536*1280); srd(a, S_WU, P_GW, 1280); srd(a, S_X, P_Q, 2048*1280)
    a(f's_lshl_b32 s79, s{S_WAVE}, 12\ns_add_u32 s79, s79, {WDL}')
    for i in range(2):
        a(f'''s_mul_i32 s64, s3, 15
        s_lshl_b32 s65, s{S_WAVE}, 1
        s_add_u32 s65, s65, {i}
        s_add_u32 s64, s64, s65
        s_mul_i32 s{68+2*i}, s64, 3277
        s_lshr_b32 s{68+2*i}, s{68+2*i}, 16
        s_mul_i32 s72, s{68+2*i}, 20
        s_sub_u32 s{69+2*i}, s64, s72
        s_cmp_ge_u32 s65, 15
        s_cselect_b32 s{68+2*i}, 100, s{68+2*i}
        s_mul_i32 s72, s{68+2*i}, {32*1280}
        s_lshl_b32 s73, s{69+2*i}, 6
        s_add_u32 s72, s72, s73
        s_add_u32 s73, s72, {16*1280}
        s_add_u32 m0, s79, {2048*i}
        s_nop 0
        buffer_load_dwordx4 v12, {sr(S_WG)}, s72 offen{NTW} lds
        s_add_u32 m0, s79, {2048*i + 1024}
        s_nop 0
        buffer_load_dwordx4 v12, {sr(S_WG)}, s73 offen{NTW} lds''')
    a(f'''s_lshl_b32 s76, s3, 3
s_add_u32 s76, s76, s{S_WAVE}
s_mul_i32 s67, s76, {4*1280}
s_add_u32 s72, s67, {3*1280}
buffer_load_dwordx4 {vr(GW)}, v8, {sr(S_WU)}, 0 offen
buffer_load_dword v{GW+4}, v9, {sr(S_WU)}, 0 offen offset:1024''')
    for i in range(4):
        so, o = (67, 1280 * i) if i < 3 else (72, 0)
        a(f'buffer_load_dwordx4 {vr(GX+6*i)}, v8, {sr(S_X)}, s{so} offen offset:{o}')
        a(f'buffer_load_dword v{GX+6*i+4}, v9, {sr(S_X)}, s{so} offen offset:{o+1024}')
a(f's_lshl_b32 s79, s{S_WAVE}, 12\ns_add_u32 s79, s79, {WDL}')
if not OPT['aord']: aux_wdg_loads()
if OPT['cpf']:
    a(f'''s_getpc_b64 s[72:73]
    L_pc:
    s_sub_u32 s72, s72, L_pc - {NAME}_kernel
    s_subb_u32 s73, s73, 0
    s_and_b32 s64, s3, 7
    s_mul_i32 s64, s64, (L_end - {NAME}_kernel) >> 10
    s_cmp_lg_u32 s{S_WAVE}, 7
    s_cselect_b32 s65, 0, ((L_end - {NAME}_kernel) >> 10) - 1
    v_min_u32 v3, s65, v0
    v_add_lshl_u32 v3, v3, s64, 7
    global_load_dword v39, v3, s[72:73]''')
NC = 1 if OPT['cpf'] else 0
ts(1)
srd(a, S_WS, P_WS, WS_SIZE)
pass_addr(3, S_WAVE, 77, 78)
a(f'''v_lshrrev_b32 v38, 2, v0
v_lshlrev_b32 v38, 6, v38
v_lshl_add_u32 v38, v18, 3, v38
v_add_u32 v38, s79, v38
s_waitcnt lgkmcnt(0)
s_barrier''')
make_tag()
a(f's_waitcnt vmcnt({(0 if OPT["aord"] else 14) + NC})')
ts(2)
pass_body(78, 67, 40)
if OPT['aord']: aux_wdg_loads()
def count_flag(coff, foff, L):
    a(f'''s_mov_b64 exec, 1
    ds_add_rtn_u32 v39, v196, v199 offset:{coff}
    s_mov_b64 exec, -1
    s_waitcnt lgkmcnt(0)
    v_readfirstlane_b32 s67, v39
    ''')
    packed_off(72, 3, foff, 73)
    a(f'''s_cmp_lg_u32 s67, 7
    s_cbranch_scc1 {L}''')
    flag_store(72, 1, 39)
    a(f'{L}:')
if OPT['aord']:
    a('s_waitcnt vmcnt(14)')
    count_flag(C_P, F1 + 24*128, 'L_ax_nf1')
    ts(3)
    a('s_waitcnt vmcnt(10)')
else:
    a(f's_waitcnt vmcnt({12 + NC})')
for i in range(4):
    o = 2048 * (i >> 1) + 32 * (i & 1)
    a(f'ds_read_b64_tr_b16 {vr(148+4*i,2)}, v38 offset:{o}\nds_read_b64_tr_b16 {vr(150+4*i,2)}, v38 offset:{o+1024}')
if OPT['aord']:
    a('s_waitcnt lgkmcnt(0)')
else:
    a('s_waitcnt vmcnt(0)')
    count_flag(C_P, F1 + 24*128, 'L_ax_nf1')
    ts(3)
for i in range(4):
    ks, pr = 68 + 2 * (i >> 1), 69 + 2 * (i >> 1)
    a(f'''s_lshl_b32 s64, s{pr}, 1
    s_add_u32 s64, s64, {i & 1}
    s_mul_i32 s65, s64, 13108
    s_lshr_b32 s65, s65, 16
    s_mul_i32 s72, s65, 5
    s_sub_u32 s64, s64, s72
    s_mul_i32 s65, s65, 48
    s_add_u32 s65, s65, s{ks}
    s_mul_i32 s65, s65, 5
    s_add_u32 s65, s65, s64
    s_lshl_b32 s65, s65, 10
    s_add_u32 s65, s65, {WDP}
    s_cmp_ge_u32 s{ks}, 48
    s_cselect_b32 s65, {WS_SIZE}, s65
    buffer_store_dwordx4 {vr(148+4*i)}, v8, {sr(S_WS)}, s65 offen sc1''')
if OPT['aord']: a('s_waitcnt vmcnt(4)')
gate_math(GX, GW, G)
a(f'''s_lshr_b32 s67, s76, 1
s_lshl_b32 s67, s67, 7
s_and_b32 s72, s76, 1
s_lshl_b32 s72, s72, 4
s_add_u32 s67, s67, s72
s_add_u32 s67, s67, {GATE}
v_mov_b32 v1, 0
s_mov_b32 exec_lo, 0
s_mov_b32 exec_hi, 0x80000000
buffer_store_dwordx4 {vr(G)}, v1, {sr(S_WS)}, s67 offen sc1
s_mov_b64 exec, -1
s_waitcnt vmcnt(0)''')
count_flag(C_P2, F1 + 32*128, 'L_ax_nf2')
stamp(3)
a(f's_cmp_lt_u32 s{S_WAVE}, 4\ns_cbranch_scc1 L_ax_c')
lds_wait(196, 197, C_P2, 8, 2)
a(f'''s_lshl_b32 s67, s3, 2
s_add_u32 s67, s67, s{LW}
s_add_u32 s67, s67, 384
s_mov_b32 s68, {CVREG[0]}
s_cmp_eq_u32 s{LW}, 1
s_cselect_b32 s68, {CVREG[1]}, s68
s_cmp_eq_u32 s{LW}, 2
s_cselect_b32 s68, {CVREG[2]}, s68
s_cmp_eq_u32 s{LW}, 3
s_cselect_b32 s68, {CVREG[3]}, s68''')
conv_T()
conv_addr()
a('s_waitcnt vmcnt(0)')
conv_build()
lds_wait(196, 197, C_OK, 1, 2)
conv_uT()
a('s_mov_b32 s74, 4\ns_mov_b32 s75, 0\ns_branch L_conv_main')
a('L_ax_c:')
a(f'''s_and_b32 s64, s3, 7
s_lshl_b32 s64, s64, 2
s_add_u32 s64, s64, s{S_WAVE}        ; 0..31
s_lshr_b32 s65, s3, 3                ; x
s_cmp_lg_u32 s{S_WAVE}, 0
s_cbranch_scc1 L_ax_c1
v_lshlrev_b32 v15, 7, v0
v_add_u32 v16, {F1 + 0x2000}, v15
v_add_u32 v17, {F1 + 0x4000}, v15
v_add_u32 v18, {F1 + 0x6000}, v15
v_add_u32 v19, {F1 + 0x8000}, v15
v_add_u32 v15, {F1}, v15''')
a(f's_lshl_b32 s73, s65, 7\ns_add_u32 s73, s73, {SUMU}\ns_and_b32 s72, s3, 7\ns_cmp_eq_u32 s72, 0\ns_cbranch_scc1 L_agg')
a('v_mov_b32 v15, s73\nv_add_u32 v16, 1024, v15')
if OPT['adir']:
    packed_lane(15, 64, F1)
    poll4(15, 20, OPT['asl'], 72)
else:
    poll([15], 20, OPT['asl'], 72)
lds_add(196, 199, C_OK)
poll([16], 20, OPT['asl'], 72)
lds_add(196, 199, C_OKW)
a('s_branch L_ax_c1\nL_agg:')
packed_lane(15, 64, F1)
packed_lane(16, 16, F1 + 32*128)
stamp(0)
poll4(15, 20, OPT['gsl'], 72)
stamp(1)
flag_store(73, 1, 2)
lds_add(196, 199, C_OK)
poll4(16, 20, OPT['gsl'], 72)
stamp(2)
a('s_add_u32 s73, s73, 1024')
flag_store(73, 1, 2)
lds_add(196, 199, C_OKW)
a('L_ax_c1:')
if OPT['pfe'] & 1:
    srd(a, S_A, P_SSM, 640*4096)
    a(f's_mul_i32 s67, s65, {48*4096}\ns_mul_i32 s72, s64, 6144\ns_add_u32 s67, s67, s72\ns_add_u32 s72, s67, 3072')
    for i in range(6): a(f'buffer_load_dwordx4 v[60:63], v8, {sr(S_A)}, s{67 if i < 3 else 72} offen offset:{(i%3)*1024}')
lds_wait(196, 197, C_OKW, 1, 2)
ts(4)
if OPT['pfe'] & 2:
    a(f'''s_and_b32 s73, s65, 4
    s_mul_i32 s73, s73, {48*5120}
    s_mul_i32 s74, s64, 30720
    s_add_u32 s73, s73, s74
    s_add_u32 s73, s73, {WDP}''')
    for i in range(30):
        a(f'buffer_load_dwordx4 v[60:63], v8, {sr(S_WS)}, s73 offen offset:{(i%3)*1024} sc1')
        if i % 3 == 2: a('s_add_u32 s73, s73, 3072')
if OPT['pfe'] & 4:
    a(f's_add_u32 s67, s67, {UT}\ns_add_u32 s72, s72, {UT}')
    for i in range(6): a(f'buffer_load_dwordx4 v[60:63], v8, {sr(S_WS)}, s{67 if i < 3 else 72} offen offset:{(i%3)*1024} sc1')
if OPT['pfe']:
    a('s_waitcnt vmcnt(0)')
    ts(1)
g2_setup()
a(f'v_mov_b32 v173, {CNT}\nv_mov_b32 v175, 1')
lds_add(173, 175, C_H)
a(f's_mov_b32 s73, {WS_SIZE}\ns_branch L_g2')
a('L_end:\ns_endpgm')
print(wrap(a.text(), grid=256, block=512, lds=LDS_TOTAL, vgpr=256, accum=256))
```

```python
import sys
from asmlib import *

OPT = dict(ts=0, apf=0, x=0, map2=0, wst=1, qlds=1, qs=8, helpc=0, ut8=1, sta9=1, tsa=0, gsl=4, agg=1, xg=0, nt=7, osc=2, qnt=0, cpf=1, tsx=0, wpre=0, tb=1, peel=1, redi=1, hsl=2, pfit=1, bpre=0, tsg=0, rot2=0, prio=1, cprio=3, hpf=0, rf=3, lateb=0, ysig=5, lates=1, adir=1, aord=0, bn=6, fastp=1, lprio=0, fl=3, pfe=0, asl=12, nrot=5)
for x in sys.argv[1:]:
    k, v = x.split('='); OPT[k] = int(v)
TS = OPT['ts']

EPOCH = 0; SUMU = 0x400; SUMW = 0x800; F1 = 0x1000; F3 = 0xC000; F2 = 0x20000; GATE = 0x40000; DIAG = 0x80000
UT = 0x100000; Y2T = 0x380000; HB = 0x600000; WDP = 0xC00000; WS_SIZE = 0xE00000
STAGE = 49152
SPARE = 3 * STAGE
LDS_TOTAL = 163840
CS = 4160
TSZ = 4 * CS
CVSZ = TSZ + 4608
CVREG = [STAGE, STAGE + CVSZ, 2 * STAGE, 0]
Y2L = SPARE
CNT = SPARE + 10240
C_ST, C_H, C_P, C_OK, C_CV, C_OKW, C_P2 = 0, 4, 8, 12, 16, 20, 24
C_RD, C_HD = 32, 40
PART = [40960, 139264]
STA = 2 * STAGE
STB = 0
S_X, S_WG, S_WU, S_WS, S_A, S_B, S_C = 4, 8, 12, 16, 20, 24, 28
P_Q, P_K, P_V, P_SHK, P_SSM, P_SSMD, P_WG, P_WU, P_WD, P_GW, P_OUT, P_WS = 32, 34, 36, 38, 40, 42, 46, 48, 50, 52, 54, 58
S_WAVE, S_TAG, S_MT, S_NT = 60, 61, 62, 63
a = Asm()
NTK = ' nt' if OPT['nt'] & 1 else ''
NTW = ' nt' if OPT['nt'] & 2 else ''
NTS = ' nt' if OPT['nt'] & 4 else ''
NTG = ' nt' if OPT['nt'] & 8 else ''
NTX = ' nt' if OPT['nt'] & 16 else ''
def tsx(i):
    if OPT['tsx']: a(f's_memrealtime s[{80+2*i}:{81+2*i}]')
def ts(i):
    if OPT['tsx'] and i >= 4: return
    if TS == 1: a(f's_memrealtime s[{80+2*i}:{81+2*i}]')
    if TS == 2: a(f's_memtime s[{80+2*i}:{81+2*i}]')
def ts_dump():
    if not TS: return
    a('s_waitcnt lgkmcnt(0)')
    a(f's_lshl_b32 s64, s2, 3\ns_add_u32 s64, s64, s{S_WAVE}\ns_lshl_b32 s64, s64, 6\ns_add_u32 s64, s64, {DIAG}')
    for i in range(10): a(f'v_mov_b32 v{2+i}, s{80+2*i}')
    a('v_mov_b32 v1, 0\ns_mov_b64 exec, 1')
    a(f'buffer_store_dwordx4 v[2:5], v1, s[{S_WS}:{S_WS+3}], s64 offen')
    a(f'buffer_store_dwordx4 v[6:9], v1, s[{S_WS}:{S_WS+3}], s64 offen offset:16')
    a(f'buffer_store_dwordx2 v[10:11], v1, s[{S_WS}:{S_WS+3}], s64 offen offset:32')
def sr(s): return f's[{s}:{s+3}]'
def vr(v, n=4): return f'v[{v}:{v+n-1}]'

class Q:
    def __init__(self, name, cap): self.q = []; self.name = name; self.cap = cap
    def issue(self, tag, ins=None):
        if ins: a(ins)
        self.q.append(tag)
    def need(self, tags):
        if not isinstance(tags, set): tags = {tags}
        idx = max([i for i, t in enumerate(self.q) if t in tags], default=-1)
        if idx >= 0:
            n = len(self.q) - 1 - idx
            a(f's_waitcnt {self.name}({min(n, self.cap)})')
            self.q = self.q[idx+1:]
    def drain(self):
        a(f's_waitcnt {self.name}(0)'); self.q = []

def poll(addr_regs, tmp, slp=1, sc=64):
    L = a.label('L_poll'); D = a.label('L_pdone')
    a(f's_mov_b32 s{sc}, 0')
    a(f'{L}:')
    for i, r in enumerate(addr_regs):
        a(f'buffer_load_dword v{tmp+i}, v{r}, {sr(S_WS)}, 0 offen sc1')
    a('s_waitcnt vmcnt(0)')
    for i in range(len(addr_regs)): a(f'v_xor_b32 v{tmp+i}, s{S_TAG}, v{tmp+i}')
    for i in range(1, len(addr_regs)): a(f'v_or_b32 v{tmp}, v{tmp}, v{tmp+i}')
    a(f'''v_cmp_ne_u32 vcc, 0, v{tmp}
    s_add_u32 s{sc}, s{sc}, 1
    s_cmp_eq_u64 vcc, 0
    s_cbranch_scc1 {D}
    s_sleep {slp}
    s_cmp_lt_u32 s{sc}, 0x8000
    s_cbranch_scc1 {L}
    {D}:''')
def stamp(slot):
    if not OPT['tsa']: return
    a(f"""s_memrealtime s[100:101]
    s_waitcnt lgkmcnt(0)
    v_mov_b32 v62, s100
    v_mov_b32 v63, s72
    s_lshl_b32 s100, s2, 5
    s_add_u32 s100, s100, {DIAG + 0x60000 + slot*8}
    v_mov_b32 v198, 0
    s_mov_b64 exec, 1
    buffer_store_dwordx2 v[62:63], v198, {sr(S_WS)}, s100 offen
    s_mov_b64 exec, -1""")
def poll4(r, tmp, slp=1, sc=64):
    L = a.label('L_poll'); D = a.label('L_pdone')
    a(f"""s_mov_b32 s{sc}, 0
    {L}:
    buffer_load_dwordx4 {vr(tmp)}, v{r}, {sr(S_WS)}, 0 offen sc1
    s_waitcnt vmcnt(0)""")
    for i in range(4): a(f'v_xor_b32 v{tmp+i}, s{S_TAG}, v{tmp+i}')
    a(f"""v_or3_b32 v{tmp}, v{tmp}, v{tmp+1}, v{tmp+2}
    v_or_b32 v{tmp}, v{tmp}, v{tmp+3}
    v_cmp_ne_u32 vcc, 0, v{tmp}
    s_add_u32 s{sc}, s{sc}, 1
    s_cmp_eq_u64 vcc, 0
    s_cbranch_scc1 {D}
    s_sleep {slp}
    s_cmp_lt_u32 s{sc}, 0x8000
    s_cbranch_scc1 {L}
    {D}:""")
def packed_off(dst, idx, base, tmp):
    a(f"""s_lshr_b32 s{dst}, s{idx}, 3
    s_lshl_b32 s{dst}, s{dst}, 7
    s_and_b32 s{tmp}, s{idx}, 7
    s_lshl_b32 s{tmp}, s{tmp}, 2
    s_add_u32 s{dst}, s{dst}, s{tmp}
    s_add_u32 s{dst}, s{dst}, {base}""")
def packed_lane(dst, nlanes, base, first_line_sreg=None):
    a(f"""v_min_u32 v{dst}, {nlanes-1}, v0
    v_and_b32 v197, 1, v{dst}
    v_lshrrev_b32 v{dst}, 1, v{dst}
    v_lshlrev_b32 v{dst}, 7, v{dst}
    v_lshl_add_u32 v{dst}, v197, 4, v{dst}
    v_add_u32 v{dst}, {base}, v{dst}""")
def lds_wait(vaddr, vt, off, val, slp=0, s0=56, s1=57):
    L = a.label('L_lw')
    a(f'''s_mov_b32 s{s0}, 0
    {L}:
    ds_read_b32 v{vt}, v{vaddr} offset:{off}
    s_add_u32 s{s0}, s{s0}, 1
    s_waitcnt lgkmcnt(0)
    v_readfirstlane_b32 s{s1}, v{vt}
    s_cmp_ge_u32 s{s0}, 0x100000
    s_cselect_b32 s{s1}, {val}, s{s1}
    s_cmp_ge_u32 s{s1}, {val}''')
    if slp:
        D = a.label('L_lwd')
        a(f's_cbranch_scc1 {D}\ns_sleep {slp}\ns_branch {L}\n{D}:')
    else:
        a(f's_cbranch_scc0 {L}')
def lds_add(vaddr, vone, off, q=None):
    a('s_mov_b64 exec, 1')
    ins = f'ds_add_u32 v{vaddr}, v{vone} offset:{off}'
    if q: q.issue('sig', ins)
    else: a(ins)
    a('s_mov_b64 exec, -1')
def flag_store(soff_reg, vt0, vt1):
    a(f'''v_mov_b32 v{vt0}, s{S_TAG}
    v_mov_b32 v{vt1}, 0
    s_mov_b64 exec, 1
    buffer_store_dword v{vt0}, v{vt1}, {sr(S_WS)}, s{soff_reg} offen sc1
    s_mov_b64 exec, -1''')
def make_tag():
    a(f's_mul_i32 s{S_TAG}, s{S_TAG}, 1664525\ns_add_u32 s{S_TAG}, s{S_TAG}, 1013904223')
def g2_roles(sa, sj, sstart, sinc, t0):
    m = OPT['map2']
    if m == 0:
        a(f"""s_and_b32 s{sa}, s2, 1
        s_lshl_b32 s{sa}, s{sa}, 4
        s_and_b32 s{t0}, s2, 2
        s_lshl_b32 s{t0}, s{t0}, 2
        s_add_u32 s{sa}, s{sa}, s{t0}
        s_bfe_u32 s{t0}, s2, 0x30003
        s_add_u32 s{sa}, s{sa}, s{t0}
        s_and_b32 s{sj}, s2, 4
        s_lshr_b32 s{sinc}, s2, 6
        s_add_u32 s{sj}, s{sj}, s{sinc}
        s_lshl_b32 s{sinc}, s{sinc}, 1
        s_add_u32 s{t0}, s{t0}, s{sinc}""")
    elif m == 1:
        a(f"""s_and_b32 s{sa}, s2, 1
        s_lshl_b32 s{sa}, s{sa}, 4
        s_and_b32 s{t0}, s2, 6
        s_lshl_b32 s{t0}, s{t0}, 1
        s_add_u32 s{sa}, s{sa}, s{t0}
        s_bfe_u32 s{t0}, s2, 0x20003
        s_add_u32 s{sa}, s{sa}, s{t0}
        s_lshr_b32 s{sj}, s2, 5
        s_lshl_b32 s{t0}, s{t0}, 1
        s_add_u32 s{t0}, s{t0}, s{sj}""")
    else:
        a(f"""s_and_b32 s{sa}, s2, 1
        s_lshl_b32 s{sa}, s{sa}, 4
        s_bfe_u32 s{t0}, s2, 0x40003
        s_add_u32 s{sa}, s{sa}, s{t0}
        s_and_b32 s{sj}, s2, 6
        s_lshr_b32 s{sinc}, s2, 7
        s_add_u32 s{sj}, s{sj}, s{sinc}
        s_add_u32 s{t0}, s{t0}, s{sinc}""")
    r = OPT['rot2']
    if r == 0: a(f's_mov_b32 s{sstart}, 0\ns_mov_b32 s{sinc}, 1')
    elif r == 1:
        a(f"""s_and_b32 s{sstart}, s{t0}, 3
        s_mul_i32 s{sstart}, s{sstart}, 3
        s_bitcmp1_b32 s{t0}, 2
        s_cselect_b32 s{t0}, 2, 0
        s_cselect_b32 s{sinc}, 11, 1
        s_add_u32 s{sstart}, s{sstart}, s{t0}""")
    elif r == 2: a(f's_and_b32 s{sstart}, s{t0}, 1\ns_mul_i32 s{sstart}, s{sstart}, 6\ns_mov_b32 s{sinc}, 1')
    elif r == 3: a(f's_and_b32 s{sstart}, s{t0}, 1\ns_mov_b32 s{sinc}, 1')
    elif r == 4: a(f's_and_b32 s{sstart}, s{t0}, 3\ns_mov_b32 s{sinc}, 1')
    elif r == 5: a(f's_and_b32 s{sstart}, s{t0}, 1\ns_mul_i32 s{sstart}, s{sstart}, 4\ns_mov_b32 s{sinc}, 1')
def step12(cur, inc, tmp):
    a(f'''s_add_u32 s{cur}, s{cur}, s{inc}
    s_cmp_ge_u32 s{cur}, 12
    s_cselect_b32 s{tmp}, 12, 0
    s_sub_u32 s{cur}, s{cur}, s{tmp}''')
S_A2, S_J2, S_INC = 69, 70, 78
VL16, VL16B, VQO, VGO, VF2 = 4, 5, 3, 6, 7
def g2_setup():
    srd(a, S_A, P_OUT, 2048*1280)
    srd(a, S_X, P_Q, 2048*1280)
    g2_roles(S_A2, S_J2, 76, S_INC, 66)
    a(f'''s_mul_i32 s74, s{S_A2}, {48*4096}
    s_mul_i32 s66, s{S_WAVE}, {12*4096}
    s_add_u32 s74, s74, s66
    s_add_u32 s74, s74, {HB}
    s_mul_i32 s75, s{S_J2}, {48*5120}
    s_mul_i32 s66, s{S_WAVE}, {12*5120}
    s_add_u32 s75, s75, s66
    s_add_u32 s75, s75, {WDP}
    s_mov_b32 s77, s76
    {'s_mov_b32 s75, %d' % WS_SIZE if OPT['x'] & 8 else ''}
    {'s_mov_b32 s74, %d' % WS_SIZE if OPT['x'] & 16 else ''}
    v_and_b32 v1, 15, v0
    v_lshrrev_b32 v2, 4, v0
    s_lshl_b32 s66, s{S_A2}, 6
    s_lshl_b32 s67, s{S_WAVE}, 4
    s_add_u32 s66, s66, s67
    v_add_u32 v8, s66, v1
    v_mul_u32_u24 v{VQO}, 1280, v8
    v_lshl_add_u32 v{VQO}, v2, 3, v{VQO}
    s_mul_i32 s67, s{S_J2}, 160
    v_add_u32 v{VQO}, s67, v{VQO}
    v_lshrrev_b32 v9, 3, v8
    v_lshlrev_b32 v9, 7, v9
    v_and_b32 v8, 7, v8
    v_lshl_add_u32 v9, v8, 2, v9
    v_add_u32 v{VGO}, {GATE}, v9
    v_min_u32 v1, 5, v0
    v_lshlrev_b32 v1, 1, v1
    s_lshr_b32 s66, s{S_A2}, 1
    s_mul_i32 s66, s66, 12
    s_mul_i32 s67, s{S_WAVE}, 3
    s_add_u32 s66, s66, s67
    s_lshl_b32 s66, s66, 2
    s_and_b32 s67, s{S_A2}, 1
    s_add_u32 s66, s66, s67
    v_add_lshl_u32 v1, v1, s66, 7
    v_add_u32 v{VF2}, {F2}, v1
    v_lshlrev_b32 v{VL16}, 4, v0
    v_add_u32 v{VL16B}, 4096, v{VL16}''')

def pass_setup_loads(s_tt, s_pass, s_lds, z=1, hook=None):
    a(f"""v_lshrrev_b32 v1, 2, v0
    v_and_b32 v18, 3, v0
    v_mul_u32_u24 v12, 1280, v1
    v_lshl_add_u32 v12, v18, 4, v12
    s_lshl_b32 s67, s{s_tt}, 5
    s_sub_u32 s67, s67, 4
    s_mul_i32 s67, s67, 1280
    s_lshl_b32 s73, s{s_pass}, 6
    s_add_u32 s67, s67, s73
    v_add_u32 v13, s67, v12
    v_add_u32 v14, {16*1280}, v13
    v_add_u32 v15, {32*1280}, v13
    v_and_b32 v16, 31, v0
    s_lshl_b32 s73, s{s_pass}, 5
    v_add_lshl_u32 v17, v16, s73, 3
    s_waitcnt lgkmcnt(0)
    s_load_dword s{S_TAG}, s[{P_WS}:{P_WS+1}], {EPOCH}""")
    srd(a, S_A, P_K, 2048*1280*z); srd(a, S_B, P_V, 2048*1280*z); srd(a, S_C, P_SHK, 640*8)
    if hook: hook()
    a(f'buffer_load_dwordx2 v[10:11], v17, {sr(S_C)}, 0 offen')
    for i in range(3):
        if i == 2: a('s_mov_b64 exec, 0xffff')
        a(f's_add_u32 m0, s{s_lds}, {i*1024}\ns_nop 0')
        a(f'buffer_load_dwordx4 v{13+i}, {sr(S_A)}, 0 offen{NTK} lds')
        a(f's_add_u32 m0, s{s_lds}, {2304 + i*1024}\ns_nop 0')
        a(f'buffer_load_dwordx4 v{13+i}, {sr(S_B)}, 0 offen{NTK} lds')
        if i == 2: a('s_mov_b64 exec, -1')
def pass_addr(s_tt, s_pass, s_lds, s_ut):
    a(f"""v_lshrrev_b32 v25, 2, v0
    v_bfe_u32 v23, v25, 1, 2
    v_xor_b32 v23, v23, v18
    v_lshlrev_b32 v23, 4, v23
    v_lshl_add_u32 v23, v25, 6, v23
    v_add_u32 v23, s{s_lds}, v23
    v_lshlrev_b32 v24, 12, v25
    v_lshl_add_u32 v24, v18, 4, v24
    v_lshrrev_b32 v25, 5, v0
    v_lshlrev_b32 v20, 10, v25
    v_bfe_u32 v22, v0, 2, 2
    v_lshl_add_u32 v20, v22, 6, v20
    v_bfe_u32 v22, v0, 4, 1
    v_lshl_add_u32 v20, v22, 5, v20
    v_lshl_add_u32 v20, v18, 3, v20
    v_add_u32 v20, s{s_lds}, v20
    v_sub_u32 v25, 1, v25
    v_lshlrev_b32 v25, 1, v25
    v_bfe_u32 v22, v16, 1, 2
    v_xor_b32 v25, v25, v22
    v_lshlrev_b32 v25, 4, v25
    v_lshl_add_u32 v22, v16, 6, v25
    v_add_u32 v21, s{s_lds}, v22
    v_xor_b32 v22, 16, v21
    s_sub_u32 s{s_ut}, 63, s{s_tt}
    s_lshl_b32 s{s_ut}, s{s_ut}, 6
    s_add_u32 s{s_ut}, s{s_ut}, {UT}
    s_lshl_b32 s67, s{s_pass}, 17
    s_add_u32 s{s_ut}, s{s_ut}, s67""")
def pass_body(s_ut, s_tmp, B):
    P, V, Qr, K = B, B + 10, B + 17, B + 28
    for n in range(5): a(f'ds_read_b64_tr_b16 v[{P+2*n}:{P+1+2*n}], v20 offset:{256*n}')
    for n in range(1, 5): a(f'ds_read_b64_tr_b16 v[{V+2*(n-1)}:{V+1+2*(n-1)}], v20 offset:{2304+256*n}')
    a('v_alignbit_b32 v10, v10, v10, 16\nv_alignbit_b32 v11, v11, v11, 16\ns_waitcnt lgkmcnt(4)')
    for e in range(1, 10): a(f'v_alignbit_b32 v{Qr+e}, v{P+e}, v{P+e-1}, 16')
    for e in range(8):
        a(f'v_dot2_f32_bf16 v{K+2*e}, v{Qr+e+1}, v11, 0')
        a(f'v_dot2_f32_bf16 v{K+1+2*e}, v{P+e+1}, v11, 0')
    for e in range(8):
        a(f'v_dot2_f32_bf16 v{K+2*e}, v{Qr+e+2}, v10, v{K+2*e}')
        a(f'v_dot2_f32_bf16 v{K+1+2*e}, v{P+e+2}, v10, v{K+1+2*e}')
    a('s_waitcnt lgkmcnt(0)')
    for e in range(8):
        a(f'v_lshlrev_b32 v{P+e}, 16, v{V+e}')
        a(f'v_and_b32 v{Qr+1+e}, 0xffff0000, v{V+e}')
    for e in range(8):
        a(f'v_mul_f32 v{K+2*e}, v{K+2*e}, v{P+e}')
        a(f'v_mul_f32 v{K+1+2*e}, v{K+1+2*e}, v{Qr+1+e}')
    for o in range(8):
        e = 7 - o
        a(f'v_cvt_pk_bf16_f32 v{P+o}, v{K+1+2*e}, v{K+2*e}')
    a(f"""ds_write_b128 v21, {vr(P)}
    ds_write_b128 v22, {vr(P+4)}
    s_waitcnt lgkmcnt(0)
    ds_read_b128 {vr(P+8)}, v23
    ds_read_b128 {vr(P+12)}, v23 offset:1024
    s_add_u32 s{s_tmp}, s{s_ut}, {16*4096}
    s_waitcnt lgkmcnt(1)
    buffer_store_dwordx4 {vr(P+8)}, v24, {sr(S_WS)}, s{s_ut} offen sc1
    s_waitcnt lgkmcnt(0)
    buffer_store_dwordx4 {vr(P+12)}, v24, {sr(S_WS)}, s{s_tmp} offen sc1""")
def gate_math(GX, GW, G):
    for k in range(5):
        for i in range(4):
            a(f'v_dot2_f32_bf16 v{G+i}, v{GX+6*i+k}, v{GW+k}, ' + ('0' if k == 0 else f'v{G+i}'))
    a('s_nop 0')
    for sh in ('row_shr:1', 'row_shr:2', 'row_shr:4', 'row_shr:8'):
        for i in range(4): a(f'v_add_f32_dpp v{G+i}, v{G+i}, v{G+i} {sh} row_mask:0xf bank_mask:0xf bound_ctrl:0')
    for sh in ('row_bcast:15 row_mask:0xa', 'row_bcast:31 row_mask:0xc'):
        for i in range(4): a(f'v_add_f32_dpp v{G+i}, v{G+i}, v{G+i} {sh} bank_mask:0xf')
    for op in ('v_cvt_pk_bf16_f32 v{0}, v{0}, v{0}', 'v_and_b32 v{0}, 0xffff0000, v{0}', 'v_mul_f32 v{0}, 0xbfb8aa3b, v{0}', 'v_exp_f32 v{0}, v{0}',
               'v_add_f32 v{0}, 1.0, v{0}', 'v_rcp_f32 v{0}, v{0}', 'v_cvt_pk_bf16_f32 v{0}, v{0}, v{0}', 'v_and_b32 v{0}, 0xffff0000, v{0}'):
        for i in range(4): a(op.format(G + i))
a(f'''s_cmp_ge_u32 s2, 256
s_cbranch_scc1 L_end
s_load_dwordx16 s[32:47], s[0:1], 0
s_load_dwordx8 s[48:55], s[0:1], 64
s_load_dwordx2 s[58:59], s[0:1], 104''')
ts(0)
a(f'''v_lshrrev_b32 v1, 6, v0
v_and_b32 v0, 63, v0
s_and_b32 s{S_MT}, s2, 1
s_lshl_b32 s{S_MT}, s{S_MT}, 3
v_readfirstlane_b32 s{S_WAVE}, v1
s_bfe_u32 s64, s2, 0x30003
s_add_u32 s{S_MT}, s{S_MT}, s64
s_bfe_u32 s{S_NT}, s2, 0x20001
s_mul_i32 s{S_NT}, s{S_NT}, 3
s_lshr_b32 s64, s2, 6
s_add_u32 s{S_NT}, s{S_NT}, s64
s_cmp_ge_u32 s2, 192
s_cbranch_scc1 L_aux
{'s_endpgm' if OPT['xg'] else ''}
s_cmp_ge_u32 s{S_WAVE}, 4
s_cbranch_scc1 L_loader''')

ACC = 128; XF = [96, 112]; WF = 64; XA = [58, 59]; WA = [60, 61]
def acc1(mat, b, mb): return ACC + 4 * ((mat * 4 + b) * 4 + mb)
a(f'''s_and_b32 s64, s2, 7
s_mul_i32 s64, s64, 24
s_lshr_b32 s65, s2, 3
s_add_u32 s64, s64, s65
s_mul_i32 s76, s64, 21846
s_lshr_b32 s76, s76, 16
s_mul_i32 s65, s76, 3
s_sub_u32 s65, s64, s65
s_lshl_b32 s77, s65, 2
s_add_u32 s77, s77, s{S_WAVE}
s_add_u32 s77, s77, 8
s_mul_i32 s78, s{S_WAVE}, 4608
s_add_u32 s78, s78, {2*STAGE}
''')
packed_off(79, 2, F1, 65)
pass_setup_loads(76, 77, 78, 0 if OPT['x'] & 2 else 1)
if OPT['bpre']: a('s_barrier')
srd(a, S_WS, P_WS, WS_SIZE)
pass_addr(76, 77, 78, 44)
a(f'''s_and_b32 s64, s{S_WAVE}, 1        ; wm
s_lshr_b32 s65, s{S_WAVE}, 1        ; wn
v_and_b32 v1, 15, v0
s_lshl_b32 s66, s64, 6
v_add_u32 v1, s66, v1
v_lshrrev_b32 v2, 4, v0
v_bfe_u32 v3, v1, 1, 3
v_lshlrev_b32 v1, 7, v1
v_xor_b32 v4, v2, v3
v_lshl_add_u32 v{XA[0]}, v4, 4, v1
v_xor_b32 v4, 4, v4
v_lshl_add_u32 v{XA[1]}, v4, 4, v1
v_lshlrev_b32 v5, 11, v2
v_bfe_u32 v7, v0, 2, 2
v_lshl_add_u32 v5, v7, 6, v5
v_and_b32 v8, 3, v0
v_lshl_add_u32 v5, v8, 3, v5
s_lshl_b32 s66, s65, 9
s_add_u32 s66, s66, 16384
v_add_u32 v5, s66, v5
v_and_b32 v4, 1, v2
v_lshl_add_u32 v{WA[0]}, v4, 5, v5
v_xor_b32 v{WA[1]}, 32, v{WA[0]}''')
for i in range(128): a(f'v_mov_b32 v{ACC+i}, 0')
a(f'''s_lshl_b32 s66, s{S_MT}, 1
s_add_u32 s66, s66, s64
s_mul_i32 s66, s66, 48
s_lshl_b32 s67, s{S_NT}, 2
s_add_u32 s66, s66, s67
s_lshl_b32 s67, s65, 1
s_add_u32 s66, s66, s67
s_lshl_b32 s66, s66, 12
s_add_u32 s71, s66, {HB}
s_add_u32 s72, s71, 4096
s_mul_i32 s66, s{S_MT}, 12
s_add_u32 s66, s66, s{S_NT}
s_lshl_b32 s66, s66, 2
s_add_u32 s66, s66, s{S_WAVE}
s_lshl_b32 s66, s66, 7
s_add_u32 s73, s66, {F2}''')
g2_setup()
a('s_waitcnt lgkmcnt(0)')
make_tag()
a('s_waitcnt vmcnt(0)')
pass_body(44, 45, 64)
ts(1)
def rdX(st, fs, mb): return (f'X{mb}{fs}', f'ds_read_b128 {vr(XF[fs]+4*mb)}, v{XA[st]} offset:{mb*2048}')
def rdW(st, w):
    mat, b = w // 4, w % 4
    o = st * 8192 + mat * 16384 + (b >> 1) * 256
    return [(f'W{w}', f'ds_read_b64_tr_b16 {vr(WF+4*w,2)}, v{WA[b & 1]} offset:{o}'),
            (f'W{w}', f'ds_read_b64_tr_b16 {vr(WF+4*w+2,2)}, v{WA[b & 1]} offset:{o+1024}')]
WORD = [0, 4, 1, 5, 2, 6, 3, 7]
if OPT['cprio']: a(f's_setprio {OPT["cprio"]}')
a('s_barrier')
ts(3)
lq = Q('lgkmcnt', 15)
init = [rdX(0, 0, 0)] + rdW(0, WORD[0]) + [rdX(0, 0, m) for m in (1, 2, 3)]
for w in WORD[1:]: init += rdW(0, w)
for tag, ins in init: lq.issue(tag, ins)
a(f's_mov_b32 s64, 0\ns_mov_b32 s65, 0\ns_mov_b32 s67, {-2*STAGE & 0xffffffff}\ns_mov_b32 s68, {STAGE}')
def hprod(b, mb, dst):
    g = acc1(0, b, mb); u = acc1(1, b, mb)
    r = [f'v_mul_f32 v{g+i}, v{g+i}, v{u+i}' for i in range(4)]
    return r + [f'v_cvt_pk_bf16_f32 v{dst}, v{g}, v{g+1}', f'v_cvt_pk_bf16_f32 v{dst+1}, v{g+2}, v{g+3}']
def h_out(p, mb):
    d = 16 + 16 * p + 4 * mb
    return hprod(2 * p, mb, d) + hprod(2 * p + 1, mb, d + 2) + [f'buffer_store_dwordx4 {vr(d)}, v{VL16}, {sr(S_WS)}, s{71+p} offen offset:{mb*1024} sc1']
def g1_half(st, last):
    pend = []; extra = []
    for wi, w in enumerate(WORD):
        for mb in range(4):
            lq.need({f'W{w}', f'X{mb}{st}'})
            acc = acc1(w // 4, w % 4, mb)
            a(f'v_mfma_f32_16x16x32_bf16 {vr(acc)}, {vr(WF+4*w)}, {vr(XF[st]+4*mb)}, {vr(acc)}')
            n = wi * 4 + mb
            if st == 0:
                if n == 0: pend += [rdX(1, 1, m) for m in range(4)]
                if mb == 3: pend += rdW(1, w)
            elif last:
                if n == 21:
                    for m in range(4): extra += h_out(0, m)
                    if OPT['lates']:
                        st_ = [e for e in extra if e.startswith('buffer')]
                        extra = [e for e in extra if not e.startswith('buffer')]
                        extra = extra[:33] + st_[:2] + extra[33:] + st_[2:]
                for _ in range(3):
                    if extra: a(extra.pop(0))
            else:
                if n == 0:
                    a(f's_cmp_lg_u32 s64, {OPT["pfit"]}\ns_cbranch_scc1 L_g1_nw\ns_waitcnt vmcnt(0)\nL_g1_nw:')
                if n == 21:
                    a(f's_lshl_b32 s66, s{S_WAVE}, 4\ns_add_u32 s66, s66, s64\ns_cmp_lg_u32 s66, {OPT["pfit"]}\ns_cbranch_scc1 L_g1_nf')
                    flag_store(79, 1, 2)
                    stamp(3)
                    a('L_g1_nf:')
                if n == 1:
                    a('s_add_u32 s65, s65, 1\ns_cmp_eq_u32 s65, 3\ns_cselect_b32 s66, s67, s68\ns_cselect_b32 s65, 0, s65')
                if n in (2, 3, 4, 5):
                    r = (XA + WA)[n - 2]
                    a(f'v_add_u32 v{r}, s66, v{r}')
                if n == OPT['bn']:
                    lq.drain(); a('s_barrier')
                    pend += [rdX(0, 0, 0)] + rdW(0, WORD[0]) + [rdX(0, 0, m) for m in (1, 2, 3)]
                    for ww in range(1, (n + 1) // 4): pend += rdW(0, WORD[ww])
                if n > OPT['bn'] and mb == 3: pend += rdW(0, w)
            if pend and not (st == 1 and n < OPT['bn']):
                tag, ins = pend.pop(0); lq.issue(tag, ins)
    for tag, ins in pend: lq.issue(tag, ins)
    for e in extra: a(e)
a('.p2align 3\nL_g1_loop:')
g1_half(0, False)
if OPT['peel']:
    qsave = list(lq.q)
    a('s_cmp_eq_u32 s64, 9\ns_cbranch_scc1 L_g1_last')
g1_half(1, False)
a('s_add_u32 s64, s64, 1\ns_cmp_lt_u32 s64, 10\ns_cbranch_scc1 L_g1_loop')
if OPT['peel']:
    a('L_g1_last:')
    lq.q = qsave
    g1_half(1, True)
    ts(4)
    for mb in range(4):
        for e in h_out(1, mb): a(e)
else:
    ts(4)
    a('s_waitcnt lgkmcnt(0)\ns_nop 4')
    for p in range(2):
        for mb in range(4):
            for e in h_out(p, mb): a(e)
DH = 4
WR = 8; WT = 88; HR = 108; ACC2 = 176
a(f'v_mov_b32 v173, {CNT}\nv_mov_b32 v175, 1')
lds_add(173, 175, C_H)
lds_wait(173, 1, C_OKW, 1, 1)
a('L_g2:')
ts(2)
a(f'''s_mul_i32 s66, s{S_WAVE}, 10240
v_add_u32 v172, s66, v{VL16}
v_add_u32 v174, {STA}, v172''')
vq = Q('vmcnt', 63)
def ld_wd(s):
    r = WR + 20 * (s % 4)
    a(f's_mul_i32 s79, s77, 5120\ns_add_u32 s79, s79, s75')
    for _ in range(5 if s == 3 else 1): step12(77, S_INC, 66)
    for db in range(4): vq.issue(('w', s), f'buffer_load_dwordx4 {vr(r+4*db)}, v{VL16}, {sr(S_WS)}, s79 offen offset:{db*1024} sc1')
    vq.issue(('w', s), f'buffer_load_dwordx4 {vr(r+16)}, v{VL16B}, {sr(S_WS)}, s79 offen sc1')
def ld_h(s):
    r = HR + 16 * (s % DH)
    a(f's_lshl_b32 s79, s76, 12\ns_add_u32 s79, s79, s74')
    step12(76, S_INC, 66)
    for mb in range(4): vq.issue(('h', s), f'buffer_load_dwordx4 {vr(r+4*mb)}, v{VL16}, {sr(S_WS)}, s79 offen offset:{mb*1024} sc1')
if OPT['fastp']: a(f'buffer_load_dword v170, v{VF2}, {sr(S_WS)}, 0 offen sc1')
for s in range(OPT['wpre']): ld_wd(s)
for i in range(80): a(f'v_mov_b32 v{ACC2+i}, 0')
a(f's_waitcnt vmcnt({5*OPT["wpre"]})')
flag_store(73, 1, 2)
if OPT['cprio']: a('s_setprio 0')
ts(5)
for s in range(OPT['wpre'], 4): ld_wd(s)
if OPT['tsg']: a('s_waitcnt vmcnt(0)\ns_memrealtime s[100:101]\ns_waitcnt lgkmcnt(0)\nv_writelane_b32 v175, s100, 12')
if OPT['fastp']: a(f'v_cmp_ne_u32 vcc, s{S_TAG}, v170\ns_cmp_eq_u64 vcc, 0\ns_cbranch_scc1 L_hready')
if OPT['fastp'] == 2:
    pass
if not OPT['x'] & 32: poll([VF2], 1, OPT['hsl'])
a('L_hready:')
if OPT['tsg']: a('v_writelane_b32 v175, s64, 13')
vq.q = []
ts(7)
if OPT['hpf']:
    a(f'''v_min_u32 v1, 47, v0
    s_and_b32 s66, s{S_J2}, 3
    s_mul_i32 s66, s66, {96*128}
    v_lshl_add_u32 v1, v1, 7, s66''')
    vq.issue('pf', f'buffer_load_dword v2, v1, {sr(S_WS)}, s74 offen sc1')
    a(f'v_add_u32 v1, {48*128}, v1')
    vq.issue('pf', f'buffer_load_dword v2, v1, {sr(S_WS)}, s74 offen sc1')
for s in range(DH): ld_h(s)
def rd_st(s, db):
    base = 174 if s < 6 else 172
    return f'ds_read_b128 {vr(WT+4*db)}, v{base} offset:{(s & 1) * 5120 + db*1024}'
lq = Q('lgkmcnt', 15)
def sig():
    a('v_mov_b32 v1, 1'); lds_add(173, 1, C_H, lq)
sig()
QR = HR
def red_write(db):
    for o in range(4):
        t = db * 4 + o
        a(f'ds_write_b128 v{174 if t < 10 else 172}, {vr(ACC2+4*t)} offset:{(t % 10)*1024}')
for s in range(12):
    vq.need({('h', s), ('w', s)})
    if OPT['tsg']: a(f's_memrealtime s[100:101]\ns_waitcnt lgkmcnt(0)\nv_writelane_b32 v175, s100, {s}')
    r = HR + 16 * (s % DH); w = WT if 4 <= s < 8 else WR + 20 * (s % 4)
    if s == 3:
        lds_wait(173, 1, C_ST, 1); lq.q = []
        for db in range(5): lq.issue(('t', 4, db), rd_st(4, db))
    for db in range(5):
        if 4 <= s < 8: lq.need(('t', s, db))
        for mb in range(4):
            acc = ACC2 + 4 * (db * 4 + mb)
            a(f'v_mfma_f32_16x16x32_bf16 {vr(acc)}, {vr(w+4*db)}, {vr(r+4*mb)}, {vr(acc)}')
        if s == 11 and OPT['redi'] and db >= 1:
            if db == 1: a('s_nop 1')
            red_write(db - 1)
        if s == 5 and db == 0:
            lds_wait(173, 1, C_ST, 2); lq.q = []
        if 4 <= s < 7: lq.issue(('t', s + 1, db), rd_st(s + 1, db))
    if s + DH < 12: ld_h(s + DH)
    if 0 <= s - OPT['rf'] < 4: ld_wd(s - OPT['rf'] + 8)
    if s == OPT['ysig']: sig()
    if s == 8:
        vq.issue('q', f'buffer_load_dword v{QR+10}, v{VGO}, {sr(S_WS)}, 0 offen sc1')
        if not OPT['qlds']:
            for db in range(5): vq.issue('q', f'buffer_load_dwordx2 {vr(QR+2*db,2)}, v{VQO}, {sr(S_X)}, 0 offen offset:{32*db}' + (' nt' if OPT['qnt'] else ''))
    if s == OPT['qs'] and OPT['qlds']:
        T = QR + 12 if s >= 8 else 170
        a(f'''s_lshl_b32 s64, s{S_A2}, 6
        s_lshl_b32 s65, s{S_WAVE}, 4
        s_add_u32 s64, s64, s65
        s_mul_i32 s64, s64, 1280
        s_mul_i32 s65, s{S_J2}, 160
        s_add_u32 s64, s64, s65
        s_and_b32 s65, s{S_WAVE}, 1
        s_mul_i32 s65, s65, 2560
        s_cmp_lt_u32 s{S_WAVE}, 2
        s_cselect_b32 s67, {139264 - 91648}, 0
        s_add_u32 s65, s65, s67
        s_add_u32 s65, s65, 91648''')
        for i in range(3):
            a(f'''v_add_u32 v{T}, {64*i}, v0
            v_mul_u32_u24 v{T+1}, 6554, v{T}
            v_lshrrev_b32 v{T+1}, 16, v{T+1}
            v_mul_u32_u24 v1, 10, v{T+1}
            v_sub_u32 v{T}, v{T}, v1
            v_mul_u32_u24 v{T+1}, 1280, v{T+1}
            v_lshl_add_u32 v{T}, v{T}, 4, v{T+1}
            s_add_u32 m0, s65, {1024*i}''')
            a('s_mov_b32 exec_hi, 0' if i == 2 else 's_nop 0')
            vq.issue('q', f'buffer_load_dwordx4 v{T}, {sr(S_X)}, s64 offen lds')
        a('s_mov_b32 exec_hi, -1')
ts(8)
if OPT['redi']:
    a(f's_lshl_b32 s66, s{S_WAVE}, 10\nv_add_u32 v88, s66, v{VL16}\nv_add_u32 v89, {STA}, v88')
    a(f's_mov_b32 s66, {STA + 8192}\ns_cmp_lt_u32 s{S_WAVE}, 2\ns_cselect_b32 s66, s66, {-2048 & 0xffffffff}\nv_add_u32 v90, s66, v88')
    red_write(4)
else:
    a('s_nop 7')
    for w in range(4):
        L = a.label('L_red')
        a(f's_cmp_lg_u32 s{S_WAVE}, {w}\ns_cbranch_scc1 {L}')
        for k in range(3):
            o = (w + 1 + k) & 3
            for db in range(5):
                a(f'ds_write_b128 v{174 if k < 2 else 172}, {vr(ACC2+4*(db*4+o))} offset:{(k & 1)*5120 + db*1024}')
        for db in range(5):
            for i in range(4): a(f'v_mov_b32 v{8+4*db+i}, v{ACC2+4*(db*4+w)+i}')
        for k in range(3):
            sw = (w - 1 - k) & 3
            a(f'v_add_u32 v{88+k}, {(STA if k < 2 else STB) + sw*10240 + (k & 1)*5120}, v{VL16}')
        a(f'{L}:')
a(f'''v_lshrrev_b32 v2, 2, v0
v_bfe_u32 v1, v2, 1, 2
v_xor_b32 v1, s{S_WAVE}, v1
v_lshlrev_b32 v1, 5, v1
v_lshl_add_u32 v2, v2, 7, v1
v_and_b32 v1, 3, v0
v_lshl_add_u32 v2, v1, 3, v2
v_add_u32 v2, {Y2L}, v2
v_bfe_u32 v91, v0, 4, 1
v_mul_u32_u24 v91, 24, v91
v_add_u32 v91, v91, v{VQO}
v_and_b32 v124, 15, v0
v_mul_u32_u24 v124, 160, v124
v_lshrrev_b32 v125, 4, v0
v_lshl_add_u32 v124, v125, 3, v124
v_add_u32 v124, s65, v124
s_waitcnt vmcnt(0)
v_sub_f32 v{QR+11}, 1.0, v{QR+10}''')
if OPT['qlds']:
    for db in range(5): a(f'ds_read_b64 {vr(QR+2*db,2)}, v124 offset:{32*db}')
a('s_waitcnt lgkmcnt(0)\ns_barrier')
ts(6)
YR = 92
for db in range(5): a(f'ds_read_b64_tr_b16 {vr(YR+2*db,2)}, v2 offset:{db*2048}')
if OPT['redi']:
    for k in range(4):
        for db in range(5):
            base, off = (89, db*4096) if db < 2 else (90, 0) if db == 2 else (88, (4*db-10)*1024)
            a(f'ds_read_b128 {vr(8+20*k+4*db)}, v{base} offset:{off + k*10240}')
    a('s_waitcnt lgkmcnt(15)')
else:
    for k in range(3):
        for db in range(5): a(f'ds_read_b128 {vr(28+20*k+4*db)}, v{88+k} offset:{db*1024}')
    a('s_waitcnt lgkmcnt(15)')
PR = 132
for db in range(5):
    for h in range(2):
        q = QR + 2*db + h; y = YR + 2*db + h; p = PR + 4*db + 2*h
        a(f'''v_lshlrev_b32 v124, 16, v{q}
        v_and_b32 v125, 0xffff0000, v{q}
        v_lshlrev_b32 v126, 16, v{y}
        v_and_b32 v127, 0xffff0000, v{y}
        v_mul_f32 v124, v124, v126
        v_mul_f32 v125, v125, v127
        v_mul_f32 v{p}, v{QR+10}, v124
        v_mul_f32 v{p+1}, v{QR+10}, v125''')
for k in range(3):
    a(f's_waitcnt lgkmcnt({10-5*k})')
    for i in range(20): a(f'v_add_f32 v{8+i}, v{8+i}, v{28+20*k+i}')
for db in range(5):
    for i in range(4): a(f'v_fma_f32 v{PR+4*db+i}, v{QR+11}, v{8+4*db+i}, v{PR+4*db+i}')
    a(f'v_cvt_pk_bf16_f32 v{152+2*db}, v{PR+4*db}, v{PR+1+4*db}\nv_cvt_pk_bf16_f32 v{153+2*db}, v{PR+2+4*db}, v{PR+3+4*db}')
    sfx = ['', ' sc1', ' nt', ' sc1 nt'][OPT['osc']]
    if OPT['wst'] and db in (1, 3):
        r = 152 + 2 * (db - 1)
        a(f's_nop 1\nv_permlane16_swap_b32 v{r}, v{r+2}\nv_permlane16_swap_b32 v{r+1}, v{r+3}')
        a(f'buffer_store_dwordx4 {vr(r)}, v91, {sr(S_A)}, 0 offen offset:{32*(db-1)}' + sfx)
    elif db == 4 or not OPT['wst']:
        a(f'buffer_store_dwordx2 {vr(152+2*db,2)}, v{VQO}, {sr(S_A)}, 0 offen offset:{32*db}' + sfx)
ts(9)
if OPT['tsg']:
    a(f's_lshl_b32 s64, s2, 2\ns_add_u32 s64, s64, s{S_WAVE}\ns_lshl_b32 s64, s64, 6\ns_add_u32 s64, s64, {DIAG + 0x30000}\nv_lshlrev_b32 v1, 2, v0\ns_mov_b64 exec, 0xffff')
    a(f'buffer_store_dword v175, v1, {sr(S_WS)}, s64 offen\ns_mov_b64 exec, -1')
ts_dump()
a('s_endpgm')

LW = 66
CACC = 32; CA = [64, 128]; CB = [96, 160]
def conv_T():
    srd(a, S_A, P_SSM, 640*4096)
    srd(a, S_B, P_SSMD, 1280)
    a(f's_lshl_b32 s69, s67, 12\ns_add_u32 s70, s68, {TSZ}\nv_lshlrev_b32 v10, 4, v0')
    for phi in (0, 2):
        a(f's_add_u32 s71, s69, {2*phi}')
        a(f's_add_u32 m0, s68, {phi*CS + 32}\ns_nop 0')
        for i in range(4): a(f'buffer_load_dwordx4 v10, {sr(S_A)}, s71 offen offset:{i*1024}{NTS} lds')
    a(f'''v_lshrrev_b32 v1, 4, v0
    v_and_b32 v2, 15, v0
    v_add3_u32 v3, v1, v2, -16
    v_lshlrev_b32 v4, 1, v3
    v_add_u32 v4, s69, v4
    v_cmp_gt_i32 vcc, 0, v3
    s_lshl_b32 s71, s67, 1
    v_mov_b32 v7, s71
    v_cndmask_b32 v4, v4, -1, vcc
    buffer_load_ushort v5, v4, {sr(S_A)}, 0 offen
    buffer_load_ushort v7, v7, {sr(S_B)}, 0 offen''')
def conv_uT():
    a(f's_add_u32 s71, s69, {UT}\ns_mov_b32 m0, s70\ns_nop 0')
    for i in range(4): a(f'buffer_load_dwordx4 v10, {sr(S_WS)}, s71 offen offset:{i*1024} sc1 lds')
def conv_addr():
    a(f'''v_mul_u32_u24 v8, {CS}, v1
    v_add_u32 v8, s68, v8
    v_lshl_add_u32 v9, v2, 1, v8
    v_add_u32 v11, s68, v10
    v_mov_b32 v12, 0
    v_mov_b32 v13, 0
    v_lshl_add_u32 v14, v0, 3, s70
    ds_write_b64 v14, v[12:13] offset:4096
    v_add_u32 v3, 1, v2
    v_and_b32 v4, 3, v3
    v_sub_u32 v3, v3, v4
    v_lshl_add_u32 v3, v1, 3, v3
    v_mul_u32_u24 v4, {CS}, v4
    v_lshl_add_u32 v20, v3, 1, v4
    v_add_u32 v20, s68, v20
    v_lshlrev_b32 v3, 4, v1
    v_lshlrev_b32 v4, 5, v2
    v_sub_u32 v3, v3, v4
    v_add_u32 v3, {2*(2032-1792)}, v3
    v_add_u32 v21, s70, v3''')
    for i in range(32): a(f'v_mov_b32 v{CACC+i}, 0')
def conv_build():
    for i in range(4):
        b = 64 + 16 * i
        a(f'''ds_read_b128 {vr(b)}, v11 offset:{32 + i*1024}
        ds_read_b128 {vr(b+4)}, v11 offset:{2*CS + 32 + i*1024}
        ds_read_b64 {vr(b+10,2)}, v11 offset:{32 + i*1024 + 16}''')
    a('ds_write_b16 v9, v5\nv_lshlrev_b32 v7, 16, v7')
    for i in range(4):
        b = 64 + 16 * i
        a(f's_waitcnt lgkmcnt({min(15, 3*(3-i) + 1 + 2*i)})')
        for k in range(4): a(f'v_alignbit_b32 v{b+12+k}, v{b+4+k}, v{b+k}, 16')
        C = [b+2, b+3, b+10, b+11]
        for k in range(4): a(f'v_alignbit_b32 v{b+4+k}, v{C[k]}, v{b+4+k}, 16')
        a(f'ds_write_b128 v11, {vr(b+12)} offset:{CS + 32 + i*1024}\nds_write_b128 v11, {vr(b+4)} offset:{3*CS + 32 + i*1024}')

a('L_loader:')
if OPT['lprio']: a(f's_setprio {OPT["lprio"]}')
tsx(4)
a(f'''s_sub_u32 s{LW}, s{S_WAVE}, 4
v_lshrrev_b32 v3, 3, v0
s_lshl_b32 s67, s{LW}, 5
s_lshl_b32 s68, s{S_MT}, 7
s_add_u32 s67, s67, s68
v_bfe_u32 v4, v3, 1, 3
v_and_b32 v5, 7, v0
v_xor_b32 v4, v4, v5
v_add_u32 v3, s67, v3
v_mul_u32_u24 v3, 1280, v3
v_lshl_add_u32 v200, v4, 4, v3
v_xor_b32 v4, 4, v4
v_lshl_add_u32 v201, v4, 4, v3
v_add_u32 v201, {8*1280}, v201
v_add_u32 v202, {16*1280}, v200
v_add_u32 v203, {16*1280}, v201
v_bfe_u32 v3, v0, 2, 2
s_lshl_b32 s67, s{LW}, 4
v_add_u32 v3, s67, v3
v_mul_u32_u24 v3, 3072, v3
v_lshrrev_b32 v4, 4, v0
v_lshl_add_u32 v3, v4, 6, v3
v_and_b32 v4, 3, v0
v_lshl_add_u32 v3, v4, 4, v3
s_lshl_b32 s67, s{S_NT}, 8
v_add_u32 v204, s67, v3
v_add_u32 v205, {4*3072}, v204
v_xor_b32 v206, 32, v204
v_add_u32 v206, {8*3072}, v206
v_add_u32 v207, {4*3072}, v206
s_add_u32 s68, s{S_MT}, s{S_NT}
s_mul_i32 s69, s68, 6554
s_lshr_b32 s69, s69, 16
s_mul_i32 s69, s69, 10
s_sub_u32 s68, s68, s69''')
if OPT['nrot'] >= 100:
    cm, cn = (OPT['nrot'] // 10) % 10, OPT['nrot'] % 10
    a(f's_mul_i32 s68, s{S_MT}, {cm}\ns_mul_i32 s69, s{S_NT}, {cn}\ns_add_u32 s68, s68, s69\ns_mul_i32 s69, s68, 13108\ns_lshr_b32 s69, s69, 16\ns_mul_i32 s69, s69, 5\ns_sub_u32 s68, s68, s69\ns_lshl_b32 s68, s68, 1')
if OPT['nrot'] == 1: a('s_mov_b32 s68, 0')
if OPT['nrot'] == 2: a('s_and_b32 s68, s68, 1\ns_mul_i32 s68, s68, 5')
if OPT['nrot'] == 5: a('s_and_b32 s68, s68, 14')
if OPT['nrot'] == 3: a('s_mul_i32 s69, s68, 86\ns_lshr_b32 s69, s69, 8\ns_mul_i32 s69, s69, 3\ns_sub_u32 s68, s68, s69\ns_mul_i32 s68, s68, 3')
a(f'''s_lshl_b32 s69, s{LW}, 12
s_mov_b32 s71, 0
s_waitcnt lgkmcnt(0)
s_load_dword s{S_TAG}, s[{P_WS}:{P_WS+1}], {EPOCH}''')
tsx(5)
srd(a, S_X, P_Q, 2048*1280)
srd(a, S_WG, P_WG, 640*3072)
srd(a, S_WU, P_WU, 640*3072)
if OPT['bpre']: a('s_barrier')
def g1_issue():
    a(f's_lshl_b32 s72, s68, 7\ns_mul_i32 s73, s68, {64*3072}\ns_add_u32 s74, s71, s69')
    for j in range(4):
        a(f's_add_u32 m0, s74, {j*1024}\n' + ('s_add_u32 s68, s68, 1' if j == 0 else 's_nop 0'))
        a(f'buffer_load_dwordx4 v{200+j}, {sr(S_X)}, s72 offen{NTX} lds')
    for n in range(4):
        a(f's_add_u32 m0, s74, {16384 + n*1024}\ns_nop 0')
        a(f'buffer_load_dwordx4 v{204+n}, {sr(S_WG)}, s73 offen{NTG} lds')
        a(f's_add_u32 m0, s74, {32768 + n*1024}\ns_nop 0')
        a(f'buffer_load_dwordx4 v{204+n}, {sr(S_WU)}, s73 offen{NTG} lds')
    a(f'''s_cmp_ge_u32 s68, 10
    s_cselect_b32 s68, 0, s68
    s_add_u32 s71, s71, {STAGE}
    s_cmp_eq_u32 s71, {3*STAGE}
    s_cselect_b32 s71, 0, s71''')
tsx(6)
g1_issue()
tsx(7)
srd(a, S_WS, P_WS, WS_SIZE)
a(f'''v_lshlrev_b32 v15, 7, v0
v_add_u32 v16, {F1 + 0x2000}, v15
v_add_u32 v17, {F1 + 0x4000}, v15
v_add_u32 v18, {F1 + 0x6000}, v15
v_add_u32 v19, {F1 + 0x8000}, v15
v_add_u32 v15, {F1}, v15
v_lshl_add_u32 v3, v0, 2, 0
v_add_u32 v3, {CNT}, v3
v_mov_b32 v4, 0
ds_write_b32 v3, v4
v_mov_b32 v196, {CNT}
v_mov_b32 v199, 1
s_waitcnt lgkmcnt(0)''')
make_tag()
g1_issue()
a('s_mov_b32 s76, 0')
ts(1)
a('L_ld_loop:\ns_waitcnt vmcnt(12)')
a('s_barrier')
if TS == 1: a('s_memrealtime s[100:101]\ns_waitcnt lgkmcnt(0)\ns_mov_b32 m0, s76\ns_nop 0\nv_writelane_b32 v220, s100, m0')
g1_issue()
a('s_add_u32 s76, s76, 1\ns_cmp_lt_u32 s76, 8\ns_cbranch_scc1 L_ld_loop')
assert OPT['fl'] + 2 <= 7
a(f'''s_and_b32 s64, s2, 7
s_lshl_b32 s64, s64, 7
s_add_u32 s64, s64, {SUMW}
v_mov_b32 v15, s64
s_cmp_lg_u32 s{LW}, 2
s_cbranch_scc1 L_b8n''')
packed_lane(16, 64, F1)
a(f'''buffer_load_dwordx4 v[224:227], v16, {sr(S_WS)}, 0 offen sc1
buffer_load_dword v222, v15, {sr(S_WS)}, 0 offen sc1
s_waitcnt vmcnt(14)
s_branch L_b8
L_b8n:
s_waitcnt vmcnt(12)
L_b8:
s_barrier''')
ts(2)
if TS == 1:
    a(f's_lshl_b32 s64, s2, 2\ns_add_u32 s64, s64, s{LW}\ns_lshl_b32 s64, s64, 6\ns_add_u32 s64, s64, {DIAG + 0x20000}\nv_lshlrev_b32 v1, 2, v0\ns_mov_b64 exec, 0xff')
    a(f'buffer_store_dword v220, v1, {sr(S_WS)}, s64 offen\ns_mov_b64 exec, -1')
NT_ = 1 if TS == 1 else 0
a(f's_cmp_ge_u32 s{LW}, 2\ns_cbranch_scc1 L_ld67')
a(f'''s_and_b32 s67, s2, 7
s_mul_i32 s67, s67, 24
s_lshr_b32 s68, s2, 3
s_add_u32 s67, s67, s68
s_lshl_b32 s67, s67, 1
s_add_u32 s67, s67, s{LW}
s_mul_i32 s68, s{LW}, {CVSZ}
s_add_u32 s68, s68, {CVREG[0]}''')
if OPT['x'] & 1:
    a('s_waitcnt vmcnt(0)\ns_barrier')
    packed_off(71, 67, F3, 72); flag_store(71, 3, 4); a('s_branch L_join')
conv_T()
conv_addr()
a(f's_waitcnt vmcnt({10 + NT_})')
if OPT['ut8']:
    a(f'ds_read_b32 v197, v196 offset:{C_OK}\ns_waitcnt lgkmcnt(0)\nv_readfirstlane_b32 s57, v197\ns_nop 0\ns_cmp_eq_u32 s57, 0\ns_cbranch_scc1 L_cv_l')
    conv_uT()
    a('s_barrier\ns_branch L_cv_b\nL_cv_l:')
a('s_barrier')
lds_wait(196, 197, C_OK, 1, 1)
conv_uT()
a('L_cv_b:')
ts(4)
a('s_waitcnt vmcnt(4)')
conv_build()
a(f's_mov_b32 s74, {3 if OPT["helpc"] else 4}\ns_mov_b32 s75, {1 if OPT["helpc"] else 0}\ns_lshl_b32 s72, s{LW}, 2\nv_add_u32 v198, s72, v196\ns_waitcnt vmcnt(0) lgkmcnt(0)')
lds_add(198, 199, C_RD)
a('L_conv_main:\ns_waitcnt vmcnt(0)')
ts(6)
a(f's_setprio {OPT["prio"]}')
def conv_reads(fs):
    r = []
    def A(k): return [(f'A{k}{fs}', f'ds_read_b64 {vr(CA[fs]+4*k,2)}, v20 offset:{k*512}'), (f'A{k}{fs}', f'ds_read_b64 {vr(CA[fs]+4*k+2,2)}, v20 offset:{k*512+8}')]
    def B(d): return [(f'B{d}{fs}', f'ds_read_b128 {vr(CB[fs]+4*d)}, v21 offset:{(7-d)*512}')]
    r += A(0)
    for d in range(8): r += B(d)
    for k in range(1, 8): r += A(k)
    return r
lq = Q('lgkmcnt', 15)
for tag, ins in conv_reads(0): lq.issue(tag, ins)
a('s_mov_b32 s71, 0\n.p2align 3\nL_conv_loop:')
for fs in range(2):
    nxt = conv_reads(fs ^ 1)
    a('v_add_u32 v20, 64, v20\nv_add_u32 v21, 64, v21')
    n = 0
    for k in range(8):
        for q in range(k, 8):
            lq.need({f'A{k}{fs}', f'B{q-k}{fs}'})
            a(f'v_mfma_f32_16x16x32_bf16 {vr(CACC+4*q)}, {vr(CA[fs]+4*k)}, {vr(CB[fs]+4*(q-k))}, {vr(CACC+4*q)}')
            n += 1
            if n >= 9 and nxt:
                tag, ins = nxt.pop(0); lq.issue(tag, ins)
    assert not nxt
a('s_add_u32 s71, s71, 1\ns_cmp_lt_u32 s71, s74\ns_cbranch_scc1 L_conv_loop')
a('s_cmp_eq_u32 s75, 2\ns_cbranch_scc1 L_help_dump\ns_cmp_eq_u32 s75, 0\ns_cbranch_scc1 L_conv_ep')
lds_wait(198, 197, C_HD, 1, 1)
a(f's_mul_i32 s72, s{LW}, {PART[1] - PART[0]}\ns_add_u32 s72, s72, {PART[0]}\nv_add_u32 v3, s72, v10')
for q in range(8): a(f'ds_read_b128 {vr(128+4*q)}, v3 offset:{q*1024}')
for q in range(8):
    a(f's_waitcnt lgkmcnt({7-q})')
    for i in range(4): a(f'v_add_f32 v{CACC+4*q+i}, v{CACC+4*q+i}, v{128+4*q+i}')
a('L_conv_ep:')
ts(7)
a(f'''s_waitcnt lgkmcnt(0)
v_lshlrev_b32 v3, 3, v1
v_lshl_add_u32 v3, v2, 5, v3
v_sub_u32 v4, {2*(2044-1792)}, v3
v_add_u32 v4, s70, v4
v_add_u32 v3, s68, v3''')
for q in range(8): a(f'ds_read_b64 {vr(64+2*q,2)}, v4 offset:{(7-q)*512}')
for q in range(8):
    u = 64 + 2*q; y = CACC + 4*q; t = 96 + 4*q
    a(f'''s_waitcnt lgkmcnt(7)
    v_and_b32 v{t}, 0xffff0000, v{u+1}
    v_lshlrev_b32 v{t+1}, 16, v{u+1}
    v_and_b32 v{t+2}, 0xffff0000, v{u}
    v_lshlrev_b32 v{t+3}, 16, v{u}''')
    for i in range(4): a(f'v_fma_f32 v{y+i}, v{t+i}, v7, v{y+i}')
    a(f'v_cvt_pk_bf16_f32 v{u}, v{y}, v{y+1}\nv_cvt_pk_bf16_f32 v{u+1}, v{y+2}, v{y+3}')
    a(f'ds_write_b64 v3, {vr(u,2)} offset:{q*512}')
a(f's_add_u32 s71, s69, {Y2T}\ns_waitcnt lgkmcnt(0)')
for i in range(4): a(f'ds_read_b128 {vr(96+4*i)}, v11 offset:{i*1024}')
for i in range(4):
    a(f's_waitcnt lgkmcnt({3-i})')
    a(f'buffer_store_dwordx4 {vr(96+4*i)}, v10, {sr(S_WS)}, s71 offen offset:{i*1024} sc1')
lds_add(196, 199, C_CV)
packed_off(71, 67, F3, 72)
a('s_waitcnt vmcnt(0)')
flag_store(71, 3, 4)
ts(8)
a(f's_setprio 0\ns_cmp_lg_u32 s{LW}, 3\ns_cbranch_scc1 L_join')
lds_wait(196, 197, C_CV, 4, 2)
lds_wait(196, 197, C_OKW, 1, 2)
a('s_branch L_w7')
a('L_ld67:')
a(f's_waitcnt vmcnt({NT_})\ns_cmp_eq_u32 s{LW}, 3\ns_cbranch_scc1 L_ld7a')
for i in range(4): a(f'v_xor_b32 v{224+i}, s{S_TAG}, v{224+i}')
a('v_or3_b32 v224, v224, v225, v226\nv_or_b32 v224, v224, v227\nv_cmp_ne_u32 vcc, 0, v224\ns_cmp_eq_u64 vcc, 0\ns_cselect_b32 s72, 1, 0\ns_cbranch_scc0 L_w6a')
lds_add(196, 199, C_OK)
a(f'L_w6a:\nv_cmp_ne_u32 vcc, s{S_TAG}, v222\ns_cmp_eq_u64 vcc, 0\ns_cselect_b32 s73, 1, 0\ns_cbranch_scc0 L_w6b')
lds_add(196, 199, C_OKW)
a('L_w6b:\ns_barrier\ns_cmp_eq_u32 s72, 1\ns_cbranch_scc1 L_w6c')
poll4(16, 224, 2)
lds_add(196, 199, C_OK)
a('L_w6c:')
ts(4)
a('s_cmp_eq_u32 s73, 1\ns_cbranch_scc1 L_w6e')
poll([15], 20, 2)
lds_add(196, 199, C_OKW)
a('s_branch L_w6e\nL_ld7a:\ns_barrier\ns_branch L_ld7\nL_w6e:')
ts(5)
a(f's_cmp_lg_u32 s2, 0\ns_cbranch_scc1 L_help\ns_mov_b32 s71, {EPOCH}')
flag_store(71, 3, 4)
a('L_help:')
if not OPT['helpc']: a('s_branch L_join')
a(f'''s_mov_b32 s76, 0
s_mov_b32 s74, 1
s_mov_b32 s75, 2
v_lshrrev_b32 v1, 4, v0
v_and_b32 v2, 15, v0
v_lshlrev_b32 v10, 4, v0
v_add_u32 v3, 1, v2
v_and_b32 v4, 3, v3
v_sub_u32 v3, v3, v4
v_lshl_add_u32 v3, v1, 3, v3
v_mul_u32_u24 v4, {CS}, v4
v_lshl_add_u32 v22, v3, 1, v4
v_add_u32 v22, {CVREG[0] + 6*64}, v22
v_lshlrev_b32 v3, 4, v1
v_lshlrev_b32 v4, 5, v2
v_sub_u32 v3, v3, v4
v_add_u32 v23, {CVREG[0] + TSZ + 2*(2032-1792) + 6*64}, v3
v_mov_b32 v198, v196
v_add_u32 v24, {PART[0]}, v10
L_help_next:
v_mov_b32 v20, v22
v_mov_b32 v21, v23''')
for i in range(32): a(f'v_mov_b32 v{CACC+i}, 0')
lds_wait(198, 197, C_RD, 1, 1)
a('s_branch L_conv_main\nL_help_dump:')
lds_wait(196, 197, C_H, 4, 1)
for q in range(8): a(f'ds_write_b128 v24, {vr(CACC+4*q)} offset:{q*1024}')
a('s_waitcnt lgkmcnt(0)')
lds_add(198, 199, C_HD)
a(f'''v_add_u32 v198, 4, v198
v_add_u32 v22, {CVSZ}, v22
v_add_u32 v23, {CVSZ}, v23
v_add_u32 v24, {PART[1] - PART[0]}, v24
s_add_u32 s76, s76, 1
s_cmp_lt_u32 s76, 2
s_cbranch_scc1 L_help_next
s_setprio 0
s_branch L_join
L_ld7:''')
if not OPT['sta9']:
    lds_wait(196, 197, C_OKW, 1, 1)
a('s_mov_b32 s3, 1\ns_branch L_w7b')
a('L_w7:\ns_mov_b32 s3, 0\nL_w7b:')
g2_roles(67, 68, 78, 79, 64)
a(f'''v_lshlrev_b32 v10, 4, v0
v_add_u32 v11, 4096, v10
s_mul_i32 s75, s68, {48*5120}
s_add_u32 s75, s75, {WS_SIZE if OPT['x'] & 8 else WDP}''')
for _ in range(4): step12(78, 79, 64)
def stash(ldsbase):
    for i in range(2):
        a('s_mul_i32 s72, s78, 5120\ns_add_u32 s72, s72, s75')
        step12(78, 79, 64)
        for w in range(4):
            a(f's_mov_b32 m0, {ldsbase + w*10240 + i*5120}\ns_nop 0')
            for db in range(4): a(f'buffer_load_dwordx4 v10, {sr(S_WS)}, s72 offen offset:{db*1024} sc1 lds')
            a(f's_mov_b32 m0, {ldsbase + w*10240 + i*5120 + 4096}\ns_nop 0')
            a(f'buffer_load_dwordx4 v11, {sr(S_WS)}, s72 offen sc1 lds')
            if w < 3: a(f's_add_u32 s72, s72, {12*5120}')
a(f'''s_mul_i32 s68, s68, 80
s_lshl_b32 s69, s68, 4
''')
packed_lane(12, 20, F3)
a(f'''v_add_u32 v12, s69, v12
v_lshrrev_b32 v3, 3, v0
v_and_b32 v4, 7, v0
v_lshlrev_b32 v5, 4, v4
v_lshl_add_u32 v5, v3, 12, v5
v_and_b32 v6, 6, v3
v_xor_b32 v6, v6, v4
v_lshlrev_b32 v6, 4, v6
v_lshl_add_u32 v6, v3, 7, v6
v_add_u32 v6, {Y2L}, v6
s_lshl_b32 s69, s68, 12
s_lshl_b32 s70, s67, 7
s_add_u32 s69, s69, s70
s_add_u32 s69, s69, {Y2T}''')
if OPT['sta9']:
    a('s_cmp_eq_u32 s3, 0\ns_cbranch_scc1 L_w7c')
    lds_wait(196, 197, C_OKW, 1, 1)
    a('L_w7c:')
    stash(STA)
lds_wait(196, 197, C_H, 4, 2)
ts(4)
if not OPT['sta9']: stash(STA)
if OPT['lateb']:
    a('s_waitcnt vmcnt(0)')
    lds_add(196, 199, C_ST)
    lds_wait(196, 197, C_H, 8, 2)
    stash(STB)
else:
    stash(STB)
    a('s_waitcnt vmcnt(40)')
    lds_add(196, 199, C_ST)
a('s_waitcnt vmcnt(0)')
lds_add(196, 199, C_ST)
ts(5)
lds_wait(196, 197, C_H, 12, 4)
if not OPT['x'] & 4: poll4(12, 16, 4)
ts(1)
for i in range(10):
    a(f'buffer_load_dwordx4 {vr(16+4*i)}, v5, {sr(S_WS)}, s69 offen sc1')
    if i < 9: a(f's_add_u32 s69, s69, {8*4096}')
for i in range(10):
    a(f's_waitcnt vmcnt({9-i})')
    a(f'ds_write_b128 v6, {vr(16+4*i)} offset:{i*1024}')
ts(2)
a('L_join:\ns_waitcnt lgkmcnt(0)\ns_barrier')
ts(9)
ts_dump()
a('s_endpgm')

a('L_aux:')
WDL = 40960
GX = 104; GW = 132; G = 140
a(f'''s_and_b32 s3, s2, 7
s_lshl_b32 s3, s3, 3
s_bfe_u32 s64, s2, 0x30003
s_add_u32 s3, s3, s64
s_sub_u32 s{LW}, s{S_WAVE}, 4
v_lshlrev_b32 v8, 4, v0
v_lshlrev_b32 v9, 2, v0
v_add_u32 v3, {CNT}, v9
v_mov_b32 v4, 0
ds_write_b32 v3, v4
v_mov_b32 v196, {CNT}
v_mov_b32 v199, 1
s_mul_i32 s77, s{S_WAVE}, 4608''')
def aux_pf():
    if not OPT['apf']: return
    srd(a, S_WG, P_WG, 640*3072); srd(a, S_WU, P_WU, 640*3072); srd(a, S_X, P_Q, 2048*1280)
    a(f'''v_lshrrev_b32 v3, 3, v0
    v_mul_u32_u24 v3, 1280, v3
    v_and_b32 v4, 7, v0
    v_lshl_add_u32 v3, v4, 4, v3
    s_add_u32 s64, s{S_WAVE}, 2
    s_mul_i32 s65, s3, {32*1280}
    s_lshl_b32 s72, s64, 7
    s_add_u32 s65, s65, s72
    s_lshl_b32 s72, s64, 6
    s_add_u32 s72, s72, s3
    s_mul_i32 s72, s72, 3072''')
    for i in range(3):
        a(f'buffer_load_dwordx4 v[60:63], v8, {sr(S_WG)}, s72 offen offset:{1024*i}')
        a(f'buffer_load_dwordx4 v[60:63], v8, {sr(S_WU)}, s72 offen offset:{1024*i}')
    for i in range(4):
        a(f'buffer_load_dwordx4 v[60:63], v3, {sr(S_X)}, s65 offen\ns_add_u32 s65, s65, {8*1280}')
pass_setup_loads(3, S_WAVE, 77, 1, aux_pf)
def aux_wdg_loads():
    srd(a, S_WG, P_WD, 1536*1280); srd(a, S_WU, P_GW, 1280); srd(a, S_X, P_Q, 2048*1280)
    a(f's_lshl_b32 s79, s{S_WAVE}, 12\ns_add_u32 s79, s79, {WDL}')
    for i in range(2):
        a(f'''s_mul_i32 s64, s3, 15
        s_lshl_b32 s65, s{S_WAVE}, 1
        s_add_u32 s65, s65, {i}
        s_add_u32 s64, s64, s65
        s_mul_i32 s{68+2*i}, s64, 3277
        s_lshr_b32 s{68+2*i}, s{68+2*i}, 16
        s_mul_i32 s72, s{68+2*i}, 20
        s_sub_u32 s{69+2*i}, s64, s72
        s_cmp_ge_u32 s65, 15
        s_cselect_b32 s{68+2*i}, 100, s{68+2*i}
        s_mul_i32 s72, s{68+2*i}, {32*1280}
        s_lshl_b32 s73, s{69+2*i}, 6
        s_add_u32 s72, s72, s73
        s_add_u32 s73, s72, {16*1280}
        s_add_u32 m0, s79, {2048*i}
        s_nop 0
        buffer_load_dwordx4 v12, {sr(S_WG)}, s72 offen{NTW} lds
        s_add_u32 m0, s79, {2048*i + 1024}
        s_nop 0
        buffer_load_dwordx4 v12, {sr(S_WG)}, s73 offen{NTW} lds''')
    a(f'''s_lshl_b32 s76, s3, 3
s_add_u32 s76, s76, s{S_WAVE}
s_mul_i32 s67, s76, {4*1280}
s_add_u32 s72, s67, {3*1280}
buffer_load_dwordx4 {vr(GW)}, v8, {sr(S_WU)}, 0 offen
buffer_load_dword v{GW+4}, v9, {sr(S_WU)}, 0 offen offset:1024''')
    for i in range(4):
        so, o = (67, 1280 * i) if i < 3 else (72, 0)
        a(f'buffer_load_dwordx4 {vr(GX+6*i)}, v8, {sr(S_X)}, s{so} offen offset:{o}')
        a(f'buffer_load_dword v{GX+6*i+4}, v9, {sr(S_X)}, s{so} offen offset:{o+1024}')
a(f's_lshl_b32 s79, s{S_WAVE}, 12\ns_add_u32 s79, s79, {WDL}')
if not OPT['aord']: aux_wdg_loads()
if OPT['cpf']:
    a(f'''s_getpc_b64 s[72:73]
    L_pc:
    s_sub_u32 s72, s72, L_pc - {NAME}_kernel
    s_subb_u32 s73, s73, 0
    s_and_b32 s64, s3, 7
    s_mul_i32 s64, s64, (L_end - {NAME}_kernel) >> 10
    s_cmp_lg_u32 s{S_WAVE}, 7
    s_cselect_b32 s65, 0, ((L_end - {NAME}_kernel) >> 10) - 1
    v_min_u32 v3, s65, v0
    v_add_lshl_u32 v3, v3, s64, 7
    global_load_dword v39, v3, s[72:73]''')
NC = 1 if OPT['cpf'] else 0
ts(1)
srd(a, S_WS, P_WS, WS_SIZE)
pass_addr(3, S_WAVE, 77, 78)
a(f'''v_lshrrev_b32 v38, 2, v0
v_lshlrev_b32 v38, 6, v38
v_lshl_add_u32 v38, v18, 3, v38
v_add_u32 v38, s79, v38
s_waitcnt lgkmcnt(0)
s_barrier''')
make_tag()
a(f's_waitcnt vmcnt({(0 if OPT["aord"] else 14) + NC})')
ts(2)
pass_body(78, 67, 40)
if OPT['aord']: aux_wdg_loads()
def count_flag(coff, foff, L):
    a(f'''s_mov_b64 exec, 1
    ds_add_rtn_u32 v39, v196, v199 offset:{coff}
    s_mov_b64 exec, -1
    s_waitcnt lgkmcnt(0)
    v_readfirstlane_b32 s67, v39
    ''')
    packed_off(72, 3, foff, 73)
    a(f'''s_cmp_lg_u32 s67, 7
    s_cbranch_scc1 {L}''')
    flag_store(72, 1, 39)
    a(f'{L}:')
if OPT['aord']:
    a('s_waitcnt vmcnt(14)')
    count_flag(C_P, F1 + 24*128, 'L_ax_nf1')
    ts(3)
    a('s_waitcnt vmcnt(10)')
else:
    a(f's_waitcnt vmcnt({12 + NC})')
for i in range(4):
    o = 2048 * (i >> 1) + 32 * (i & 1)
    a(f'ds_read_b64_tr_b16 {vr(148+4*i,2)}, v38 offset:{o}\nds_read_b64_tr_b16 {vr(150+4*i,2)}, v38 offset:{o+1024}')
if OPT['aord']:
    a('s_waitcnt lgkmcnt(0)')
else:
    a('s_waitcnt vmcnt(0)')
    count_flag(C_P, F1 + 24*128, 'L_ax_nf1')
    ts(3)
for i in range(4):
    ks, pr = 68 + 2 * (i >> 1), 69 + 2 * (i >> 1)
    a(f'''s_lshl_b32 s64, s{pr}, 1
    s_add_u32 s64, s64, {i & 1}
    s_mul_i32 s65, s64, 13108
    s_lshr_b32 s65, s65, 16
    s_mul_i32 s72, s65, 5
    s_sub_u32 s64, s64, s72
    s_mul_i32 s65, s65, 48
    s_add_u32 s65, s65, s{ks}
    s_mul_i32 s65, s65, 5
    s_add_u32 s65, s65, s64
    s_lshl_b32 s65, s65, 10
    s_add_u32 s65, s65, {WDP}
    s_cmp_ge_u32 s{ks}, 48
    s_cselect_b32 s65, {WS_SIZE}, s65
    buffer_store_dwordx4 {vr(148+4*i)}, v8, {sr(S_WS)}, s65 offen sc1''')
if OPT['aord']: a('s_waitcnt vmcnt(4)')
gate_math(GX, GW, G)
a(f'''s_lshr_b32 s67, s76, 1
s_lshl_b32 s67, s67, 7
s_and_b32 s72, s76, 1
s_lshl_b32 s72, s72, 4
s_add_u32 s67, s67, s72
s_add_u32 s67, s67, {GATE}
v_mov_b32 v1, 0
s_mov_b32 exec_lo, 0
s_mov_b32 exec_hi, 0x80000000
buffer_store_dwordx4 {vr(G)}, v1, {sr(S_WS)}, s67 offen sc1
s_mov_b64 exec, -1
s_waitcnt vmcnt(0)''')
count_flag(C_P2, F1 + 32*128, 'L_ax_nf2')
stamp(3)
a(f's_cmp_lt_u32 s{S_WAVE}, 4\ns_cbranch_scc1 L_ax_c')
lds_wait(196, 197, C_P2, 8, 2)
a(f'''s_lshl_b32 s67, s3, 2
s_add_u32 s67, s67, s{LW}
s_add_u32 s67, s67, 384
s_mov_b32 s68, {CVREG[0]}
s_cmp_eq_u32 s{LW}, 1
s_cselect_b32 s68, {CVREG[1]}, s68
s_cmp_eq_u32 s{LW}, 2
s_cselect_b32 s68, {CVREG[2]}, s68
s_cmp_eq_u32 s{LW}, 3
s_cselect_b32 s68, {CVREG[3]}, s68''')
conv_T()
conv_addr()
a('s_waitcnt vmcnt(0)')
conv_build()
lds_wait(196, 197, C_OK, 1, 2)
conv_uT()
a('s_mov_b32 s74, 4\ns_mov_b32 s75, 0\ns_branch L_conv_main')
a('L_ax_c:')
a(f'''s_and_b32 s64, s3, 7
s_lshl_b32 s64, s64, 2
s_add_u32 s64, s64, s{S_WAVE}        ; 0..31
s_lshr_b32 s65, s3, 3                ; x
s_cmp_lg_u32 s{S_WAVE}, 0
s_cbranch_scc1 L_ax_c1
v_lshlrev_b32 v15, 7, v0
v_add_u32 v16, {F1 + 0x2000}, v15
v_add_u32 v17, {F1 + 0x4000}, v15
v_add_u32 v18, {F1 + 0x6000}, v15
v_add_u32 v19, {F1 + 0x8000}, v15
v_add_u32 v15, {F1}, v15''')
a(f's_lshl_b32 s73, s65, 7\ns_add_u32 s73, s73, {SUMU}\ns_and_b32 s72, s3, 7\ns_cmp_eq_u32 s72, 0\ns_cbranch_scc1 L_agg')
a('v_mov_b32 v15, s73\nv_add_u32 v16, 1024, v15')
if OPT['adir']:
    packed_lane(15, 64, F1)
    poll4(15, 20, OPT['asl'], 72)
else:
    poll([15], 20, OPT['asl'], 72)
lds_add(196, 199, C_OK)
poll([16], 20, OPT['asl'], 72)
lds_add(196, 199, C_OKW)
a('s_branch L_ax_c1\nL_agg:')
packed_lane(15, 64, F1)
packed_lane(16, 16, F1 + 32*128)
stamp(0)
poll4(15, 20, OPT['gsl'], 72)
stamp(1)
flag_store(73, 1, 2)
lds_add(196, 199, C_OK)
poll4(16, 20, OPT['gsl'], 72)
stamp(2)
a('s_add_u32 s73, s73, 1024')
flag_store(73, 1, 2)
lds_add(196, 199, C_OKW)
a('L_ax_c1:')
if OPT['pfe'] & 1:
    srd(a, S_A, P_SSM, 640*4096)
    a(f's_mul_i32 s67, s65, {48*4096}\ns_mul_i32 s72, s64, 6144\ns_add_u32 s67, s67, s72\ns_add_u32 s72, s67, 3072')
    for i in range(6): a(f'buffer_load_dwordx4 v[60:63], v8, {sr(S_A)}, s{67 if i < 3 else 72} offen offset:{(i%3)*1024}')
lds_wait(196, 197, C_OKW, 1, 2)
ts(4)
if OPT['pfe'] & 2:
    a(f'''s_and_b32 s73, s65, 4
    s_mul_i32 s73, s73, {48*5120}
    s_mul_i32 s74, s64, 30720
    s_add_u32 s73, s73, s74
    s_add_u32 s73, s73, {WDP}''')
    for i in range(30):
        a(f'buffer_load_dwordx4 v[60:63], v8, {sr(S_WS)}, s73 offen offset:{(i%3)*1024} sc1')
        if i % 3 == 2: a('s_add_u32 s73, s73, 3072')
if OPT['pfe'] & 4:
    a(f's_add_u32 s67, s67, {UT}\ns_add_u32 s72, s72, {UT}')
    for i in range(6): a(f'buffer_load_dwordx4 v[60:63], v8, {sr(S_WS)}, s{67 if i < 3 else 72} offen offset:{(i%3)*1024} sc1')
if OPT['pfe']:
    a('s_waitcnt vmcnt(0)')
    ts(1)
g2_setup()
a(f'v_mov_b32 v173, {CNT}\nv_mov_b32 v175, 1')
lds_add(173, 175, C_H)
a(f's_mov_b32 s73, {WS_SIZE}\ns_branch L_g2')
a('L_end:\ns_endpgm')
print(wrap(a.text(), grid=256, block=512, lds=LDS_TOTAL, vgpr=256, accum=256))
```

```python
import sys
from asmlib import *

OPT = dict(ts=0, apf=0, x=0, map2=0, wst=1, qlds=1, qs=8, helpc=0, ut8=1, sta9=1, tsa=0, gsl=4, agg=1, xg=0, nt=7, osc=2, qnt=0, cpf=1, tsx=0, wpre=0, tb=1, peel=1, redi=1, hsl=2, pfit=1, bpre=0, tsg=0, rot2=0, prio=1, cprio=3, hpf=0, rf=3, lateb=0, ysig=5, lates=1, adir=1, aord=0, bn=6, fastp=1, lprio=0, fl=3, pfe=0, asl=12, nrot=5)
for x in sys.argv[1:]:
    k, v = x.split('='); OPT[k] = int(v)
TS = OPT['ts']

EPOCH = 0; SUMU = 0x400; SUMW = 0x800; F1 = 0x1000; F3 = 0xC000; F2 = 0x20000; GATE = 0x40000; DIAG = 0x80000
UT = 0x100000; Y2T = 0x380000; HB = 0x600000; WDP = 0xC00000; WS_SIZE = 0xE00000
STAGE = 49152
SPARE = 3 * STAGE
LDS_TOTAL = 163840
CS = 4160
TSZ = 4 * CS
CVSZ = TSZ + 4608
CVREG = [STAGE, STAGE + CVSZ, 2 * STAGE, 0]
Y2L = SPARE
CNT = SPARE + 10240
C_ST, C_H, C_P, C_OK, C_CV, C_OKW, C_P2 = 0, 4, 8, 12, 16, 20, 24
C_RD, C_HD = 32, 40
PART = [40960, 139264]
STA = 2 * STAGE
STB = 0
S_X, S_WG, S_WU, S_WS, S_A, S_B, S_C = 4, 8, 12, 16, 20, 24, 28
P_Q, P_K, P_V, P_SHK, P_SSM, P_SSMD, P_WG, P_WU, P_WD, P_GW, P_OUT, P_WS = 32, 34, 36, 38, 40, 42, 46, 48, 50, 52, 54, 58
S_WAVE, S_TAG, S_MT, S_NT = 60, 61, 62, 63
a = Asm()
NTK = ' nt' if OPT['nt'] & 1 else ''
NTW = ' nt' if OPT['nt'] & 2 else ''
NTS = ' nt' if OPT['nt'] & 4 else ''
NTG = ' nt' if OPT['nt'] & 8 else ''
NTX = ' nt' if OPT['nt'] & 16 else ''
def tsx(i):
    if OPT['tsx']: a(f's_memrealtime s[{80+2*i}:{81+2*i}]')
def ts(i):
    if OPT['tsx'] and i >= 4: return
    if TS in (1, 3): a(f's_memrealtime s[{80+2*i}:{81+2*i}]')
    if TS == 2: a(f's_memtime s[{80+2*i}:{81+2*i}]')
def ts_dump():
    if TS == 3:
        L = a.label('L_dd')
        a(f'''s_cmp_lg_u32 s{S_WAVE}, 0
        s_cbranch_scc1 {L}
        s_load_dwordx2 s[64:65], s[0:1], 96
        s_waitcnt lgkmcnt(0)''')
        srd(a, S_B, 64, 256)
        a('s_not_b32 s66, s80\nv_mov_b32 v2, s66\nv_mov_b32 v1, 0\ns_mov_b64 exec, 1')
        a(f'buffer_atomic_umax v2, v1, {sr(S_B)}, 0 offen')
        for k, i in enumerate((0, 3, 4, 5, 7, 8, 9)):
            a(f'v_mov_b32 v{3+k}, s{80+2*i}')
            if i in (3, 4): a(f's_cmp_ge_u32 s2, 192\ns_cselect_b32 s66, 0, s{80+2*i}\nv_mov_b32 v{3+k}, s66')
            a(f'buffer_atomic_umax v{3+k}, v1, {sr(S_B)}, 0 offen offset:{4+4*k}')
        a(f'{L}:')
        return
    if not TS: return
    a('s_waitcnt lgkmcnt(0)')
    a(f's_lshl_b32 s64, s2, 3\ns_add_u32 s64, s64, s{S_WAVE}\ns_lshl_b32 s64, s64, 6\ns_add_u32 s64, s64, {DIAG}')
    for i in range(10): a(f'v_mov_b32 v{2+i}, s{80+2*i}')
    a('v_mov_b32 v1, 0\ns_mov_b64 exec, 1')
    a(f'buffer_store_dwordx4 v[2:5], v1, s[{S_WS}:{S_WS+3}], s64 offen')
    a(f'buffer_store_dwordx4 v[6:9], v1, s[{S_WS}:{S_WS+3}], s64 offen offset:16')
    a(f'buffer_store_dwordx2 v[10:11], v1, s[{S_WS}:{S_WS+3}], s64 offen offset:32')
def sr(s): return f's[{s}:{s+3}]'
def vr(v, n=4): return f'v[{v}:{v+n-1}]'

class Q:
    def __init__(self, name, cap): self.q = []; self.name = name; self.cap = cap
    def issue(self, tag, ins=None):
        if ins: a(ins)
        self.q.append(tag)
    def need(self, tags):
        if not isinstance(tags, set): tags = {tags}
        idx = max([i for i, t in enumerate(self.q) if t in tags], default=-1)
        if idx >= 0:
            n = len(self.q) - 1 - idx
            a(f's_waitcnt {self.name}({min(n, self.cap)})')
            self.q = self.q[idx+1:]
    def drain(self):
        a(f's_waitcnt {self.name}(0)'); self.q = []

def poll(addr_regs, tmp, slp=1, sc=64):
    L = a.label('L_poll'); D = a.label('L_pdone')
    a(f's_mov_b32 s{sc}, 0')
    a(f'{L}:')
    for i, r in enumerate(addr_regs):
        a(f'buffer_load_dword v{tmp+i}, v{r}, {sr(S_WS)}, 0 offen sc1')
    a('s_waitcnt vmcnt(0)')
    for i in range(len(addr_regs)): a(f'v_xor_b32 v{tmp+i}, s{S_TAG}, v{tmp+i}')
    for i in range(1, len(addr_regs)): a(f'v_or_b32 v{tmp}, v{tmp}, v{tmp+i}')
    a(f'''v_cmp_ne_u32 vcc, 0, v{tmp}
    s_add_u32 s{sc}, s{sc}, 1
    s_cmp_eq_u64 vcc, 0
    s_cbranch_scc1 {D}
    s_sleep {slp}
    s_cmp_lt_u32 s{sc}, 0x8000
    s_cbranch_scc1 {L}
    {D}:''')
def stamp(slot):
    if not OPT['tsa']: return
    a(f"""s_memrealtime s[100:101]
    s_waitcnt lgkmcnt(0)
    v_mov_b32 v62, s100
    v_mov_b32 v63, s72
    s_lshl_b32 s100, s2, 5
    s_add_u32 s100, s100, {DIAG + 0x60000 + slot*8}
    v_mov_b32 v198, 0
    s_mov_b64 exec, 1
    buffer_store_dwordx2 v[62:63], v198, {sr(S_WS)}, s100 offen
    s_mov_b64 exec, -1""")
def poll4(r, tmp, slp=1, sc=64):
    L = a.label('L_poll'); D = a.label('L_pdone')
    a(f"""s_mov_b32 s{sc}, 0
    {L}:
    buffer_load_dwordx4 {vr(tmp)}, v{r}, {sr(S_WS)}, 0 offen sc1
    s_waitcnt vmcnt(0)""")
    for i in range(4): a(f'v_xor_b32 v{tmp+i}, s{S_TAG}, v{tmp+i}')
    a(f"""v_or3_b32 v{tmp}, v{tmp}, v{tmp+1}, v{tmp+2}
    v_or_b32 v{tmp}, v{tmp}, v{tmp+3}
    v_cmp_ne_u32 vcc, 0, v{tmp}
    s_add_u32 s{sc}, s{sc}, 1
    s_cmp_eq_u64 vcc, 0
    s_cbranch_scc1 {D}
    s_sleep {slp}
    s_cmp_lt_u32 s{sc}, 0x8000
    s_cbranch_scc1 {L}
    {D}:""")
def packed_off(dst, idx, base, tmp):
    a(f"""s_lshr_b32 s{dst}, s{idx}, 3
    s_lshl_b32 s{dst}, s{dst}, 7
    s_and_b32 s{tmp}, s{idx}, 7
    s_lshl_b32 s{tmp}, s{tmp}, 2
    s_add_u32 s{dst}, s{dst}, s{tmp}
    s_add_u32 s{dst}, s{dst}, {base}""")
def packed_lane(dst, nlanes, base, first_line_sreg=None):
    a(f"""v_min_u32 v{dst}, {nlanes-1}, v0
    v_and_b32 v197, 1, v{dst}
    v_lshrrev_b32 v{dst}, 1, v{dst}
    v_lshlrev_b32 v{dst}, 7, v{dst}
    v_lshl_add_u32 v{dst}, v197, 4, v{dst}
    v_add_u32 v{dst}, {base}, v{dst}""")
def lds_wait(vaddr, vt, off, val, slp=0, s0=56, s1=57):
    L = a.label('L_lw')
    a(f'''s_mov_b32 s{s0}, 0
    {L}:
    ds_read_b32 v{vt}, v{vaddr} offset:{off}
    s_add_u32 s{s0}, s{s0}, 1
    s_waitcnt lgkmcnt(0)
    v_readfirstlane_b32 s{s1}, v{vt}
    s_cmp_ge_u32 s{s0}, 0x100000
    s_cselect_b32 s{s1}, {val}, s{s1}
    s_cmp_ge_u32 s{s1}, {val}''')
    if slp:
        D = a.label('L_lwd')
        a(f's_cbranch_scc1 {D}\ns_sleep {slp}\ns_branch {L}\n{D}:')
    else:
        a(f's_cbranch_scc0 {L}')
def lds_add(vaddr, vone, off, q=None):
    a('s_mov_b64 exec, 1')
    ins = f'ds_add_u32 v{vaddr}, v{vone} offset:{off}'
    if q: q.issue('sig', ins)
    else: a(ins)
    a('s_mov_b64 exec, -1')
def flag_store(soff_reg, vt0, vt1):
    a(f'''v_mov_b32 v{vt0}, s{S_TAG}
    v_mov_b32 v{vt1}, 0
    s_mov_b64 exec, 1
    buffer_store_dword v{vt0}, v{vt1}, {sr(S_WS)}, s{soff_reg} offen sc1
    s_mov_b64 exec, -1''')
def make_tag():
    a(f's_mul_i32 s{S_TAG}, s{S_TAG}, 1664525\ns_add_u32 s{S_TAG}, s{S_TAG}, 1013904223')
def g2_roles(sa, sj, sstart, sinc, t0):
    m = OPT['map2']
    if m == 0:
        a(f"""s_and_b32 s{sa}, s2, 1
        s_lshl_b32 s{sa}, s{sa}, 4
        s_and_b32 s{t0}, s2, 2
        s_lshl_b32 s{t0}, s{t0}, 2
        s_add_u32 s{sa}, s{sa}, s{t0}
        s_bfe_u32 s{t0}, s2, 0x30003
        s_add_u32 s{sa}, s{sa}, s{t0}
        s_and_b32 s{sj}, s2, 4
        s_lshr_b32 s{sinc}, s2, 6
        s_add_u32 s{sj}, s{sj}, s{sinc}
        s_lshl_b32 s{sinc}, s{sinc}, 1
        s_add_u32 s{t0}, s{t0}, s{sinc}""")
    elif m == 1:
        a(f"""s_and_b32 s{sa}, s2, 1
        s_lshl_b32 s{sa}, s{sa}, 4
        s_and_b32 s{t0}, s2, 6
        s_lshl_b32 s{t0}, s{t0}, 1
        s_add_u32 s{sa}, s{sa}, s{t0}
        s_bfe_u32 s{t0}, s2, 0x20003
        s_add_u32 s{sa}, s{sa}, s{t0}
        s_lshr_b32 s{sj}, s2, 5
        s_lshl_b32 s{t0}, s{t0}, 1
        s_add_u32 s{t0}, s{t0}, s{sj}""")
    else:
        a(f"""s_and_b32 s{sa}, s2, 1
        s_lshl_b32 s{sa}, s{sa}, 4
        s_bfe_u32 s{t0}, s2, 0x40003
        s_add_u32 s{sa}, s{sa}, s{t0}
        s_and_b32 s{sj}, s2, 6
        s_lshr_b32 s{sinc}, s2, 7
        s_add_u32 s{sj}, s{sj}, s{sinc}
        s_add_u32 s{t0}, s{t0}, s{sinc}""")
    r = OPT['rot2']
    if r == 0: a(f's_mov_b32 s{sstart}, 0\ns_mov_b32 s{sinc}, 1')
    elif r == 1:
        a(f"""s_and_b32 s{sstart}, s{t0}, 3
        s_mul_i32 s{sstart}, s{sstart}, 3
        s_bitcmp1_b32 s{t0}, 2
        s_cselect_b32 s{t0}, 2, 0
        s_cselect_b32 s{sinc}, 11, 1
        s_add_u32 s{sstart}, s{sstart}, s{t0}""")
    elif r == 2: a(f's_and_b32 s{sstart}, s{t0}, 1\ns_mul_i32 s{sstart}, s{sstart}, 6\ns_mov_b32 s{sinc}, 1')
    elif r == 3: a(f's_and_b32 s{sstart}, s{t0}, 1\ns_mov_b32 s{sinc}, 1')
    elif r == 4: a(f's_and_b32 s{sstart}, s{t0}, 3\ns_mov_b32 s{sinc}, 1')
    elif r == 5: a(f's_and_b32 s{sstart}, s{t0}, 1\ns_mul_i32 s{sstart}, s{sstart}, 4\ns_mov_b32 s{sinc}, 1')
def step12(cur, inc, tmp):
    a(f'''s_add_u32 s{cur}, s{cur}, s{inc}
    s_cmp_ge_u32 s{cur}, 12
    s_cselect_b32 s{tmp}, 12, 0
    s_sub_u32 s{cur}, s{cur}, s{tmp}''')
S_A2, S_J2, S_INC = 69, 70, 78
VL16, VL16B, VQO, VGO, VF2 = 4, 5, 3, 6, 7
def g2_setup():
    srd(a, S_A, P_OUT, 2048*1280)
    srd(a, S_X, P_Q, 2048*1280)
    g2_roles(S_A2, S_J2, 76, S_INC, 66)
    a(f'''s_mul_i32 s74, s{S_A2}, {48*4096}
    s_mul_i32 s66, s{S_WAVE}, {12*4096}
    s_add_u32 s74, s74, s66
    s_add_u32 s74, s74, {HB}
    s_mul_i32 s75, s{S_J2}, {48*5120}
    s_mul_i32 s66, s{S_WAVE}, {12*5120}
    s_add_u32 s75, s75, s66
    s_add_u32 s75, s75, {WDP}
    s_mov_b32 s77, s76
    {'s_mov_b32 s75, %d' % WS_SIZE if OPT['x'] & 8 else ''}
    {'s_mov_b32 s74, %d' % WS_SIZE if OPT['x'] & 16 else ''}
    v_and_b32 v1, 15, v0
    v_lshrrev_b32 v2, 4, v0
    s_lshl_b32 s66, s{S_A2}, 6
    s_lshl_b32 s67, s{S_WAVE}, 4
    s_add_u32 s66, s66, s67
    v_add_u32 v8, s66, v1
    v_mul_u32_u24 v{VQO}, 1280, v8
    v_lshl_add_u32 v{VQO}, v2, 3, v{VQO}
    s_mul_i32 s67, s{S_J2}, 160
    v_add_u32 v{VQO}, s67, v{VQO}
    v_lshrrev_b32 v9, 3, v8
    v_lshlrev_b32 v9, 7, v9
    v_and_b32 v8, 7, v8
    v_lshl_add_u32 v9, v8, 2, v9
    v_add_u32 v{VGO}, {GATE}, v9
    v_min_u32 v1, 5, v0
    v_lshlrev_b32 v1, 1, v1
    s_lshr_b32 s66, s{S_A2}, 1
    s_mul_i32 s66, s66, 12
    s_mul_i32 s67, s{S_WAVE}, 3
    s_add_u32 s66, s66, s67
    s_lshl_b32 s66, s66, 2
    s_and_b32 s67, s{S_A2}, 1
    s_add_u32 s66, s66, s67
    v_add_lshl_u32 v1, v1, s66, 7
    v_add_u32 v{VF2}, {F2}, v1
    v_lshlrev_b32 v{VL16}, 4, v0
    v_add_u32 v{VL16B}, 4096, v{VL16}''')

def pass_setup_loads(s_tt, s_pass, s_lds, z=1, hook=None):
    a(f"""v_lshrrev_b32 v1, 2, v0
    v_and_b32 v18, 3, v0
    v_mul_u32_u24 v12, 1280, v1
    v_lshl_add_u32 v12, v18, 4, v12
    s_lshl_b32 s67, s{s_tt}, 5
    s_sub_u32 s67, s67, 4
    s_mul_i32 s67, s67, 1280
    s_lshl_b32 s73, s{s_pass}, 6
    s_add_u32 s67, s67, s73
    v_add_u32 v13, s67, v12
    v_add_u32 v14, {16*1280}, v13
    v_add_u32 v15, {32*1280}, v13
    v_and_b32 v16, 31, v0
    s_lshl_b32 s73, s{s_pass}, 5
    v_add_lshl_u32 v17, v16, s73, 3
    s_waitcnt lgkmcnt(0)
    s_load_dword s{S_TAG}, s[{P_WS}:{P_WS+1}], {EPOCH}""")
    srd(a, S_A, P_K, 2048*1280*z); srd(a, S_B, P_V, 2048*1280*z); srd(a, S_C, P_SHK, 640*8)
    if hook: hook()
    a(f'buffer_load_dwordx2 v[10:11], v17, {sr(S_C)}, 0 offen')
    for i in range(3):
        if i == 2: a('s_mov_b64 exec, 0xffff')
        a(f's_add_u32 m0, s{s_lds}, {i*1024}\ns_nop 0')
        a(f'buffer_load_dwordx4 v{13+i}, {sr(S_A)}, 0 offen{NTK} lds')
        a(f's_add_u32 m0, s{s_lds}, {2304 + i*1024}\ns_nop 0')
        a(f'buffer_load_dwordx4 v{13+i}, {sr(S_B)}, 0 offen{NTK} lds')
        if i == 2: a('s_mov_b64 exec, -1')
def pass_addr(s_tt, s_pass, s_lds, s_ut):
    a(f"""v_lshrrev_b32 v25, 2, v0
    v_bfe_u32 v23, v25, 1, 2
    v_xor_b32 v23, v23, v18
    v_lshlrev_b32 v23, 4, v23
    v_lshl_add_u32 v23, v25, 6, v23
    v_add_u32 v23, s{s_lds}, v23
    v_lshlrev_b32 v24, 12, v25
    v_lshl_add_u32 v24, v18, 4, v24
    v_lshrrev_b32 v25, 5, v0
    v_lshlrev_b32 v20, 10, v25
    v_bfe_u32 v22, v0, 2, 2
    v_lshl_add_u32 v20, v22, 6, v20
    v_bfe_u32 v22, v0, 4, 1
    v_lshl_add_u32 v20, v22, 5, v20
    v_lshl_add_u32 v20, v18, 3, v20
    v_add_u32 v20, s{s_lds}, v20
    v_sub_u32 v25, 1, v25
    v_lshlrev_b32 v25, 1, v25
    v_bfe_u32 v22, v16, 1, 2
    v_xor_b32 v25, v25, v22
    v_lshlrev_b32 v25, 4, v25
    v_lshl_add_u32 v22, v16, 6, v25
    v_add_u32 v21, s{s_lds}, v22
    v_xor_b32 v22, 16, v21
    s_sub_u32 s{s_ut}, 63, s{s_tt}
    s_lshl_b32 s{s_ut}, s{s_ut}, 6
    s_add_u32 s{s_ut}, s{s_ut}, {UT}
    s_lshl_b32 s67, s{s_pass}, 17
    s_add_u32 s{s_ut}, s{s_ut}, s67""")
def pass_body(s_ut, s_tmp, B):
    P, V, Qr, K = B, B + 10, B + 17, B + 28
    for n in range(5): a(f'ds_read_b64_tr_b16 v[{P+2*n}:{P+1+2*n}], v20 offset:{256*n}')
    for n in range(1, 5): a(f'ds_read_b64_tr_b16 v[{V+2*(n-1)}:{V+1+2*(n-1)}], v20 offset:{2304+256*n}')
    a('v_alignbit_b32 v10, v10, v10, 16\nv_alignbit_b32 v11, v11, v11, 16\ns_waitcnt lgkmcnt(4)')
    for e in range(1, 10): a(f'v_alignbit_b32 v{Qr+e}, v{P+e}, v{P+e-1}, 16')
    for e in range(8):
        a(f'v_dot2_f32_bf16 v{K+2*e}, v{Qr+e+1}, v11, 0')
        a(f'v_dot2_f32_bf16 v{K+1+2*e}, v{P+e+1}, v11, 0')
    for e in range(8):
        a(f'v_dot2_f32_bf16 v{K+2*e}, v{Qr+e+2}, v10, v{K+2*e}')
        a(f'v_dot2_f32_bf16 v{K+1+2*e}, v{P+e+2}, v10, v{K+1+2*e}')
    a('s_waitcnt lgkmcnt(0)')
    for e in range(8):
        a(f'v_lshlrev_b32 v{P+e}, 16, v{V+e}')
        a(f'v_and_b32 v{Qr+1+e}, 0xffff0000, v{V+e}')
    for e in range(8):
        a(f'v_mul_f32 v{K+2*e}, v{K+2*e}, v{P+e}')
        a(f'v_mul_f32 v{K+1+2*e}, v{K+1+2*e}, v{Qr+1+e}')
    for o in range(8):
        e = 7 - o
        a(f'v_cvt_pk_bf16_f32 v{P+o}, v{K+1+2*e}, v{K+2*e}')
    a(f"""ds_write_b128 v21, {vr(P)}
    ds_write_b128 v22, {vr(P+4)}
    s_waitcnt lgkmcnt(0)
    ds_read_b128 {vr(P+8)}, v23
    ds_read_b128 {vr(P+12)}, v23 offset:1024
    s_add_u32 s{s_tmp}, s{s_ut}, {16*4096}
    s_waitcnt lgkmcnt(1)
    buffer_store_dwordx4 {vr(P+8)}, v24, {sr(S_WS)}, s{s_ut} offen sc1
    s_waitcnt lgkmcnt(0)
    buffer_store_dwordx4 {vr(P+12)}, v24, {sr(S_WS)}, s{s_tmp} offen sc1""")
def gate_math(GX, GW, G):
    for k in range(5):
        for i in range(4):
            a(f'v_dot2_f32_bf16 v{G+i}, v{GX+6*i+k}, v{GW+k}, ' + ('0' if k == 0 else f'v{G+i}'))
    a('s_nop 0')
    for sh in ('row_shr:1', 'row_shr:2', 'row_shr:4', 'row_shr:8'):
        for i in range(4): a(f'v_add_f32_dpp v{G+i}, v{G+i}, v{G+i} {sh} row_mask:0xf bank_mask:0xf bound_ctrl:0')
    for sh in ('row_bcast:15 row_mask:0xa', 'row_bcast:31 row_mask:0xc'):
        for i in range(4): a(f'v_add_f32_dpp v{G+i}, v{G+i}, v{G+i} {sh} bank_mask:0xf')
    for op in ('v_cvt_pk_bf16_f32 v{0}, v{0}, v{0}', 'v_and_b32 v{0}, 0xffff0000, v{0}', 'v_mul_f32 v{0}, 0xbfb8aa3b, v{0}', 'v_exp_f32 v{0}, v{0}',
               'v_add_f32 v{0}, 1.0, v{0}', 'v_rcp_f32 v{0}, v{0}', 'v_cvt_pk_bf16_f32 v{0}, v{0}, v{0}', 'v_and_b32 v{0}, 0xffff0000, v{0}'):
        for i in range(4): a(op.format(G + i))
a(f'''s_cmp_ge_u32 s2, 256
s_cbranch_scc1 L_end
s_load_dwordx16 s[32:47], s[0:1], 0
s_load_dwordx8 s[48:55], s[0:1], 64
s_load_dwordx2 s[58:59], s[0:1], 104''')
ts(0)
a(f'''v_lshrrev_b32 v1, 6, v0
v_and_b32 v0, 63, v0
s_and_b32 s{S_MT}, s2, 1
s_lshl_b32 s{S_MT}, s{S_MT}, 3
v_readfirstlane_b32 s{S_WAVE}, v1
s_bfe_u32 s64, s2, 0x30003
s_add_u32 s{S_MT}, s{S_MT}, s64
s_bfe_u32 s{S_NT}, s2, 0x20001
s_mul_i32 s{S_NT}, s{S_NT}, 3
s_lshr_b32 s64, s2, 6
s_add_u32 s{S_NT}, s{S_NT}, s64
s_cmp_ge_u32 s2, 192
s_cbranch_scc1 L_aux
{'s_endpgm' if OPT['xg'] else ''}
s_cmp_ge_u32 s{S_WAVE}, 4
s_cbranch_scc1 L_loader''')

ACC = 128; XF = [96, 112]; WF = 64; XA = [58, 59]; WA = [60, 61]
def acc1(mat, b, mb): return ACC + 4 * ((mat * 4 + b) * 4 + mb)
a(f'''s_and_b32 s64, s2, 7
s_mul_i32 s64, s64, 24
s_lshr_b32 s65, s2, 3
s_add_u32 s64, s64, s65
s_mul_i32 s76, s64, 21846
s_lshr_b32 s76, s76, 16
s_mul_i32 s65, s76, 3
s_sub_u32 s65, s64, s65
s_lshl_b32 s77, s65, 2
s_add_u32 s77, s77, s{S_WAVE}
s_add_u32 s77, s77, 8
s_mul_i32 s78, s{S_WAVE}, 4608
s_add_u32 s78, s78, {2*STAGE}
''')
packed_off(79, 2, F1, 65)
pass_setup_loads(76, 77, 78, 0 if OPT['x'] & 2 else 1)
if OPT['bpre']: a('s_barrier')
srd(a, S_WS, P_WS, WS_SIZE)
pass_addr(76, 77, 78, 44)
a(f'''s_and_b32 s64, s{S_WAVE}, 1        ; wm
s_lshr_b32 s65, s{S_WAVE}, 1        ; wn
v_and_b32 v1, 15, v0
s_lshl_b32 s66, s64, 6
v_add_u32 v1, s66, v1
v_lshrrev_b32 v2, 4, v0
v_bfe_u32 v3, v1, 1, 3
v_lshlrev_b32 v1, 7, v1
v_xor_b32 v4, v2, v3
v_lshl_add_u32 v{XA[0]}, v4, 4, v1
v_xor_b32 v4, 4, v4
v_lshl_add_u32 v{XA[1]}, v4, 4, v1
v_lshlrev_b32 v5, 11, v2
v_bfe_u32 v7, v0, 2, 2
v_lshl_add_u32 v5, v7, 6, v5
v_and_b32 v8, 3, v0
v_lshl_add_u32 v5, v8, 3, v5
s_lshl_b32 s66, s65, 9
s_add_u32 s66, s66, 16384
v_add_u32 v5, s66, v5
v_and_b32 v4, 1, v2
v_lshl_add_u32 v{WA[0]}, v4, 5, v5
v_xor_b32 v{WA[1]}, 32, v{WA[0]}''')
for i in range(128): a(f'v_mov_b32 v{ACC+i}, 0')
a(f'''s_lshl_b32 s66, s{S_MT}, 1
s_add_u32 s66, s66, s64
s_mul_i32 s66, s66, 48
s_lshl_b32 s67, s{S_NT}, 2
s_add_u32 s66, s66, s67
s_lshl_b32 s67, s65, 1
s_add_u32 s66, s66, s67
s_lshl_b32 s66, s66, 12
s_add_u32 s71, s66, {HB}
s_add_u32 s72, s71, 4096
s_mul_i32 s66, s{S_MT}, 12
s_add_u32 s66, s66, s{S_NT}
s_lshl_b32 s66, s66, 2
s_add_u32 s66, s66, s{S_WAVE}
s_lshl_b32 s66, s66, 7
s_add_u32 s73, s66, {F2}''')
g2_setup()
a('s_waitcnt lgkmcnt(0)')
make_tag()
a('s_waitcnt vmcnt(0)')
pass_body(44, 45, 64)
ts(1)
def rdX(st, fs, mb): return (f'X{mb}{fs}', f'ds_read_b128 {vr(XF[fs]+4*mb)}, v{XA[st]} offset:{mb*2048}')
def rdW(st, w):
    mat, b = w // 4, w % 4
    o = st * 8192 + mat * 16384 + (b >> 1) * 256
    return [(f'W{w}', f'ds_read_b64_tr_b16 {vr(WF+4*w,2)}, v{WA[b & 1]} offset:{o}'),
            (f'W{w}', f'ds_read_b64_tr_b16 {vr(WF+4*w+2,2)}, v{WA[b & 1]} offset:{o+1024}')]
WORD = [0, 4, 1, 5, 2, 6, 3, 7]
if OPT['cprio']: a(f's_setprio {OPT["cprio"]}')
a('s_barrier')
ts(3)
lq = Q('lgkmcnt', 15)
init = [rdX(0, 0, 0)] + rdW(0, WORD[0]) + [rdX(0, 0, m) for m in (1, 2, 3)]
for w in WORD[1:]: init += rdW(0, w)
for tag, ins in init: lq.issue(tag, ins)
a(f's_mov_b32 s64, 0\ns_mov_b32 s65, 0\ns_mov_b32 s67, {-2*STAGE & 0xffffffff}\ns_mov_b32 s68, {STAGE}')
def hprod(b, mb, dst):
    g = acc1(0, b, mb); u = acc1(1, b, mb)
    r = [f'v_mul_f32 v{g+i}, v{g+i}, v{u+i}' for i in range(4)]
    return r + [f'v_cvt_pk_bf16_f32 v{dst}, v{g}, v{g+1}', f'v_cvt_pk_bf16_f32 v{dst+1}, v{g+2}, v{g+3}']
def h_out(p, mb):
    d = 16 + 16 * p + 4 * mb
    return hprod(2 * p, mb, d) + hprod(2 * p + 1, mb, d + 2) + [f'buffer_store_dwordx4 {vr(d)}, v{VL16}, {sr(S_WS)}, s{71+p} offen offset:{mb*1024} sc1']
def g1_half(st, last):
    pend = []; extra = []
    for wi, w in enumerate(WORD):
        for mb in range(4):
            lq.need({f'W{w}', f'X{mb}{st}'})
            acc = acc1(w // 4, w % 4, mb)
            a(f'v_mfma_f32_16x16x32_bf16 {vr(acc)}, {vr(WF+4*w)}, {vr(XF[st]+4*mb)}, {vr(acc)}')
            n = wi * 4 + mb
            if st == 0:
                if n == 0: pend += [rdX(1, 1, m) for m in range(4)]
                if mb == 3: pend += rdW(1, w)
            elif last:
                if n == 21:
                    for m in range(4): extra += h_out(0, m)
                    if OPT['lates']:
                        st_ = [e for e in extra if e.startswith('buffer')]
                        extra = [e for e in extra if not e.startswith('buffer')]
                        extra = extra[:33] + st_[:2] + extra[33:] + st_[2:]
                for _ in range(3):
                    if extra: a(extra.pop(0))
            else:
                if n == 0:
                    a(f's_cmp_lg_u32 s64, {OPT["pfit"]}\ns_cbranch_scc1 L_g1_nw\ns_waitcnt vmcnt(0)\nL_g1_nw:')
                if n == 21:
                    a(f's_lshl_b32 s66, s{S_WAVE}, 4\ns_add_u32 s66, s66, s64\ns_cmp_lg_u32 s66, {OPT["pfit"]}\ns_cbranch_scc1 L_g1_nf')
                    flag_store(79, 1, 2)
                    stamp(3)
                    a('L_g1_nf:')
                if n == 1:
                    a('s_add_u32 s65, s65, 1\ns_cmp_eq_u32 s65, 3\ns_cselect_b32 s66, s67, s68\ns_cselect_b32 s65, 0, s65')
                if n in (2, 3, 4, 5):
                    r = (XA + WA)[n - 2]
                    a(f'v_add_u32 v{r}, s66, v{r}')
                if n == OPT['bn']:
                    lq.drain(); a('s_barrier')
                    pend += [rdX(0, 0, 0)] + rdW(0, WORD[0]) + [rdX(0, 0, m) for m in (1, 2, 3)]
                    for ww in range(1, (n + 1) // 4): pend += rdW(0, WORD[ww])
                if n > OPT['bn'] and mb == 3: pend += rdW(0, w)
            if pend and not (st == 1 and n < OPT['bn']):
                tag, ins = pend.pop(0); lq.issue(tag, ins)
    for tag, ins in pend: lq.issue(tag, ins)
    for e in extra: a(e)
a('.p2align 3\nL_g1_loop:')
g1_half(0, False)
if OPT['peel']:
    qsave = list(lq.q)
    a('s_cmp_eq_u32 s64, 9\ns_cbranch_scc1 L_g1_last')
g1_half(1, False)
a('s_add_u32 s64, s64, 1\ns_cmp_lt_u32 s64, 10\ns_cbranch_scc1 L_g1_loop')
if OPT['peel']:
    a('L_g1_last:')
    lq.q = qsave
    g1_half(1, True)
    ts(4)
    for mb in range(4):
        for e in h_out(1, mb): a(e)
else:
    ts(4)
    a('s_waitcnt lgkmcnt(0)\ns_nop 4')
    for p in range(2):
        for mb in range(4):
            for e in h_out(p, mb): a(e)
DH = 4
WR = 8; WT = 88; HR = 108; ACC2 = 176
a(f'v_mov_b32 v173, {CNT}\nv_mov_b32 v175, 1')
lds_add(173, 175, C_H)
lds_wait(173, 1, C_OKW, 1, 1)
a('L_g2:')
ts(2)
a(f'''s_mul_i32 s66, s{S_WAVE}, 10240
v_add_u32 v172, s66, v{VL16}
v_add_u32 v174, {STA}, v172''')
vq = Q('vmcnt', 63)
def ld_wd(s):
    r = WR + 20 * (s % 4)
    a(f's_mul_i32 s79, s77, 5120\ns_add_u32 s79, s79, s75')
    for _ in range(5 if s == 3 else 1): step12(77, S_INC, 66)
    for db in range(4): vq.issue(('w', s), f'buffer_load_dwordx4 {vr(r+4*db)}, v{VL16}, {sr(S_WS)}, s79 offen offset:{db*1024} sc1')
    vq.issue(('w', s), f'buffer_load_dwordx4 {vr(r+16)}, v{VL16B}, {sr(S_WS)}, s79 offen sc1')
def ld_h(s):
    r = HR + 16 * (s % DH)
    a(f's_lshl_b32 s79, s76, 12\ns_add_u32 s79, s79, s74')
    step12(76, S_INC, 66)
    for mb in range(4): vq.issue(('h', s), f'buffer_load_dwordx4 {vr(r+4*mb)}, v{VL16}, {sr(S_WS)}, s79 offen offset:{mb*1024} sc1')
if OPT['fastp']: a(f'buffer_load_dword v170, v{VF2}, {sr(S_WS)}, 0 offen sc1')
for s in range(OPT['wpre']): ld_wd(s)
for i in range(80): a(f'v_mov_b32 v{ACC2+i}, 0')
a(f's_waitcnt vmcnt({5*OPT["wpre"]})')
flag_store(73, 1, 2)
if OPT['cprio']: a('s_setprio 0')
ts(5)
for s in range(OPT['wpre'], 4): ld_wd(s)
if OPT['tsg']: a('s_waitcnt vmcnt(0)\ns_memrealtime s[100:101]\ns_waitcnt lgkmcnt(0)\nv_writelane_b32 v175, s100, 12')
if OPT['fastp']: a(f'v_cmp_ne_u32 vcc, s{S_TAG}, v170\ns_cmp_eq_u64 vcc, 0\ns_cbranch_scc1 L_hready')
if OPT['fastp'] == 2:
    pass
if not OPT['x'] & 32: poll([VF2], 1, OPT['hsl'])
a('L_hready:')
if OPT['tsg']: a('v_writelane_b32 v175, s64, 13')
vq.q = []
ts(7)
if OPT['hpf']:
    a(f'''v_min_u32 v1, 47, v0
    s_and_b32 s66, s{S_J2}, 3
    s_mul_i32 s66, s66, {96*128}
    v_lshl_add_u32 v1, v1, 7, s66''')
    vq.issue('pf', f'buffer_load_dword v2, v1, {sr(S_WS)}, s74 offen sc1')
    a(f'v_add_u32 v1, {48*128}, v1')
    vq.issue('pf', f'buffer_load_dword v2, v1, {sr(S_WS)}, s74 offen sc1')
for s in range(DH): ld_h(s)
def rd_st(s, db):
    base = 174 if s < 6 else 172
    return f'ds_read_b128 {vr(WT+4*db)}, v{base} offset:{(s & 1) * 5120 + db*1024}'
lq = Q('lgkmcnt', 15)
def sig():
    a('v_mov_b32 v1, 1'); lds_add(173, 1, C_H, lq)
sig()
QR = HR
def red_write(db):
    for o in range(4):
        t = db * 4 + o
        a(f'ds_write_b128 v{174 if t < 10 else 172}, {vr(ACC2+4*t)} offset:{(t % 10)*1024}')
for s in range(12):
    vq.need({('h', s), ('w', s)})
    if OPT['tsg']: a(f's_memrealtime s[100:101]\ns_waitcnt lgkmcnt(0)\nv_writelane_b32 v175, s100, {s}')
    r = HR + 16 * (s % DH); w = WT if 4 <= s < 8 else WR + 20 * (s % 4)
    if s == 3:
        lds_wait(173, 1, C_ST, 1); lq.q = []
        for db in range(5): lq.issue(('t', 4, db), rd_st(4, db))
    for db in range(5):
        if 4 <= s < 8: lq.need(('t', s, db))
        for mb in range(4):
            acc = ACC2 + 4 * (db * 4 + mb)
            a(f'v_mfma_f32_16x16x32_bf16 {vr(acc)}, {vr(w+4*db)}, {vr(r+4*mb)}, {vr(acc)}')
        if s == 11 and OPT['redi'] and db >= 1:
            if db == 1: a('s_nop 1')
            red_write(db - 1)
        if s == 5 and db == 0:
            lds_wait(173, 1, C_ST, 2); lq.q = []
        if 4 <= s < 7: lq.issue(('t', s + 1, db), rd_st(s + 1, db))
    if s + DH < 12: ld_h(s + DH)
    if 0 <= s - OPT['rf'] < 4: ld_wd(s - OPT['rf'] + 8)
    if s == OPT['ysig']: sig()
    if s == 8:
        vq.issue('q', f'buffer_load_dword v{QR+10}, v{VGO}, {sr(S_WS)}, 0 offen sc1')
        if not OPT['qlds']:
            for db in range(5): vq.issue('q', f'buffer_load_dwordx2 {vr(QR+2*db,2)}, v{VQO}, {sr(S_X)}, 0 offen offset:{32*db}' + (' nt' if OPT['qnt'] else ''))
    if s == OPT['qs'] and OPT['qlds']:
        T = QR + 12 if s >= 8 else 170
        a(f'''s_lshl_b32 s64, s{S_A2}, 6
        s_lshl_b32 s65, s{S_WAVE}, 4
        s_add_u32 s64, s64, s65
        s_mul_i32 s64, s64, 1280
        s_mul_i32 s65, s{S_J2}, 160
        s_add_u32 s64, s64, s65
        s_and_b32 s65, s{S_WAVE}, 1
        s_mul_i32 s65, s65, 2560
        s_cmp_lt_u32 s{S_WAVE}, 2
        s_cselect_b32 s67, {139264 - 91648}, 0
        s_add_u32 s65, s65, s67
        s_add_u32 s65, s65, 91648''')
        for i in range(3):
            a(f'''v_add_u32 v{T}, {64*i}, v0
            v_mul_u32_u24 v{T+1}, 6554, v{T}
            v_lshrrev_b32 v{T+1}, 16, v{T+1}
            v_mul_u32_u24 v1, 10, v{T+1}
            v_sub_u32 v{T}, v{T}, v1
            v_mul_u32_u24 v{T+1}, 1280, v{T+1}
            v_lshl_add_u32 v{T}, v{T}, 4, v{T+1}
            s_add_u32 m0, s65, {1024*i}''')
            a('s_mov_b32 exec_hi, 0' if i == 2 else 's_nop 0')
            vq.issue('q', f'buffer_load_dwordx4 v{T}, {sr(S_X)}, s64 offen lds')
        a('s_mov_b32 exec_hi, -1')
ts(8)
if OPT['redi']:
    a(f's_lshl_b32 s66, s{S_WAVE}, 10\nv_add_u32 v88, s66, v{VL16}\nv_add_u32 v89, {STA}, v88')
    a(f's_mov_b32 s66, {STA + 8192}\ns_cmp_lt_u32 s{S_WAVE}, 2\ns_cselect_b32 s66, s66, {-2048 & 0xffffffff}\nv_add_u32 v90, s66, v88')
    red_write(4)
else:
    a('s_nop 7')
    for w in range(4):
        L = a.label('L_red')
        a(f's_cmp_lg_u32 s{S_WAVE}, {w}\ns_cbranch_scc1 {L}')
        for k in range(3):
            o = (w + 1 + k) & 3
            for db in range(5):
                a(f'ds_write_b128 v{174 if k < 2 else 172}, {vr(ACC2+4*(db*4+o))} offset:{(k & 1)*5120 + db*1024}')
        for db in range(5):
            for i in range(4): a(f'v_mov_b32 v{8+4*db+i}, v{ACC2+4*(db*4+w)+i}')
        for k in range(3):
            sw = (w - 1 - k) & 3
            a(f'v_add_u32 v{88+k}, {(STA if k < 2 else STB) + sw*10240 + (k & 1)*5120}, v{VL16}')
        a(f'{L}:')
a(f'''v_lshrrev_b32 v2, 2, v0
v_bfe_u32 v1, v2, 1, 2
v_xor_b32 v1, s{S_WAVE}, v1
v_lshlrev_b32 v1, 5, v1
v_lshl_add_u32 v2, v2, 7, v1
v_and_b32 v1, 3, v0
v_lshl_add_u32 v2, v1, 3, v2
v_add_u32 v2, {Y2L}, v2
v_bfe_u32 v91, v0, 4, 1
v_mul_u32_u24 v91, 24, v91
v_add_u32 v91, v91, v{VQO}
v_and_b32 v124, 15, v0
v_mul_u32_u24 v124, 160, v124
v_lshrrev_b32 v125, 4, v0
v_lshl_add_u32 v124, v125, 3, v124
v_add_u32 v124, s65, v124
s_waitcnt vmcnt(0)
v_sub_f32 v{QR+11}, 1.0, v{QR+10}''')
if OPT['qlds']:
    for db in range(5): a(f'ds_read_b64 {vr(QR+2*db,2)}, v124 offset:{32*db}')
a('s_waitcnt lgkmcnt(0)\ns_barrier')
ts(6)
YR = 92
for db in range(5): a(f'ds_read_b64_tr_b16 {vr(YR+2*db,2)}, v2 offset:{db*2048}')
if OPT['redi']:
    for k in range(4):
        for db in range(5):
            base, off = (89, db*4096) if db < 2 else (90, 0) if db == 2 else (88, (4*db-10)*1024)
            a(f'ds_read_b128 {vr(8+20*k+4*db)}, v{base} offset:{off + k*10240}')
    a('s_waitcnt lgkmcnt(15)')
else:
    for k in range(3):
        for db in range(5): a(f'ds_read_b128 {vr(28+20*k+4*db)}, v{88+k} offset:{db*1024}')
    a('s_waitcnt lgkmcnt(15)')
PR = 132
for db in range(5):
    for h in range(2):
        q = QR + 2*db + h; y = YR + 2*db + h; p = PR + 4*db + 2*h
        a(f'''v_lshlrev_b32 v124, 16, v{q}
        v_and_b32 v125, 0xffff0000, v{q}
        v_lshlrev_b32 v126, 16, v{y}
        v_and_b32 v127, 0xffff0000, v{y}
        v_mul_f32 v124, v124, v126
        v_mul_f32 v125, v125, v127
        v_mul_f32 v{p}, v{QR+10}, v124
        v_mul_f32 v{p+1}, v{QR+10}, v125''')
for k in range(3):
    a(f's_waitcnt lgkmcnt({10-5*k})')
    for i in range(20): a(f'v_add_f32 v{8+i}, v{8+i}, v{28+20*k+i}')
for db in range(5):
    for i in range(4): a(f'v_fma_f32 v{PR+4*db+i}, v{QR+11}, v{8+4*db+i}, v{PR+4*db+i}')
    a(f'v_cvt_pk_bf16_f32 v{152+2*db}, v{PR+4*db}, v{PR+1+4*db}\nv_cvt_pk_bf16_f32 v{153+2*db}, v{PR+2+4*db}, v{PR+3+4*db}')
    sfx = ['', ' sc1', ' nt', ' sc1 nt'][OPT['osc']]
    if OPT['wst'] and db in (1, 3):
        r = 152 + 2 * (db - 1)
        a(f's_nop 1\nv_permlane16_swap_b32 v{r}, v{r+2}\nv_permlane16_swap_b32 v{r+1}, v{r+3}')
        a(f'buffer_store_dwordx4 {vr(r)}, v91, {sr(S_A)}, 0 offen offset:{32*(db-1)}' + sfx)
    elif db == 4 or not OPT['wst']:
        a(f'buffer_store_dwordx2 {vr(152+2*db,2)}, v{VQO}, {sr(S_A)}, 0 offen offset:{32*db}' + sfx)
ts(9)
if OPT['tsg']:
    a(f's_lshl_b32 s64, s2, 2\ns_add_u32 s64, s64, s{S_WAVE}\ns_lshl_b32 s64, s64, 6\ns_add_u32 s64, s64, {DIAG + 0x30000}\nv_lshlrev_b32 v1, 2, v0\ns_mov_b64 exec, 0xffff')
    a(f'buffer_store_dword v175, v1, {sr(S_WS)}, s64 offen\ns_mov_b64 exec, -1')
ts_dump()
a('s_endpgm')

LW = 66
CACC = 32; CA = [64, 128]; CB = [96, 160]
def conv_T():
    srd(a, S_A, P_SSM, 640*4096)
    srd(a, S_B, P_SSMD, 1280)
    a(f's_lshl_b32 s69, s67, 12\ns_add_u32 s70, s68, {TSZ}\nv_lshlrev_b32 v10, 4, v0')
    for phi in (0, 2):
        a(f's_add_u32 s71, s69, {2*phi}')
        a(f's_add_u32 m0, s68, {phi*CS + 32}\ns_nop 0')
        for i in range(4): a(f'buffer_load_dwordx4 v10, {sr(S_A)}, s71 offen offset:{i*1024}{NTS} lds')
    a(f'''v_lshrrev_b32 v1, 4, v0
    v_and_b32 v2, 15, v0
    v_add3_u32 v3, v1, v2, -16
    v_lshlrev_b32 v4, 1, v3
    v_add_u32 v4, s69, v4
    v_cmp_gt_i32 vcc, 0, v3
    s_lshl_b32 s71, s67, 1
    v_mov_b32 v7, s71
    v_cndmask_b32 v4, v4, -1, vcc
    buffer_load_ushort v5, v4, {sr(S_A)}, 0 offen
    buffer_load_ushort v7, v7, {sr(S_B)}, 0 offen''')
def conv_uT():
    a(f's_add_u32 s71, s69, {UT}\ns_mov_b32 m0, s70\ns_nop 0')
    for i in range(4): a(f'buffer_load_dwordx4 v10, {sr(S_WS)}, s71 offen offset:{i*1024} sc1 lds')
def conv_addr():
    a(f'''v_mul_u32_u24 v8, {CS}, v1
    v_add_u32 v8, s68, v8
    v_lshl_add_u32 v9, v2, 1, v8
    v_add_u32 v11, s68, v10
    v_mov_b32 v12, 0
    v_mov_b32 v13, 0
    v_lshl_add_u32 v14, v0, 3, s70
    ds_write_b64 v14, v[12:13] offset:4096
    v_add_u32 v3, 1, v2
    v_and_b32 v4, 3, v3
    v_sub_u32 v3, v3, v4
    v_lshl_add_u32 v3, v1, 3, v3
    v_mul_u32_u24 v4, {CS}, v4
    v_lshl_add_u32 v20, v3, 1, v4
    v_add_u32 v20, s68, v20
    v_lshlrev_b32 v3, 4, v1
    v_lshlrev_b32 v4, 5, v2
    v_sub_u32 v3, v3, v4
    v_add_u32 v3, {2*(2032-1792)}, v3
    v_add_u32 v21, s70, v3''')
    for i in range(32): a(f'v_mov_b32 v{CACC+i}, 0')
def conv_build():
    for i in range(4):
        b = 64 + 16 * i
        a(f'''ds_read_b128 {vr(b)}, v11 offset:{32 + i*1024}
        ds_read_b128 {vr(b+4)}, v11 offset:{2*CS + 32 + i*1024}
        ds_read_b64 {vr(b+10,2)}, v11 offset:{32 + i*1024 + 16}''')
    a('ds_write_b16 v9, v5\nv_lshlrev_b32 v7, 16, v7')
    for i in range(4):
        b = 64 + 16 * i
        a(f's_waitcnt lgkmcnt({min(15, 3*(3-i) + 1 + 2*i)})')
        for k in range(4): a(f'v_alignbit_b32 v{b+12+k}, v{b+4+k}, v{b+k}, 16')
        C = [b+2, b+3, b+10, b+11]
        for k in range(4): a(f'v_alignbit_b32 v{b+4+k}, v{C[k]}, v{b+4+k}, 16')
        a(f'ds_write_b128 v11, {vr(b+12)} offset:{CS + 32 + i*1024}\nds_write_b128 v11, {vr(b+4)} offset:{3*CS + 32 + i*1024}')

a('L_loader:')
if OPT['lprio']: a(f's_setprio {OPT["lprio"]}')
tsx(4)
a(f'''s_sub_u32 s{LW}, s{S_WAVE}, 4
v_lshrrev_b32 v3, 3, v0
s_lshl_b32 s67, s{LW}, 5
s_lshl_b32 s68, s{S_MT}, 7
s_add_u32 s67, s67, s68
v_bfe_u32 v4, v3, 1, 3
v_and_b32 v5, 7, v0
v_xor_b32 v4, v4, v5
v_add_u32 v3, s67, v3
v_mul_u32_u24 v3, 1280, v3
v_lshl_add_u32 v200, v4, 4, v3
v_xor_b32 v4, 4, v4
v_lshl_add_u32 v201, v4, 4, v3
v_add_u32 v201, {8*1280}, v201
v_add_u32 v202, {16*1280}, v200
v_add_u32 v203, {16*1280}, v201
v_bfe_u32 v3, v0, 2, 2
s_lshl_b32 s67, s{LW}, 4
v_add_u32 v3, s67, v3
v_mul_u32_u24 v3, 3072, v3
v_lshrrev_b32 v4, 4, v0
v_lshl_add_u32 v3, v4, 6, v3
v_and_b32 v4, 3, v0
v_lshl_add_u32 v3, v4, 4, v3
s_lshl_b32 s67, s{S_NT}, 8
v_add_u32 v204, s67, v3
v_add_u32 v205, {4*3072}, v204
v_xor_b32 v206, 32, v204
v_add_u32 v206, {8*3072}, v206
v_add_u32 v207, {4*3072}, v206
s_add_u32 s68, s{S_MT}, s{S_NT}
s_mul_i32 s69, s68, 6554
s_lshr_b32 s69, s69, 16
s_mul_i32 s69, s69, 10
s_sub_u32 s68, s68, s69''')
if OPT['nrot'] >= 100:
    cm, cn = (OPT['nrot'] // 10) % 10, OPT['nrot'] % 10
    a(f's_mul_i32 s68, s{S_MT}, {cm}\ns_mul_i32 s69, s{S_NT}, {cn}\ns_add_u32 s68, s68, s69\ns_mul_i32 s69, s68, 13108\ns_lshr_b32 s69, s69, 16\ns_mul_i32 s69, s69, 5\ns_sub_u32 s68, s68, s69\ns_lshl_b32 s68, s68, 1')
if OPT['nrot'] == 1: a('s_mov_b32 s68, 0')
if OPT['nrot'] == 2: a('s_and_b32 s68, s68, 1\ns_mul_i32 s68, s68, 5')
if OPT['nrot'] == 5: a('s_and_b32 s68, s68, 14')
if OPT['nrot'] == 3: a('s_mul_i32 s69, s68, 86\ns_lshr_b32 s69, s69, 8\ns_mul_i32 s69, s69, 3\ns_sub_u32 s68, s68, s69\ns_mul_i32 s68, s68, 3')
a(f'''s_lshl_b32 s69, s{LW}, 12
s_mov_b32 s71, 0
s_waitcnt lgkmcnt(0)
s_load_dword s{S_TAG}, s[{P_WS}:{P_WS+1}], {EPOCH}''')
tsx(5)
srd(a, S_X, P_Q, 2048*1280)
srd(a, S_WG, P_WG, 640*3072)
srd(a, S_WU, P_WU, 640*3072)
if OPT['bpre']: a('s_barrier')
def g1_issue():
    a(f's_lshl_b32 s72, s68, 7\ns_mul_i32 s73, s68, {64*3072}\ns_add_u32 s74, s71, s69')
    for j in range(4):
        a(f's_add_u32 m0, s74, {j*1024}\n' + ('s_add_u32 s68, s68, 1' if j == 0 else 's_nop 0'))
        a(f'buffer_load_dwordx4 v{200+j}, {sr(S_X)}, s72 offen{NTX} lds')
    for n in range(4):
        a(f's_add_u32 m0, s74, {16384 + n*1024}\ns_nop 0')
        a(f'buffer_load_dwordx4 v{204+n}, {sr(S_WG)}, s73 offen{NTG} lds')
        a(f's_add_u32 m0, s74, {32768 + n*1024}\ns_nop 0')
        a(f'buffer_load_dwordx4 v{204+n}, {sr(S_WU)}, s73 offen{NTG} lds')
    a(f'''s_cmp_ge_u32 s68, 10
    s_cselect_b32 s68, 0, s68
    s_add_u32 s71, s71, {STAGE}
    s_cmp_eq_u32 s71, {3*STAGE}
    s_cselect_b32 s71, 0, s71''')
tsx(6)
g1_issue()
tsx(7)
srd(a, S_WS, P_WS, WS_SIZE)
a(f'''v_lshlrev_b32 v15, 7, v0
v_add_u32 v16, {F1 + 0x2000}, v15
v_add_u32 v17, {F1 + 0x4000}, v15
v_add_u32 v18, {F1 + 0x6000}, v15
v_add_u32 v19, {F1 + 0x8000}, v15
v_add_u32 v15, {F1}, v15
v_lshl_add_u32 v3, v0, 2, 0
v_add_u32 v3, {CNT}, v3
v_mov_b32 v4, 0
ds_write_b32 v3, v4
v_mov_b32 v196, {CNT}
v_mov_b32 v199, 1
s_waitcnt lgkmcnt(0)''')
make_tag()
g1_issue()
a('s_mov_b32 s76, 0')
ts(1)
a('L_ld_loop:\ns_waitcnt vmcnt(12)')
a('s_barrier')
if TS == 1: a('s_memrealtime s[100:101]\ns_waitcnt lgkmcnt(0)\ns_mov_b32 m0, s76\ns_nop 0\nv_writelane_b32 v220, s100, m0')
g1_issue()
a('s_add_u32 s76, s76, 1\ns_cmp_lt_u32 s76, 8\ns_cbranch_scc1 L_ld_loop')
assert OPT['fl'] + 2 <= 7
a(f'''s_and_b32 s64, s2, 7
s_lshl_b32 s64, s64, 7
s_add_u32 s64, s64, {SUMW}
v_mov_b32 v15, s64
s_cmp_lg_u32 s{LW}, 2
s_cbranch_scc1 L_b8n''')
packed_lane(16, 64, F1)
a(f'''buffer_load_dwordx4 v[224:227], v16, {sr(S_WS)}, 0 offen sc1
buffer_load_dword v222, v15, {sr(S_WS)}, 0 offen sc1
s_waitcnt vmcnt(14)
s_branch L_b8
L_b8n:
s_waitcnt vmcnt(12)
L_b8:
s_barrier''')
ts(2)
if TS == 1:
    a(f's_lshl_b32 s64, s2, 2\ns_add_u32 s64, s64, s{LW}\ns_lshl_b32 s64, s64, 6\ns_add_u32 s64, s64, {DIAG + 0x20000}\nv_lshlrev_b32 v1, 2, v0\ns_mov_b64 exec, 0xff')
    a(f'buffer_store_dword v220, v1, {sr(S_WS)}, s64 offen\ns_mov_b64 exec, -1')
NT_ = 1 if TS == 1 else 0
a(f's_cmp_ge_u32 s{LW}, 2\ns_cbranch_scc1 L_ld67')
a(f'''s_and_b32 s67, s2, 7
s_mul_i32 s67, s67, 24
s_lshr_b32 s68, s2, 3
s_add_u32 s67, s67, s68
s_lshl_b32 s67, s67, 1
s_add_u32 s67, s67, s{LW}
s_mul_i32 s68, s{LW}, {CVSZ}
s_add_u32 s68, s68, {CVREG[0]}''')
if OPT['x'] & 1:
    a('s_waitcnt vmcnt(0)\ns_barrier')
    packed_off(71, 67, F3, 72); flag_store(71, 3, 4); a('s_branch L_join')
conv_T()
conv_addr()
a(f's_waitcnt vmcnt({10 + NT_})')
if OPT['ut8']:
    a(f'ds_read_b32 v197, v196 offset:{C_OK}\ns_waitcnt lgkmcnt(0)\nv_readfirstlane_b32 s57, v197\ns_nop 0\ns_cmp_eq_u32 s57, 0\ns_cbranch_scc1 L_cv_l')
    conv_uT()
    a('s_barrier\ns_branch L_cv_b\nL_cv_l:')
a('s_barrier')
lds_wait(196, 197, C_OK, 1, 1)
conv_uT()
a('L_cv_b:')
ts(4)
a('s_waitcnt vmcnt(4)')
conv_build()
a(f's_mov_b32 s74, {3 if OPT["helpc"] else 4}\ns_mov_b32 s75, {1 if OPT["helpc"] else 0}\ns_lshl_b32 s72, s{LW}, 2\nv_add_u32 v198, s72, v196\ns_waitcnt vmcnt(0) lgkmcnt(0)')
lds_add(198, 199, C_RD)
a('L_conv_main:\ns_waitcnt vmcnt(0)')
ts(6)
a(f's_setprio {OPT["prio"]}')
def conv_reads(fs):
    r = []
    def A(k): return [(f'A{k}{fs}', f'ds_read_b64 {vr(CA[fs]+4*k,2)}, v20 offset:{k*512}'), (f'A{k}{fs}', f'ds_read_b64 {vr(CA[fs]+4*k+2,2)}, v20 offset:{k*512+8}')]
    def B(d): return [(f'B{d}{fs}', f'ds_read_b128 {vr(CB[fs]+4*d)}, v21 offset:{(7-d)*512}')]
    r += A(0)
    for d in range(8): r += B(d)
    for k in range(1, 8): r += A(k)
    return r
lq = Q('lgkmcnt', 15)
for tag, ins in conv_reads(0): lq.issue(tag, ins)
a('s_mov_b32 s71, 0\n.p2align 3\nL_conv_loop:')
for fs in range(2):
    nxt = conv_reads(fs ^ 1)
    a('v_add_u32 v20, 64, v20\nv_add_u32 v21, 64, v21')
    n = 0
    for k in range(8):
        for q in range(k, 8):
            lq.need({f'A{k}{fs}', f'B{q-k}{fs}'})
            a(f'v_mfma_f32_16x16x32_bf16 {vr(CACC+4*q)}, {vr(CA[fs]+4*k)}, {vr(CB[fs]+4*(q-k))}, {vr(CACC+4*q)}')
            n += 1
            if n >= 9 and nxt:
                tag, ins = nxt.pop(0); lq.issue(tag, ins)
    assert not nxt
a('s_add_u32 s71, s71, 1\ns_cmp_lt_u32 s71, s74\ns_cbranch_scc1 L_conv_loop')
a('s_cmp_eq_u32 s75, 2\ns_cbranch_scc1 L_help_dump\ns_cmp_eq_u32 s75, 0\ns_cbranch_scc1 L_conv_ep')
lds_wait(198, 197, C_HD, 1, 1)
a(f's_mul_i32 s72, s{LW}, {PART[1] - PART[0]}\ns_add_u32 s72, s72, {PART[0]}\nv_add_u32 v3, s72, v10')
for q in range(8): a(f'ds_read_b128 {vr(128+4*q)}, v3 offset:{q*1024}')
for q in range(8):
    a(f's_waitcnt lgkmcnt({7-q})')
    for i in range(4): a(f'v_add_f32 v{CACC+4*q+i}, v{CACC+4*q+i}, v{128+4*q+i}')
a('L_conv_ep:')
ts(7)
a(f'''s_waitcnt lgkmcnt(0)
v_lshlrev_b32 v3, 3, v1
v_lshl_add_u32 v3, v2, 5, v3
v_sub_u32 v4, {2*(2044-1792)}, v3
v_add_u32 v4, s70, v4
v_add_u32 v3, s68, v3''')
for q in range(8): a(f'ds_read_b64 {vr(64+2*q,2)}, v4 offset:{(7-q)*512}')
for q in range(8):
    u = 64 + 2*q; y = CACC + 4*q; t = 96 + 4*q
    a(f'''s_waitcnt lgkmcnt(7)
    v_and_b32 v{t}, 0xffff0000, v{u+1}
    v_lshlrev_b32 v{t+1}, 16, v{u+1}
    v_and_b32 v{t+2}, 0xffff0000, v{u}
    v_lshlrev_b32 v{t+3}, 16, v{u}''')
    for i in range(4): a(f'v_fma_f32 v{y+i}, v{t+i}, v7, v{y+i}')
    a(f'v_cvt_pk_bf16_f32 v{u}, v{y}, v{y+1}\nv_cvt_pk_bf16_f32 v{u+1}, v{y+2}, v{y+3}')
    a(f'ds_write_b64 v3, {vr(u,2)} offset:{q*512}')
a(f's_add_u32 s71, s69, {Y2T}\ns_waitcnt lgkmcnt(0)')
for i in range(4): a(f'ds_read_b128 {vr(96+4*i)}, v11 offset:{i*1024}')
for i in range(4):
    a(f's_waitcnt lgkmcnt({3-i})')
    a(f'buffer_store_dwordx4 {vr(96+4*i)}, v10, {sr(S_WS)}, s71 offen offset:{i*1024} sc1')
lds_add(196, 199, C_CV)
packed_off(71, 67, F3, 72)
a('s_waitcnt vmcnt(0)')
flag_store(71, 3, 4)
ts(8)
a(f's_setprio 0\ns_cmp_lg_u32 s{LW}, 3\ns_cbranch_scc1 L_join')
lds_wait(196, 197, C_CV, 4, 2)
lds_wait(196, 197, C_OKW, 1, 2)
a('s_branch L_w7')
a('L_ld67:')
a(f's_waitcnt vmcnt({NT_})\ns_cmp_eq_u32 s{LW}, 3\ns_cbranch_scc1 L_ld7a')
for i in range(4): a(f'v_xor_b32 v{224+i}, s{S_TAG}, v{224+i}')
a('v_or3_b32 v224, v224, v225, v226\nv_or_b32 v224, v224, v227\nv_cmp_ne_u32 vcc, 0, v224\ns_cmp_eq_u64 vcc, 0\ns_cselect_b32 s72, 1, 0\ns_cbranch_scc0 L_w6a')
lds_add(196, 199, C_OK)
a(f'L_w6a:\nv_cmp_ne_u32 vcc, s{S_TAG}, v222\ns_cmp_eq_u64 vcc, 0\ns_cselect_b32 s73, 1, 0\ns_cbranch_scc0 L_w6b')
lds_add(196, 199, C_OKW)
a('L_w6b:\ns_barrier\ns_cmp_eq_u32 s72, 1\ns_cbranch_scc1 L_w6c')
poll4(16, 224, 2)
lds_add(196, 199, C_OK)
a('L_w6c:')
ts(4)
a('s_cmp_eq_u32 s73, 1\ns_cbranch_scc1 L_w6e')
poll([15], 20, 2)
lds_add(196, 199, C_OKW)
a('s_branch L_w6e\nL_ld7a:\ns_barrier\ns_branch L_ld7\nL_w6e:')
ts(5)
a(f's_cmp_lg_u32 s2, 0\ns_cbranch_scc1 L_help\ns_mov_b32 s71, {EPOCH}')
flag_store(71, 3, 4)
a('L_help:')
if not OPT['helpc']: a('s_branch L_join')
a(f'''s_mov_b32 s76, 0
s_mov_b32 s74, 1
s_mov_b32 s75, 2
v_lshrrev_b32 v1, 4, v0
v_and_b32 v2, 15, v0
v_lshlrev_b32 v10, 4, v0
v_add_u32 v3, 1, v2
v_and_b32 v4, 3, v3
v_sub_u32 v3, v3, v4
v_lshl_add_u32 v3, v1, 3, v3
v_mul_u32_u24 v4, {CS}, v4
v_lshl_add_u32 v22, v3, 1, v4
v_add_u32 v22, {CVREG[0] + 6*64}, v22
v_lshlrev_b32 v3, 4, v1
v_lshlrev_b32 v4, 5, v2
v_sub_u32 v3, v3, v4
v_add_u32 v23, {CVREG[0] + TSZ + 2*(2032-1792) + 6*64}, v3
v_mov_b32 v198, v196
v_add_u32 v24, {PART[0]}, v10
L_help_next:
v_mov_b32 v20, v22
v_mov_b32 v21, v23''')
for i in range(32): a(f'v_mov_b32 v{CACC+i}, 0')
lds_wait(198, 197, C_RD, 1, 1)
a('s_branch L_conv_main\nL_help_dump:')
lds_wait(196, 197, C_H, 4, 1)
for q in range(8): a(f'ds_write_b128 v24, {vr(CACC+4*q)} offset:{q*1024}')
a('s_waitcnt lgkmcnt(0)')
lds_add(198, 199, C_HD)
a(f'''v_add_u32 v198, 4, v198
v_add_u32 v22, {CVSZ}, v22
v_add_u32 v23, {CVSZ}, v23
v_add_u32 v24, {PART[1] - PART[0]}, v24
s_add_u32 s76, s76, 1
s_cmp_lt_u32 s76, 2
s_cbranch_scc1 L_help_next
s_setprio 0
s_branch L_join
L_ld7:''')
if not OPT['sta9']:
    lds_wait(196, 197, C_OKW, 1, 1)
a('s_mov_b32 s3, 1\ns_branch L_w7b')
a('L_w7:\ns_mov_b32 s3, 0\nL_w7b:')
g2_roles(67, 68, 78, 79, 64)
a(f'''v_lshlrev_b32 v10, 4, v0
v_add_u32 v11, 4096, v10
s_mul_i32 s75, s68, {48*5120}
s_add_u32 s75, s75, {WS_SIZE if OPT['x'] & 8 else WDP}''')
for _ in range(4): step12(78, 79, 64)
def stash(ldsbase):
    for i in range(2):
        a('s_mul_i32 s72, s78, 5120\ns_add_u32 s72, s72, s75')
        step12(78, 79, 64)
        for w in range(4):
            a(f's_mov_b32 m0, {ldsbase + w*10240 + i*5120}\ns_nop 0')
            for db in range(4): a(f'buffer_load_dwordx4 v10, {sr(S_WS)}, s72 offen offset:{db*1024} sc1 lds')
            a(f's_mov_b32 m0, {ldsbase + w*10240 + i*5120 + 4096}\ns_nop 0')
            a(f'buffer_load_dwordx4 v11, {sr(S_WS)}, s72 offen sc1 lds')
            if w < 3: a(f's_add_u32 s72, s72, {12*5120}')
a(f'''s_mul_i32 s68, s68, 80
s_lshl_b32 s69, s68, 4
''')
packed_lane(12, 20, F3)
a(f'''v_add_u32 v12, s69, v12
v_lshrrev_b32 v3, 3, v0
v_and_b32 v4, 7, v0
v_lshlrev_b32 v5, 4, v4
v_lshl_add_u32 v5, v3, 12, v5
v_and_b32 v6, 6, v3
v_xor_b32 v6, v6, v4
v_lshlrev_b32 v6, 4, v6
v_lshl_add_u32 v6, v3, 7, v6
v_add_u32 v6, {Y2L}, v6
s_lshl_b32 s69, s68, 12
s_lshl_b32 s70, s67, 7
s_add_u32 s69, s69, s70
s_add_u32 s69, s69, {Y2T}''')
if OPT['sta9']:
    a('s_cmp_eq_u32 s3, 0\ns_cbranch_scc1 L_w7c')
    lds_wait(196, 197, C_OKW, 1, 1)
    a('L_w7c:')
    stash(STA)
lds_wait(196, 197, C_H, 4, 2)
ts(4)
if not OPT['sta9']: stash(STA)
if OPT['lateb']:
    a('s_waitcnt vmcnt(0)')
    lds_add(196, 199, C_ST)
    lds_wait(196, 197, C_H, 8, 2)
    stash(STB)
else:
    stash(STB)
    a('s_waitcnt vmcnt(40)')
    lds_add(196, 199, C_ST)
a('s_waitcnt vmcnt(0)')
lds_add(196, 199, C_ST)
ts(5)
lds_wait(196, 197, C_H, 12, 4)
if not OPT['x'] & 4: poll4(12, 16, 4)
ts(1)
for i in range(10):
    a(f'buffer_load_dwordx4 {vr(16+4*i)}, v5, {sr(S_WS)}, s69 offen sc1')
    if i < 9: a(f's_add_u32 s69, s69, {8*4096}')
for i in range(10):
    a(f's_waitcnt vmcnt({9-i})')
    a(f'ds_write_b128 v6, {vr(16+4*i)} offset:{i*1024}')
ts(2)
a('L_join:\ns_waitcnt lgkmcnt(0)\ns_barrier')
ts(9)
ts_dump()
a('s_endpgm')

a('L_aux:')
WDL = 40960
GX = 104; GW = 132; G = 140
a(f'''s_and_b32 s3, s2, 7
s_lshl_b32 s3, s3, 3
s_bfe_u32 s64, s2, 0x30003
s_add_u32 s3, s3, s64
s_sub_u32 s{LW}, s{S_WAVE}, 4
v_lshlrev_b32 v8, 4, v0
v_lshlrev_b32 v9, 2, v0
v_add_u32 v3, {CNT}, v9
v_mov_b32 v4, 0
ds_write_b32 v3, v4
v_mov_b32 v196, {CNT}
v_mov_b32 v199, 1
s_mul_i32 s77, s{S_WAVE}, 4608''')
def aux_pf():
    if not OPT['apf']: return
    srd(a, S_WG, P_WG, 640*3072); srd(a, S_WU, P_WU, 640*3072); srd(a, S_X, P_Q, 2048*1280)
    a(f'''v_lshrrev_b32 v3, 3, v0
    v_mul_u32_u24 v3, 1280, v3
    v_and_b32 v4, 7, v0
    v_lshl_add_u32 v3, v4, 4, v3
    s_add_u32 s64, s{S_WAVE}, 2
    s_mul_i32 s65, s3, {32*1280}
    s_lshl_b32 s72, s64, 7
    s_add_u32 s65, s65, s72
    s_lshl_b32 s72, s64, 6
    s_add_u32 s72, s72, s3
    s_mul_i32 s72, s72, 3072''')
    for i in range(3):
        a(f'buffer_load_dwordx4 v[60:63], v8, {sr(S_WG)}, s72 offen offset:{1024*i}')
        a(f'buffer_load_dwordx4 v[60:63], v8, {sr(S_WU)}, s72 offen offset:{1024*i}')
    for i in range(4):
        a(f'buffer_load_dwordx4 v[60:63], v3, {sr(S_X)}, s65 offen\ns_add_u32 s65, s65, {8*1280}')
pass_setup_loads(3, S_WAVE, 77, 1, aux_pf)
def aux_wdg_loads():
    srd(a, S_WG, P_WD, 1536*1280); srd(a, S_WU, P_GW, 1280); srd(a, S_X, P_Q, 2048*1280)
    a(f's_lshl_b32 s79, s{S_WAVE}, 12\ns_add_u32 s79, s79, {WDL}')
    for i in range(2):
        a(f'''s_mul_i32 s64, s3, 15
        s_lshl_b32 s65, s{S_WAVE}, 1
        s_add_u32 s65, s65, {i}
        s_add_u32 s64, s64, s65
        s_mul_i32 s{68+2*i}, s64, 3277
        s_lshr_b32 s{68+2*i}, s{68+2*i}, 16
        s_mul_i32 s72, s{68+2*i}, 20
        s_sub_u32 s{69+2*i}, s64, s72
        s_cmp_ge_u32 s65, 15
        s_cselect_b32 s{68+2*i}, 100, s{68+2*i}
        s_mul_i32 s72, s{68+2*i}, {32*1280}
        s_lshl_b32 s73, s{69+2*i}, 6
        s_add_u32 s72, s72, s73
        s_add_u32 s73, s72, {16*1280}
        s_add_u32 m0, s79, {2048*i}
        s_nop 0
        buffer_load_dwordx4 v12, {sr(S_WG)}, s72 offen{NTW} lds
        s_add_u32 m0, s79, {2048*i + 1024}
        s_nop 0
        buffer_load_dwordx4 v12, {sr(S_WG)}, s73 offen{NTW} lds''')
    a(f'''s_lshl_b32 s76, s3, 3
s_add_u32 s76, s76, s{S_WAVE}
s_mul_i32 s67, s76, {4*1280}
s_add_u32 s72, s67, {3*1280}
buffer_load_dwordx4 {vr(GW)}, v8, {sr(S_WU)}, 0 offen
buffer_load_dword v{GW+4}, v9, {sr(S_WU)}, 0 offen offset:1024''')
    for i in range(4):
        so, o = (67, 1280 * i) if i < 3 else (72, 0)
        a(f'buffer_load_dwordx4 {vr(GX+6*i)}, v8, {sr(S_X)}, s{so} offen offset:{o}')
        a(f'buffer_load_dword v{GX+6*i+4}, v9, {sr(S_X)}, s{so} offen offset:{o+1024}')
a(f's_lshl_b32 s79, s{S_WAVE}, 12\ns_add_u32 s79, s79, {WDL}')
if not OPT['aord']: aux_wdg_loads()
if OPT['cpf']:
    a(f'''s_getpc_b64 s[72:73]
    L_pc:
    s_sub_u32 s72, s72, L_pc - {NAME}_kernel
    s_subb_u32 s73, s73, 0
    s_and_b32 s64, s3, 7
    s_mul_i32 s64, s64, (L_end - {NAME}_kernel) >> 10
    s_cmp_lg_u32 s{S_WAVE}, 7
    s_cselect_b32 s65, 0, ((L_end - {NAME}_kernel) >> 10) - 1
    v_min_u32 v3, s65, v0
    v_add_lshl_u32 v3, v3, s64, 7
    global_load_dword v39, v3, s[72:73]''')
NC = 1 if OPT['cpf'] else 0
ts(1)
srd(a, S_WS, P_WS, WS_SIZE)
pass_addr(3, S_WAVE, 77, 78)
a(f'''v_lshrrev_b32 v38, 2, v0
v_lshlrev_b32 v38, 6, v38
v_lshl_add_u32 v38, v18, 3, v38
v_add_u32 v38, s79, v38
s_waitcnt lgkmcnt(0)
s_barrier''')
make_tag()
a(f's_waitcnt vmcnt({(0 if OPT["aord"] else 14) + NC})')
ts(2)
pass_body(78, 67, 40)
if OPT['aord']: aux_wdg_loads()
def count_flag(coff, foff, L):
    a(f'''s_mov_b64 exec, 1
    ds_add_rtn_u32 v39, v196, v199 offset:{coff}
    s_mov_b64 exec, -1
    s_waitcnt lgkmcnt(0)
    v_readfirstlane_b32 s67, v39
    ''')
    packed_off(72, 3, foff, 73)
    a(f'''s_cmp_lg_u32 s67, 7
    s_cbranch_scc1 {L}''')
    flag_store(72, 1, 39)
    a(f'{L}:')
if OPT['aord']:
    a('s_waitcnt vmcnt(14)')
    count_flag(C_P, F1 + 24*128, 'L_ax_nf1')
    ts(3)
    a('s_waitcnt vmcnt(10)')
else:
    a(f's_waitcnt vmcnt({12 + NC})')
for i in range(4):
    o = 2048 * (i >> 1) + 32 * (i & 1)
    a(f'ds_read_b64_tr_b16 {vr(148+4*i,2)}, v38 offset:{o}\nds_read_b64_tr_b16 {vr(150+4*i,2)}, v38 offset:{o+1024}')
if OPT['aord']:
    a('s_waitcnt lgkmcnt(0)')
else:
    a('s_waitcnt vmcnt(0)')
    count_flag(C_P, F1 + 24*128, 'L_ax_nf1')
    ts(3)
for i in range(4):
    ks, pr = 68 + 2 * (i >> 1), 69 + 2 * (i >> 1)
    a(f'''s_lshl_b32 s64, s{pr}, 1
    s_add_u32 s64, s64, {i & 1}
    s_mul_i32 s65, s64, 13108
    s_lshr_b32 s65, s65, 16
    s_mul_i32 s72, s65, 5
    s_sub_u32 s64, s64, s72
    s_mul_i32 s65, s65, 48
    s_add_u32 s65, s65, s{ks}
    s_mul_i32 s65, s65, 5
    s_add_u32 s65, s65, s64
    s_lshl_b32 s65, s65, 10
    s_add_u32 s65, s65, {WDP}
    s_cmp_ge_u32 s{ks}, 48
    s_cselect_b32 s65, {WS_SIZE}, s65
    buffer_store_dwordx4 {vr(148+4*i)}, v8, {sr(S_WS)}, s65 offen sc1''')
if OPT['aord']: a('s_waitcnt vmcnt(4)')
gate_math(GX, GW, G)
a(f'''s_lshr_b32 s67, s76, 1
s_lshl_b32 s67, s67, 7
s_and_b32 s72, s76, 1
s_lshl_b32 s72, s72, 4
s_add_u32 s67, s67, s72
s_add_u32 s67, s67, {GATE}
v_mov_b32 v1, 0
s_mov_b32 exec_lo, 0
s_mov_b32 exec_hi, 0x80000000
buffer_store_dwordx4 {vr(G)}, v1, {sr(S_WS)}, s67 offen sc1
s_mov_b64 exec, -1
s_waitcnt vmcnt(0)''')
count_flag(C_P2, F1 + 32*128, 'L_ax_nf2')
stamp(3)
a(f's_cmp_lt_u32 s{S_WAVE}, 4\ns_cbranch_scc1 L_ax_c')
lds_wait(196, 197, C_P2, 8, 2)
a(f'''s_lshl_b32 s67, s3, 2
s_add_u32 s67, s67, s{LW}
s_add_u32 s67, s67, 384
s_mov_b32 s68, {CVREG[0]}
s_cmp_eq_u32 s{LW}, 1
s_cselect_b32 s68, {CVREG[1]}, s68
s_cmp_eq_u32 s{LW}, 2
s_cselect_b32 s68, {CVREG[2]}, s68
s_cmp_eq_u32 s{LW}, 3
s_cselect_b32 s68, {CVREG[3]}, s68''')
conv_T()
conv_addr()
a('s_waitcnt vmcnt(0)')
conv_build()
lds_wait(196, 197, C_OK, 1, 2)
conv_uT()
a('s_mov_b32 s74, 4\ns_mov_b32 s75, 0\ns_branch L_conv_main')
a('L_ax_c:')
a(f'''s_and_b32 s64, s3, 7
s_lshl_b32 s64, s64, 2
s_add_u32 s64, s64, s{S_WAVE}        ; 0..31
s_lshr_b32 s65, s3, 3                ; x
s_cmp_lg_u32 s{S_WAVE}, 0
s_cbranch_scc1 L_ax_c1
v_lshlrev_b32 v15, 7, v0
v_add_u32 v16, {F1 + 0x2000}, v15
v_add_u32 v17, {F1 + 0x4000}, v15
v_add_u32 v18, {F1 + 0x6000}, v15
v_add_u32 v19, {F1 + 0x8000}, v15
v_add_u32 v15, {F1}, v15''')
a(f's_lshl_b32 s73, s65, 7\ns_add_u32 s73, s73, {SUMU}\ns_and_b32 s72, s3, 7\ns_cmp_eq_u32 s72, 0\ns_cbranch_scc1 L_agg')
a('v_mov_b32 v15, s73\nv_add_u32 v16, 1024, v15')
if OPT['adir']:
    packed_lane(15, 64, F1)
    poll4(15, 20, OPT['asl'], 72)
else:
    poll([15], 20, OPT['asl'], 72)
lds_add(196, 199, C_OK)
poll([16], 20, OPT['asl'], 72)
lds_add(196, 199, C_OKW)
a('s_branch L_ax_c1\nL_agg:')
packed_lane(15, 64, F1)
packed_lane(16, 16, F1 + 32*128)
stamp(0)
poll4(15, 20, OPT['gsl'], 72)
stamp(1)
flag_store(73, 1, 2)
lds_add(196, 199, C_OK)
poll4(16, 20, OPT['gsl'], 72)
stamp(2)
a('s_add_u32 s73, s73, 1024')
flag_store(73, 1, 2)
lds_add(196, 199, C_OKW)
a('L_ax_c1:')
if OPT['pfe'] & 1:
    srd(a, S_A, P_SSM, 640*4096)
    a(f's_mul_i32 s67, s65, {48*4096}\ns_mul_i32 s72, s64, 6144\ns_add_u32 s67, s67, s72\ns_add_u32 s72, s67, 3072')
    for i in range(6): a(f'buffer_load_dwordx4 v[60:63], v8, {sr(S_A)}, s{67 if i < 3 else 72} offen offset:{(i%3)*1024}')
lds_wait(196, 197, C_OKW, 1, 2)
ts(4)
if OPT['pfe'] & 2:
    a(f'''s_and_b32 s73, s65, 4
    s_mul_i32 s73, s73, {48*5120}
    s_mul_i32 s74, s64, 30720
    s_add_u32 s73, s73, s74
    s_add_u32 s73, s73, {WDP}''')
    for i in range(30):
        a(f'buffer_load_dwordx4 v[60:63], v8, {sr(S_WS)}, s73 offen offset:{(i%3)*1024} sc1')
        if i % 3 == 2: a('s_add_u32 s73, s73, 3072')
if OPT['pfe'] & 4:
    a(f's_add_u32 s67, s67, {UT}\ns_add_u32 s72, s72, {UT}')
    for i in range(6): a(f'buffer_load_dwordx4 v[60:63], v8, {sr(S_WS)}, s{67 if i < 3 else 72} offen offset:{(i%3)*1024} sc1')
if OPT['pfe']:
    a('s_waitcnt vmcnt(0)')
    ts(1)
g2_setup()
a(f'v_mov_b32 v173, {CNT}\nv_mov_b32 v175, 1')
lds_add(173, 175, C_H)
a(f's_mov_b32 s73, {WS_SIZE}\ns_branch L_g2')
a('L_end:\ns_endpgm')
print(wrap(a.text(), grid=256, block=512, lds=LDS_TOTAL, vgpr=256, accum=256))
```

```python
import sys
from asmlib import *

OPT = dict(ts=0, gi=9, gm=1, ex=4, two=0, cdel=0, bchk=1, apf=0, x=0, map2=0, wst=1, qlds=1, qs=8, helpc=0, ut8=1, sta9=1, tsa=0, gsl=4, agg=1, xg=0, nt=7, osc=2, qnt=0, cpf=1, tsx=0, wpre=0, tb=1, peel=1, redi=1, hsl=2, pfit=1, bpre=0, tsg=0, rot2=0, prio=1, cprio=3, hpf=0, rf=3, lateb=0, ysig=5, lates=1, adir=1, aord=0, bn=6, fastp=1, lprio=0, fl=3, pfe=0, asl=12, nrot=5)
for x in sys.argv[1:]:
    k, v = x.split('='); OPT[k] = int(v)
TS = OPT['ts']

EPOCH = 0; SUMU = 0x400; SUMW = 0x800; F1 = 0x1000; F3 = 0xC000; F2 = 0x20000; GATE = 0x40000; DIAG = 0x80000
UT = 0x100000; Y2T = 0x380000; HB = 0x600000; WDP = 0xC00000; WS_SIZE = 0xE00000
STAGE = 49152
SPARE = 3 * STAGE
LDS_TOTAL = 163840
CS = 4160
TSZ = 4 * CS
CVSZ = TSZ + 4608
CVREG = [STAGE, STAGE + CVSZ, 2 * STAGE, 0]
Y2L = SPARE
CNT = SPARE + 10240
C_ST, C_H, C_P, C_OK, C_CV, C_OKW, C_P2 = 0, 4, 8, 12, 16, 20, 24
C_RD, C_HD = 32, 40
PART = [40960, 139264]
STA = 2 * STAGE
STB = 0
S_X, S_WG, S_WU, S_WS, S_A, S_B, S_C = 4, 8, 12, 16, 20, 24, 28
P_Q, P_K, P_V, P_SHK, P_SSM, P_SSMD, P_WG, P_WU, P_WD, P_GW, P_OUT, P_WS = 32, 34, 36, 38, 40, 42, 46, 48, 50, 52, 54, 58
S_WAVE, S_TAG, S_MT, S_NT = 60, 61, 62, 63
a = Asm()
NTK = ' nt' if OPT['nt'] & 1 else ''
NTW = ' nt' if OPT['nt'] & 2 else ''
NTS = ' nt' if OPT['nt'] & 4 else ''
NTG = ' nt' if OPT['nt'] & 8 else ''
NTX = ' nt' if OPT['nt'] & 16 else ''
def tsx(i):
    if OPT['tsx']: a(f's_memrealtime s[{80+2*i}:{81+2*i}]')
def ts(i):
    if OPT['tsx'] and i >= 4: return
    if TS == 1: a(f's_memrealtime s[{80+2*i}:{81+2*i}]')
    if TS == 2: a(f's_memtime s[{80+2*i}:{81+2*i}]')
def ts_dump():
    if not TS: return
    a('s_waitcnt lgkmcnt(0)')
    a(f's_lshl_b32 s64, s2, 3\ns_add_u32 s64, s64, s{S_WAVE}\ns_lshl_b32 s64, s64, 6\ns_add_u32 s64, s64, {DIAG}')
    for i in range(10): a(f'v_mov_b32 v{2+i}, s{80+2*i}')
    a('v_mov_b32 v1, 0\ns_mov_b64 exec, 1')
    a(f'buffer_store_dwordx4 v[2:5], v1, s[{S_WS}:{S_WS+3}], s64 offen')
    a(f'buffer_store_dwordx4 v[6:9], v1, s[{S_WS}:{S_WS+3}], s64 offen offset:16')
    a(f'buffer_store_dwordx2 v[10:11], v1, s[{S_WS}:{S_WS+3}], s64 offen offset:32')
def sr(s): return f's[{s}:{s+3}]'
def vr(v, n=4): return f'v[{v}:{v+n-1}]'

class Q:
    def __init__(self, name, cap): self.q = []; self.name = name; self.cap = cap
    def issue(self, tag, ins=None):
        if ins: a(ins)
        self.q.append(tag)
    def need(self, tags):
        if not isinstance(tags, set): tags = {tags}
        idx = max([i for i, t in enumerate(self.q) if t in tags], default=-1)
        if idx >= 0:
            n = len(self.q) - 1 - idx
            a(f's_waitcnt {self.name}({min(n, self.cap)})')
            self.q = self.q[idx+1:]
    def drain(self):
        a(f's_waitcnt {self.name}(0)'); self.q = []

def poll(addr_regs, tmp, slp=1, sc=64):
    L = a.label('L_poll'); D = a.label('L_pdone')
    a(f's_mov_b32 s{sc}, 0')
    a(f'{L}:')
    for i, r in enumerate(addr_regs):
        a(f'buffer_load_dword v{tmp+i}, v{r}, {sr(S_WS)}, 0 offen sc1')
    a('s_waitcnt vmcnt(0)')
    for i in range(len(addr_regs)): a(f'v_xor_b32 v{tmp+i}, s{S_TAG}, v{tmp+i}')
    for i in range(1, len(addr_regs)): a(f'v_or_b32 v{tmp}, v{tmp}, v{tmp+i}')
    a(f'''v_cmp_ne_u32 vcc, 0, v{tmp}
    s_add_u32 s{sc}, s{sc}, 1
    s_cmp_eq_u64 vcc, 0
    s_cbranch_scc1 {D}
    s_sleep {slp}
    s_cmp_lt_u32 s{sc}, 0x8000
    s_cbranch_scc1 {L}
    {D}:''')
def stamp(slot):
    if not OPT['tsa']: return
    a(f"""s_memrealtime s[100:101]
    s_waitcnt lgkmcnt(0)
    v_mov_b32 v62, s100
    v_mov_b32 v63, s72
    s_lshl_b32 s100, s2, 5
    s_add_u32 s100, s100, {DIAG + 0x60000 + slot*8}
    v_mov_b32 v198, 0
    s_mov_b64 exec, 1
    buffer_store_dwordx2 v[62:63], v198, {sr(S_WS)}, s100 offen
    s_mov_b64 exec, -1""")
def poll4(r, tmp, slp=1, sc=64):
    L = a.label('L_poll'); D = a.label('L_pdone')
    a(f"""s_mov_b32 s{sc}, 0
    {L}:
    buffer_load_dwordx4 {vr(tmp)}, v{r}, {sr(S_WS)}, 0 offen sc1
    s_waitcnt vmcnt(0)""")
    for i in range(4): a(f'v_xor_b32 v{tmp+i}, s{S_TAG}, v{tmp+i}')
    a(f"""v_or3_b32 v{tmp}, v{tmp}, v{tmp+1}, v{tmp+2}
    v_or_b32 v{tmp}, v{tmp}, v{tmp+3}
    v_cmp_ne_u32 vcc, 0, v{tmp}
    s_add_u32 s{sc}, s{sc}, 1
    s_cmp_eq_u64 vcc, 0
    s_cbranch_scc1 {D}
    s_sleep {slp}
    s_cmp_lt_u32 s{sc}, 0x8000
    s_cbranch_scc1 {L}
    {D}:""")
def packed_off(dst, idx, base, tmp):
    a(f"""s_lshr_b32 s{dst}, s{idx}, 3
    s_lshl_b32 s{dst}, s{dst}, 7
    s_and_b32 s{tmp}, s{idx}, 7
    s_lshl_b32 s{tmp}, s{tmp}, 2
    s_add_u32 s{dst}, s{dst}, s{tmp}
    s_add_u32 s{dst}, s{dst}, {base}""")
def packed_lane(dst, nlanes, base, first_line_sreg=None):
    a(f"""v_min_u32 v{dst}, {nlanes-1}, v0
    v_and_b32 v197, 1, v{dst}
    v_lshrrev_b32 v{dst}, 1, v{dst}
    v_lshlrev_b32 v{dst}, 7, v{dst}
    v_lshl_add_u32 v{dst}, v197, 4, v{dst}
    v_add_u32 v{dst}, {base}, v{dst}""")
def lds_wait(vaddr, vt, off, val, slp=0, s0=56, s1=57):
    L = a.label('L_lw')
    a(f'''s_mov_b32 s{s0}, 0
    {L}:
    ds_read_b32 v{vt}, v{vaddr} offset:{off}
    s_add_u32 s{s0}, s{s0}, 1
    s_waitcnt lgkmcnt(0)
    v_readfirstlane_b32 s{s1}, v{vt}
    s_cmp_ge_u32 s{s0}, 0x100000
    s_cselect_b32 s{s1}, {val}, s{s1}
    s_cmp_ge_u32 s{s1}, {val}''')
    if slp:
        D = a.label('L_lwd')
        a(f's_cbranch_scc1 {D}\ns_sleep {slp}\ns_branch {L}\n{D}:')
    else:
        a(f's_cbranch_scc0 {L}')
def lds_add(vaddr, vone, off, q=None):
    a('s_mov_b64 exec, 1')
    ins = f'ds_add_u32 v{vaddr}, v{vone} offset:{off}'
    if q: q.issue('sig', ins)
    else: a(ins)
    a('s_mov_b64 exec, -1')
def flag_store(soff_reg, vt0, vt1):
    a(f'''v_mov_b32 v{vt0}, s{S_TAG}
    v_mov_b32 v{vt1}, 0
    s_mov_b64 exec, 1
    buffer_store_dword v{vt0}, v{vt1}, {sr(S_WS)}, s{soff_reg} offen sc1
    s_mov_b64 exec, -1''')
def make_tag():
    a(f's_mul_i32 s{S_TAG}, s{S_TAG}, 1664525\ns_add_u32 s{S_TAG}, s{S_TAG}, 1013904223')
def g2_roles(sa, sj, sstart, sinc, t0):
    m = OPT['map2']
    if m == 0:
        a(f"""s_and_b32 s{sa}, s2, 1
        s_lshl_b32 s{sa}, s{sa}, 4
        s_and_b32 s{t0}, s2, 2
        s_lshl_b32 s{t0}, s{t0}, 2
        s_add_u32 s{sa}, s{sa}, s{t0}
        s_bfe_u32 s{t0}, s2, 0x30003
        s_add_u32 s{sa}, s{sa}, s{t0}
        s_and_b32 s{sj}, s2, 4
        s_lshr_b32 s{sinc}, s2, 6
        s_add_u32 s{sj}, s{sj}, s{sinc}
        s_lshl_b32 s{sinc}, s{sinc}, 1
        s_add_u32 s{t0}, s{t0}, s{sinc}""")
    elif m == 1:
        a(f"""s_and_b32 s{sa}, s2, 1
        s_lshl_b32 s{sa}, s{sa}, 4
        s_and_b32 s{t0}, s2, 6
        s_lshl_b32 s{t0}, s{t0}, 1
        s_add_u32 s{sa}, s{sa}, s{t0}
        s_bfe_u32 s{t0}, s2, 0x20003
        s_add_u32 s{sa}, s{sa}, s{t0}
        s_lshr_b32 s{sj}, s2, 5
        s_lshl_b32 s{t0}, s{t0}, 1
        s_add_u32 s{t0}, s{t0}, s{sj}""")
    else:
        a(f"""s_and_b32 s{sa}, s2, 1
        s_lshl_b32 s{sa}, s{sa}, 4
        s_bfe_u32 s{t0}, s2, 0x40003
        s_add_u32 s{sa}, s{sa}, s{t0}
        s_and_b32 s{sj}, s2, 6
        s_lshr_b32 s{sinc}, s2, 7
        s_add_u32 s{sj}, s{sj}, s{sinc}
        s_add_u32 s{t0}, s{t0}, s{sinc}""")
    r = OPT['rot2']
    if r == 0: a(f's_mov_b32 s{sstart}, 0\ns_mov_b32 s{sinc}, {2 if OPT["two"] else 1}')
    elif r == 1:
        a(f"""s_and_b32 s{sstart}, s{t0}, 3
        s_mul_i32 s{sstart}, s{sstart}, 3
        s_bitcmp1_b32 s{t0}, 2
        s_cselect_b32 s{t0}, 2, 0
        s_cselect_b32 s{sinc}, 11, 1
        s_add_u32 s{sstart}, s{sstart}, s{t0}""")
    elif r == 2: a(f's_and_b32 s{sstart}, s{t0}, 1\ns_mul_i32 s{sstart}, s{sstart}, 6\ns_mov_b32 s{sinc}, 1')
    elif r == 3: a(f's_and_b32 s{sstart}, s{t0}, 1\ns_mov_b32 s{sinc}, 1')
    elif r == 4: a(f's_and_b32 s{sstart}, s{t0}, 3\ns_mov_b32 s{sinc}, 1')
    elif r == 5: a(f's_and_b32 s{sstart}, s{t0}, 1\ns_mul_i32 s{sstart}, s{sstart}, 4\ns_mov_b32 s{sinc}, 1')
def step12(cur, inc, tmp):
    a(f'''s_add_u32 s{cur}, s{cur}, s{inc}
    s_cmp_ge_u32 s{cur}, 12
    s_cselect_b32 s{tmp}, {11 if OPT['two'] else 12}, 0
    s_sub_u32 s{cur}, s{cur}, s{tmp}''')
S_A2, S_J2, S_INC = 69, 70, 78
VL16, VL16B, VQO, VGO, VF2 = 4, 5, 3, 6, 7
def g2_setup():
    srd(a, S_A, P_OUT, 2048*1280)
    srd(a, S_X, P_Q, 2048*1280)
    g2_roles(S_A2, S_J2, 76, S_INC, 66)
    a(f'''s_mul_i32 s74, s{S_A2}, {48*4096}
    s_mul_i32 s66, s{S_WAVE}, {12*4096}
    s_add_u32 s74, s74, s66
    s_add_u32 s74, s74, {HB}
    s_mul_i32 s75, s{S_J2}, {48*5120}
    s_mul_i32 s66, s{S_WAVE}, {12*5120}
    s_add_u32 s75, s75, s66
    s_add_u32 s75, s75, {WDP}
    s_mov_b32 s77, s76
    {'s_mov_b32 s75, %d' % WS_SIZE if OPT['x'] & 8 else ''}
    {'s_mov_b32 s74, %d' % WS_SIZE if OPT['x'] & 16 else ''}
    v_and_b32 v1, 15, v0
    v_lshrrev_b32 v2, 4, v0
    s_lshl_b32 s66, s{S_A2}, 6
    s_lshl_b32 s67, s{S_WAVE}, 4
    s_add_u32 s66, s66, s67
    v_add_u32 v8, s66, v1
    v_mul_u32_u24 v{VQO}, 1280, v8
    v_lshl_add_u32 v{VQO}, v2, 3, v{VQO}
    s_mul_i32 s67, s{S_J2}, 160
    v_add_u32 v{VQO}, s67, v{VQO}
    v_lshrrev_b32 v9, 3, v8
    v_lshlrev_b32 v9, 7, v9
    v_and_b32 v8, 7, v8
    v_lshl_add_u32 v9, v8, 2, v9
    v_add_u32 v{VGO}, {GATE}, v9
    v_min_u32 v1, 5, v0
    v_lshlrev_b32 v1, 1, v1
    s_lshr_b32 s66, s{S_A2}, 1
    s_mul_i32 s66, s66, 12
    s_mul_i32 s67, s{S_WAVE}, 3
    s_add_u32 s66, s66, s67
    s_lshl_b32 s66, s66, 2
    s_and_b32 s67, s{S_A2}, 1
    s_add_u32 s66, s66, s67
    v_add_lshl_u32 v1, v1, s66, 7
    v_add_u32 v{VF2}, {F2}, v1
    v_lshlrev_b32 v{VL16}, 4, v0
    v_add_u32 v{VL16B}, 4096, v{VL16}''')

def pass_setup_loads(s_tt, s_pass, s_lds, z=1, hook=None):
    a(f"""v_lshrrev_b32 v1, 2, v0
    v_and_b32 v18, 3, v0
    v_mul_u32_u24 v12, 1280, v1
    v_lshl_add_u32 v12, v18, 4, v12
    s_lshl_b32 s67, s{s_tt}, 5
    s_sub_u32 s67, s67, 4
    s_mul_i32 s67, s67, 1280
    s_lshl_b32 s73, s{s_pass}, 6
    s_add_u32 s67, s67, s73
    v_add_u32 v13, s67, v12
    v_add_u32 v14, {16*1280}, v13
    v_add_u32 v15, {32*1280}, v13
    v_and_b32 v16, 31, v0
    s_lshl_b32 s73, s{s_pass}, 5
    v_add_lshl_u32 v17, v16, s73, 3
    s_waitcnt lgkmcnt(0)
    s_load_dword s{S_TAG}, s[{P_WS}:{P_WS+1}], {EPOCH}""")
    srd(a, S_A, P_K, 2048*1280*z); srd(a, S_B, P_V, 2048*1280*z); srd(a, S_C, P_SHK, 640*8)
    if hook: hook()
    a(f'buffer_load_dwordx2 v[10:11], v17, {sr(S_C)}, 0 offen')
    for i in range(3):
        if i == 2: a('s_mov_b64 exec, 0xffff')
        a(f's_add_u32 m0, s{s_lds}, {i*1024}\ns_nop 0')
        a(f'buffer_load_dwordx4 v{13+i}, {sr(S_A)}, 0 offen{NTK} lds')
        a(f's_add_u32 m0, s{s_lds}, {2304 + i*1024}\ns_nop 0')
        a(f'buffer_load_dwordx4 v{13+i}, {sr(S_B)}, 0 offen{NTK} lds')
        if i == 2: a('s_mov_b64 exec, -1')
def pass_addr(s_tt, s_pass, s_lds, s_ut):
    a(f"""v_lshrrev_b32 v25, 2, v0
    v_bfe_u32 v23, v25, 1, 2
    v_xor_b32 v23, v23, v18
    v_lshlrev_b32 v23, 4, v23
    v_lshl_add_u32 v23, v25, 6, v23
    v_add_u32 v23, s{s_lds}, v23
    v_lshlrev_b32 v24, 12, v25
    v_lshl_add_u32 v24, v18, 4, v24
    v_lshrrev_b32 v25, 5, v0
    v_lshlrev_b32 v20, 10, v25
    v_bfe_u32 v22, v0, 2, 2
    v_lshl_add_u32 v20, v22, 6, v20
    v_bfe_u32 v22, v0, 4, 1
    v_lshl_add_u32 v20, v22, 5, v20
    v_lshl_add_u32 v20, v18, 3, v20
    v_add_u32 v20, s{s_lds}, v20
    v_sub_u32 v25, 1, v25
    v_lshlrev_b32 v25, 1, v25
    v_bfe_u32 v22, v16, 1, 2
    v_xor_b32 v25, v25, v22
    v_lshlrev_b32 v25, 4, v25
    v_lshl_add_u32 v22, v16, 6, v25
    v_add_u32 v21, s{s_lds}, v22
    v_xor_b32 v22, 16, v21
    s_sub_u32 s{s_ut}, 63, s{s_tt}
    s_lshl_b32 s{s_ut}, s{s_ut}, 6
    s_add_u32 s{s_ut}, s{s_ut}, {UT}
    s_lshl_b32 s67, s{s_pass}, 17
    s_add_u32 s{s_ut}, s{s_ut}, s67""")
def pass_body(s_ut, s_tmp, B):
    P, V, Qr, K = B, B + 10, B + 17, B + 28
    for n in range(5): a(f'ds_read_b64_tr_b16 v[{P+2*n}:{P+1+2*n}], v20 offset:{256*n}')
    for n in range(1, 5): a(f'ds_read_b64_tr_b16 v[{V+2*(n-1)}:{V+1+2*(n-1)}], v20 offset:{2304+256*n}')
    a('v_alignbit_b32 v10, v10, v10, 16\nv_alignbit_b32 v11, v11, v11, 16\ns_waitcnt lgkmcnt(4)')
    for e in range(1, 10): a(f'v_alignbit_b32 v{Qr+e}, v{P+e}, v{P+e-1}, 16')
    for e in range(8):
        a(f'v_dot2_f32_bf16 v{K+2*e}, v{Qr+e+1}, v11, 0')
        a(f'v_dot2_f32_bf16 v{K+1+2*e}, v{P+e+1}, v11, 0')
    for e in range(8):
        a(f'v_dot2_f32_bf16 v{K+2*e}, v{Qr+e+2}, v10, v{K+2*e}')
        a(f'v_dot2_f32_bf16 v{K+1+2*e}, v{P+e+2}, v10, v{K+1+2*e}')
    a('s_waitcnt lgkmcnt(0)')
    for e in range(8):
        a(f'v_lshlrev_b32 v{P+e}, 16, v{V+e}')
        a(f'v_and_b32 v{Qr+1+e}, 0xffff0000, v{V+e}')
    for e in range(8):
        a(f'v_mul_f32 v{K+2*e}, v{K+2*e}, v{P+e}')
        a(f'v_mul_f32 v{K+1+2*e}, v{K+1+2*e}, v{Qr+1+e}')
    for o in range(8):
        e = 7 - o
        a(f'v_cvt_pk_bf16_f32 v{P+o}, v{K+1+2*e}, v{K+2*e}')
    a(f"""ds_write_b128 v21, {vr(P)}
    ds_write_b128 v22, {vr(P+4)}
    s_waitcnt lgkmcnt(0)
    ds_read_b128 {vr(P+8)}, v23
    ds_read_b128 {vr(P+12)}, v23 offset:1024
    s_add_u32 s{s_tmp}, s{s_ut}, {16*4096}
    s_waitcnt lgkmcnt(1)
    buffer_store_dwordx4 {vr(P+8)}, v24, {sr(S_WS)}, s{s_ut} offen sc1
    s_waitcnt lgkmcnt(0)
    buffer_store_dwordx4 {vr(P+12)}, v24, {sr(S_WS)}, s{s_tmp} offen sc1""")
def gate_math(GX, GW, G):
    for k in range(5):
        for i in range(4):
            a(f'v_dot2_f32_bf16 v{G+i}, v{GX+6*i+k}, v{GW+k}, ' + ('0' if k == 0 else f'v{G+i}'))
    a('s_nop 0')
    for sh in ('row_shr:1', 'row_shr:2', 'row_shr:4', 'row_shr:8'):
        for i in range(4): a(f'v_add_f32_dpp v{G+i}, v{G+i}, v{G+i} {sh} row_mask:0xf bank_mask:0xf bound_ctrl:0')
    for sh in ('row_bcast:15 row_mask:0xa', 'row_bcast:31 row_mask:0xc'):
        for i in range(4): a(f'v_add_f32_dpp v{G+i}, v{G+i}, v{G+i} {sh} bank_mask:0xf')
    for op in ('v_cvt_pk_bf16_f32 v{0}, v{0}, v{0}', 'v_and_b32 v{0}, 0xffff0000, v{0}', 'v_mul_f32 v{0}, 0xbfb8aa3b, v{0}', 'v_exp_f32 v{0}, v{0}',
               'v_add_f32 v{0}, 1.0, v{0}', 'v_rcp_f32 v{0}, v{0}', 'v_cvt_pk_bf16_f32 v{0}, v{0}, v{0}', 'v_and_b32 v{0}, 0xffff0000, v{0}'):
        for i in range(4): a(op.format(G + i))
a(f'''s_cmp_ge_u32 s2, 256
s_cbranch_scc1 L_end
s_load_dwordx16 s[32:47], s[0:1], 0
s_load_dwordx8 s[48:55], s[0:1], 64
s_load_dwordx2 s[58:59], s[0:1], 104''')
ts(0)
a(f'''v_lshrrev_b32 v1, 6, v0
v_and_b32 v0, 63, v0
s_and_b32 s{S_MT}, s2, 1
s_lshl_b32 s{S_MT}, s{S_MT}, 3
v_readfirstlane_b32 s{S_WAVE}, v1
s_bfe_u32 s64, s2, 0x30003
s_add_u32 s{S_MT}, s{S_MT}, s64
s_bfe_u32 s{S_NT}, s2, 0x20001
s_mul_i32 s{S_NT}, s{S_NT}, 3
s_lshr_b32 s64, s2, 6
s_add_u32 s{S_NT}, s{S_NT}, s64
s_cmp_ge_u32 s2, 192
s_cbranch_scc1 L_aux
{'s_endpgm' if OPT['xg'] else ''}
s_cmp_ge_u32 s{S_WAVE}, 4
s_cbranch_scc1 L_loader''')

ACC = 128; XF = [96, 112]; WF = 64; XA = [58, 59]; WA = [60, 61]
def acc1(mat, b, mb): return ACC + 4 * ((mat * 4 + b) * 4 + mb)
a(f'''s_and_b32 s64, s2, 7
s_mul_i32 s64, s64, 24
s_lshr_b32 s65, s2, 3
s_add_u32 s64, s64, s65
s_mul_i32 s76, s64, 21846
s_lshr_b32 s76, s76, 16
s_mul_i32 s65, s76, 3
s_sub_u32 s65, s64, s65
s_lshl_b32 s77, s65, 2
s_add_u32 s77, s77, s{S_WAVE}
s_add_u32 s77, s77, 8
s_mul_i32 s78, s{S_WAVE}, 4608
s_add_u32 s78, s78, {2*STAGE}
''')
packed_off(79, 2, F1, 65)
pass_setup_loads(76, 77, 78, 0 if OPT['x'] & 2 else 1)
if OPT['bpre']: a('s_barrier')
srd(a, S_WS, P_WS, WS_SIZE)
pass_addr(76, 77, 78, 44)
a(f'''s_and_b32 s64, s{S_WAVE}, 1        ; wm
s_lshr_b32 s65, s{S_WAVE}, 1        ; wn
v_and_b32 v1, 15, v0
s_lshl_b32 s66, s64, 6
v_add_u32 v1, s66, v1
v_lshrrev_b32 v2, 4, v0
v_bfe_u32 v3, v1, 1, 3
v_lshlrev_b32 v1, 7, v1
v_xor_b32 v4, v2, v3
v_lshl_add_u32 v{XA[0]}, v4, 4, v1
v_xor_b32 v4, 4, v4
v_lshl_add_u32 v{XA[1]}, v4, 4, v1
v_lshlrev_b32 v5, 11, v2
v_bfe_u32 v7, v0, 2, 2
v_lshl_add_u32 v5, v7, 6, v5
v_and_b32 v8, 3, v0
v_lshl_add_u32 v5, v8, 3, v5
s_lshl_b32 s66, s65, 9
s_add_u32 s66, s66, 16384
v_add_u32 v5, s66, v5
v_and_b32 v4, 1, v2
v_lshl_add_u32 v{WA[0]}, v4, 5, v5
v_xor_b32 v{WA[1]}, 32, v{WA[0]}''')
for i in range(128): a(f'v_mov_b32 v{ACC+i}, 0')
a(f'''s_lshl_b32 s66, s{S_MT}, 1
s_add_u32 s66, s66, s64
s_mul_i32 s66, s66, 48
s_lshl_b32 s67, s{S_NT}, 2
s_add_u32 s66, s66, s67
s_lshl_b32 s67, s65, 1
s_add_u32 s66, s66, s67
s_lshl_b32 s66, s66, 12
s_add_u32 s71, s66, {HB}
s_add_u32 s72, s71, 4096
s_mul_i32 s66, s{S_MT}, 12
s_add_u32 s66, s66, s{S_NT}
s_lshl_b32 s66, s66, 2
s_add_u32 s66, s66, s{S_WAVE}
s_lshl_b32 s66, s66, 7
s_add_u32 s73, s66, {F2}''')
g2_setup()
a('s_waitcnt lgkmcnt(0)')
make_tag()
a('s_waitcnt vmcnt(0)')
pass_body(44, 45, 64)
ts(1)
def rdX(st, fs, mb): return (f'X{mb}{fs}', f'ds_read_b128 {vr(XF[fs]+4*mb)}, v{XA[st]} offset:{mb*2048}')
def rdW(st, w):
    mat, b = w // 4, w % 4
    o = st * 8192 + mat * 16384 + (b >> 1) * 256
    return [(f'W{w}', f'ds_read_b64_tr_b16 {vr(WF+4*w,2)}, v{WA[b & 1]} offset:{o}'),
            (f'W{w}', f'ds_read_b64_tr_b16 {vr(WF+4*w+2,2)}, v{WA[b & 1]} offset:{o+1024}')]
WORD = [0, 4, 1, 5, 2, 6, 3, 7]
if OPT['cprio']: a(f's_setprio {OPT["cprio"]}')
a('s_barrier')
ts(3)
lq = Q('lgkmcnt', 15)
init = [rdX(0, 0, 0)] + rdW(0, WORD[0]) + [rdX(0, 0, m) for m in (1, 2, 3)]
for w in WORD[1:]: init += rdW(0, w)
for tag, ins in init: lq.issue(tag, ins)
a(f's_mov_b32 s64, 0\ns_mov_b32 s65, 0\ns_mov_b32 s67, {-2*STAGE & 0xffffffff}\ns_mov_b32 s68, {STAGE}')
def hprod(b, mb, dst):
    g = acc1(0, b, mb); u = acc1(1, b, mb)
    r = [f'v_mul_f32 v{g+i}, v{g+i}, v{u+i}' for i in range(4)]
    return r + [f'v_cvt_pk_bf16_f32 v{dst}, v{g}, v{g+1}', f'v_cvt_pk_bf16_f32 v{dst+1}, v{g+2}, v{g+3}']
def h_out(p, mb):
    d = 16 + 16 * p + 4 * mb
    return hprod(2 * p, mb, d) + hprod(2 * p + 1, mb, d + 2) + [f'buffer_store_dwordx4 {vr(d)}, v{VL16}, {sr(S_WS)}, s{71+p} offen offset:{mb*1024} sc1']
def g1_half(st, last):
    pend = []; extra = []
    for wi, w in enumerate(WORD):
        for mb in range(4):
            lq.need({f'W{w}', f'X{mb}{st}'})
            acc = acc1(w // 4, w % 4, mb)
            a(f'v_mfma_f32_16x16x32_bf16 {vr(acc)}, {vr(WF+4*w)}, {vr(XF[st]+4*mb)}, {vr(acc)}')
            n = wi * 4 + mb
            if st == 0:
                if n == 0: pend += [rdX(1, 1, m) for m in range(4)]
                if mb == 3: pend += rdW(1, w)
            elif last:
                if n == 21:
                    for m in range(4): extra += h_out(0, m)
                    if OPT['lates']:
                        st_ = [e for e in extra if e.startswith('buffer')]
                        extra = [e for e in extra if not e.startswith('buffer')]
                        extra = extra[:33] + st_[:2] + extra[33:] + st_[2:]
                for _ in range(3):
                    if extra: a(extra.pop(0))
            else:
                if n == 0:
                    a(f's_cmp_lg_u32 s64, {OPT["pfit"]}\ns_cbranch_scc1 L_g1_nw\ns_waitcnt vmcnt(0)\nL_g1_nw:')
                if n == 21:
                    a(f's_lshl_b32 s66, s{S_WAVE}, 4\ns_add_u32 s66, s66, s64\ns_cmp_lg_u32 s66, {OPT["pfit"]}\ns_cbranch_scc1 L_g1_nf')
                    flag_store(79, 1, 2)
                    stamp(3)
                    a('L_g1_nf:')
                if n == 1:
                    a('s_add_u32 s65, s65, 1\ns_cmp_eq_u32 s65, 3\ns_cselect_b32 s66, s67, s68\ns_cselect_b32 s65, 0, s65')
                if n in (2, 3, 4, 5):
                    r = (XA + WA)[n - 2]
                    a(f'v_add_u32 v{r}, s66, v{r}')
                if n == OPT['bn']:
                    lq.drain(); a('s_barrier')
                    pend += [rdX(0, 0, 0)] + rdW(0, WORD[0]) + [rdX(0, 0, m) for m in (1, 2, 3)]
                    for ww in range(1, (n + 1) // 4): pend += rdW(0, WORD[ww])
                if n > OPT['bn'] and mb == 3: pend += rdW(0, w)
            if pend and not (st == 1 and n < OPT['bn']):
                tag, ins = pend.pop(0); lq.issue(tag, ins)
    for tag, ins in pend: lq.issue(tag, ins)
    for e in extra: a(e)
q_top = list(lq.q)
a('.p2align 3\nL_g1_loop:')
g1_half(0, False)
g1_half(1, False)
a('s_add_u32 s64, s64, 1\ns_cmp_lt_u32 s64, 9\ns_cbranch_scc1 L_g1_loop')
seq = [(0, w) for w in WORD[:4]] + [(1, w) for w in WORD[:4]] + [(0, w) for w in WORD[4:]] + [(1, w) for w in WORD[4:]]
pend = [rdX(1, 1, m) for m in range(4)]; extra = []
for gi, (st, w) in enumerate(seq):
    for mb in range(4):
        lq.need({f'W{w}', f'X{mb}{st}'})
        acc = acc1(w // 4, w % 4, mb)
        a(f'v_mfma_f32_16x16x32_bf16 {vr(acc)}, {vr(WF+4*w)}, {vr(XF[st]+4*mb)}, {vr(acc)}')
        if st == 0 and mb == 3: pend += rdW(1, w)
        if gi == OPT['gi'] and mb == OPT['gm']:
            for m in range(4): extra += h_out(0, m)
        if pend:
            tag, ins = pend.pop(0); lq.issue(tag, ins)
        for _ in range(OPT['ex']):
            if extra: a(extra.pop(0))
assert not extra and not pend
ts(4)
a('s_nop 3')
for mb in range(4):
    for e in h_out(1, mb): a(e)
DH = 4
WR = 8; WT = 88; HR = 108; ACC2 = 176
a(f'v_mov_b32 v173, {CNT}\nv_mov_b32 v175, 1')
lds_add(173, 175, C_H)
lds_wait(173, 1, C_OKW, 1, 1)
a('L_g2:')
ts(2)
a(f'''s_mul_i32 s66, s{S_WAVE}, 10240
v_add_u32 v172, s66, v{VL16}
v_add_u32 v174, {STA}, v172''')
vq = Q('vmcnt', 63)
def ld_wd(s):
    r = WR + 20 * (s % 4)
    a(f's_mul_i32 s79, s77, 5120\ns_add_u32 s79, s79, s75')
    for _ in range(5 if s == 3 else 1): step12(77, S_INC, 66)
    for db in range(4): vq.issue(('w', s), f'buffer_load_dwordx4 {vr(r+4*db)}, v{VL16}, {sr(S_WS)}, s79 offen offset:{db*1024} sc1')
    vq.issue(('w', s), f'buffer_load_dwordx4 {vr(r+16)}, v{VL16B}, {sr(S_WS)}, s79 offen sc1')
def ld_h(s):
    r = HR + 16 * (s % DH)
    a(f's_lshl_b32 s79, s76, 12\ns_add_u32 s79, s79, s74')
    step12(76, S_INC, 66)
    for mb in range(4): vq.issue(('h', s), f'buffer_load_dwordx4 {vr(r+4*mb)}, v{VL16}, {sr(S_WS)}, s79 offen offset:{mb*1024} sc1')
if OPT['two']:
    a('s_waitcnt vmcnt(4)')
    flag_store(73, 1, 2)
    a('s_add_u32 s73, s73, 4')
if OPT['fastp']: a(f'buffer_load_dword v170, v{VF2}, {sr(S_WS)}, 0 offen sc1')
for s in range(OPT['wpre']): ld_wd(s)
for i in range(80): a(f'v_mov_b32 v{ACC2+i}, 0')
a(f's_waitcnt vmcnt({5*OPT["wpre"]})')
flag_store(73, 1, 2)
if OPT['cprio']: a('s_setprio 0')
ts(5)
for s in range(OPT['wpre'], 4): ld_wd(s)
if OPT['tsg']: a('s_waitcnt vmcnt(0)\ns_memrealtime s[100:101]\ns_waitcnt lgkmcnt(0)\nv_writelane_b32 v175, s100, 12')
if OPT['fastp']: a(f'v_cmp_ne_u32 vcc, s{S_TAG}, v170\ns_cmp_eq_u64 vcc, 0\ns_cbranch_scc1 L_hready')
if OPT['fastp'] == 2:
    pass
if not OPT['x'] & 32: poll([VF2], 1, OPT['hsl'])
a('L_hready:')
if OPT['tsg']: a('v_writelane_b32 v175, s64, 13')
vq.q = []
ts(7)
if OPT['hpf']:
    a(f'''v_min_u32 v1, 47, v0
    s_and_b32 s66, s{S_J2}, 3
    s_mul_i32 s66, s66, {96*128}
    v_lshl_add_u32 v1, v1, 7, s66''')
    vq.issue('pf', f'buffer_load_dword v2, v1, {sr(S_WS)}, s74 offen sc1')
    a(f'v_add_u32 v1, {48*128}, v1')
    vq.issue('pf', f'buffer_load_dword v2, v1, {sr(S_WS)}, s74 offen sc1')
for s in range(DH): ld_h(s)
def rd_st(s, db):
    base = 174 if s < 6 else 172
    return f'ds_read_b128 {vr(WT+4*db)}, v{base} offset:{(s & 1) * 5120 + db*1024}'
lq = Q('lgkmcnt', 15)
def sig():
    a('v_mov_b32 v1, 1'); lds_add(173, 1, C_H, lq)
sig()
QR = HR
def red_write(db):
    for o in range(4):
        t = db * 4 + o
        a(f'ds_write_b128 v{174 if t < 10 else 172}, {vr(ACC2+4*t)} offset:{(t % 10)*1024}')
for s in range(12):
    vq.need({('h', s), ('w', s)})
    if OPT['tsg']: a(f's_memrealtime s[100:101]\ns_waitcnt lgkmcnt(0)\nv_writelane_b32 v175, s100, {s}')
    r = HR + 16 * (s % DH); w = WT if 4 <= s < 8 else WR + 20 * (s % 4)
    if s == 3:
        lds_wait(173, 1, C_ST, 1); lq.q = []
        for db in range(5): lq.issue(('t', 4, db), rd_st(4, db))
    for db in range(5):
        if 4 <= s < 8: lq.need(('t', s, db))
        for mb in range(4):
            acc = ACC2 + 4 * (db * 4 + mb)
            a(f'v_mfma_f32_16x16x32_bf16 {vr(acc)}, {vr(w+4*db)}, {vr(r+4*mb)}, {vr(acc)}')
        if s == 11 and OPT['redi'] and db >= 1:
            if db == 1: a('s_nop 1')
            red_write(db - 1)
        if s == 5 and db == 0:
            lds_wait(173, 1, C_ST, 2); lq.q = []
        if 4 <= s < 7: lq.issue(('t', s + 1, db), rd_st(s + 1, db))
    if OPT['two'] and s == OPT['bchk']:
        vq.issue('fb', f'buffer_load_dword v2, v{VF2}, {sr(S_WS)}, 0 offen offset:4 sc1')
    if OPT['two'] and s == 2:
        vq.need('fb')
        a(f'v_cmp_ne_u32 vcc, s{S_TAG}, v2\ns_cmp_eq_u64 vcc, 0\ns_cbranch_scc1 L_bready\nv_add_u32 v{VF2}, 4, v{VF2}')
        poll([VF2], 1, OPT['hsl'])
        a('L_bready:')
    if s + DH < 12: ld_h(s + DH)
    if 0 <= s - OPT['rf'] < 4: ld_wd(s - OPT['rf'] + 8)
    if s == OPT['ysig']: sig()
    if s == 8:
        vq.issue('q', f'buffer_load_dword v{QR+10}, v{VGO}, {sr(S_WS)}, 0 offen sc1')
        if not OPT['qlds']:
            for db in range(5): vq.issue('q', f'buffer_load_dwordx2 {vr(QR+2*db,2)}, v{VQO}, {sr(S_X)}, 0 offen offset:{32*db}' + (' nt' if OPT['qnt'] else ''))
    if s == OPT['qs'] and OPT['qlds']:
        T = QR + 12 if s >= 8 else 170
        a(f'''s_lshl_b32 s64, s{S_A2}, 6
        s_lshl_b32 s65, s{S_WAVE}, 4
        s_add_u32 s64, s64, s65
        s_mul_i32 s64, s64, 1280
        s_mul_i32 s65, s{S_J2}, 160
        s_add_u32 s64, s64, s65
        s_and_b32 s65, s{S_WAVE}, 1
        s_mul_i32 s65, s65, 2560
        s_cmp_lt_u32 s{S_WAVE}, 2
        s_cselect_b32 s67, {139264 - 91648}, 0
        s_add_u32 s65, s65, s67
        s_add_u32 s65, s65, 91648''')
        for i in range(3):
            a(f'''v_add_u32 v{T}, {64*i}, v0
            v_mul_u32_u24 v{T+1}, 6554, v{T}
            v_lshrrev_b32 v{T+1}, 16, v{T+1}
            v_mul_u32_u24 v1, 10, v{T+1}
            v_sub_u32 v{T}, v{T}, v1
            v_mul_u32_u24 v{T+1}, 1280, v{T+1}
            v_lshl_add_u32 v{T}, v{T}, 4, v{T+1}
            s_add_u32 m0, s65, {1024*i}''')
            a('s_mov_b32 exec_hi, 0' if i == 2 else 's_nop 0')
            vq.issue('q', f'buffer_load_dwordx4 v{T}, {sr(S_X)}, s64 offen lds')
        a('s_mov_b32 exec_hi, -1')
ts(8)
if OPT['redi']:
    a(f's_lshl_b32 s66, s{S_WAVE}, 10\nv_add_u32 v88, s66, v{VL16}\nv_add_u32 v89, {STA}, v88')
    a(f's_mov_b32 s66, {STA + 8192}\ns_cmp_lt_u32 s{S_WAVE}, 2\ns_cselect_b32 s66, s66, {-2048 & 0xffffffff}\nv_add_u32 v90, s66, v88')
    red_write(4)
else:
    a('s_nop 7')
    for w in range(4):
        L = a.label('L_red')
        a(f's_cmp_lg_u32 s{S_WAVE}, {w}\ns_cbranch_scc1 {L}')
        for k in range(3):
            o = (w + 1 + k) & 3
            for db in range(5):
                a(f'ds_write_b128 v{174 if k < 2 else 172}, {vr(ACC2+4*(db*4+o))} offset:{(k & 1)*5120 + db*1024}')
        for db in range(5):
            for i in range(4): a(f'v_mov_b32 v{8+4*db+i}, v{ACC2+4*(db*4+w)+i}')
        for k in range(3):
            sw = (w - 1 - k) & 3
            a(f'v_add_u32 v{88+k}, {(STA if k < 2 else STB) + sw*10240 + (k & 1)*5120}, v{VL16}')
        a(f'{L}:')
a(f'''v_lshrrev_b32 v2, 2, v0
v_bfe_u32 v1, v2, 1, 2
v_xor_b32 v1, s{S_WAVE}, v1
v_lshlrev_b32 v1, 5, v1
v_lshl_add_u32 v2, v2, 7, v1
v_and_b32 v1, 3, v0
v_lshl_add_u32 v2, v1, 3, v2
v_add_u32 v2, {Y2L}, v2
v_bfe_u32 v91, v0, 4, 1
v_mul_u32_u24 v91, 24, v91
v_add_u32 v91, v91, v{VQO}
v_and_b32 v124, 15, v0
v_mul_u32_u24 v124, 160, v124
v_lshrrev_b32 v125, 4, v0
v_lshl_add_u32 v124, v125, 3, v124
v_add_u32 v124, s65, v124
s_waitcnt vmcnt(0)
v_sub_f32 v{QR+11}, 1.0, v{QR+10}''')
if OPT['qlds']:
    for db in range(5): a(f'ds_read_b64 {vr(QR+2*db,2)}, v124 offset:{32*db}')
a('s_waitcnt lgkmcnt(0)\ns_barrier')
ts(6)
YR = 92
for db in range(5): a(f'ds_read_b64_tr_b16 {vr(YR+2*db,2)}, v2 offset:{db*2048}')
if OPT['redi']:
    for k in range(4):
        for db in range(5):
            base, off = (89, db*4096) if db < 2 else (90, 0) if db == 2 else (88, (4*db-10)*1024)
            a(f'ds_read_b128 {vr(8+20*k+4*db)}, v{base} offset:{off + k*10240}')
    a('s_waitcnt lgkmcnt(15)')
else:
    for k in range(3):
        for db in range(5): a(f'ds_read_b128 {vr(28+20*k+4*db)}, v{88+k} offset:{db*1024}')
    a('s_waitcnt lgkmcnt(15)')
PR = 132
for db in range(5):
    for h in range(2):
        q = QR + 2*db + h; y = YR + 2*db + h; p = PR + 4*db + 2*h
        a(f'''v_lshlrev_b32 v124, 16, v{q}
        v_and_b32 v125, 0xffff0000, v{q}
        v_lshlrev_b32 v126, 16, v{y}
        v_and_b32 v127, 0xffff0000, v{y}
        v_mul_f32 v124, v124, v126
        v_mul_f32 v125, v125, v127
        v_mul_f32 v{p}, v{QR+10}, v124
        v_mul_f32 v{p+1}, v{QR+10}, v125''')
for k in range(3):
    a(f's_waitcnt lgkmcnt({10-5*k})')
    for i in range(20): a(f'v_add_f32 v{8+i}, v{8+i}, v{28+20*k+i}')
for db in range(5):
    for i in range(4): a(f'v_fma_f32 v{PR+4*db+i}, v{QR+11}, v{8+4*db+i}, v{PR+4*db+i}')
    a(f'v_cvt_pk_bf16_f32 v{152+2*db}, v{PR+4*db}, v{PR+1+4*db}\nv_cvt_pk_bf16_f32 v{153+2*db}, v{PR+2+4*db}, v{PR+3+4*db}')
    sfx = ['', ' sc1', ' nt', ' sc1 nt'][OPT['osc']]
    if OPT['wst'] and db in (1, 3):
        r = 152 + 2 * (db - 1)
        a(f's_nop 1\nv_permlane16_swap_b32 v{r}, v{r+2}\nv_permlane16_swap_b32 v{r+1}, v{r+3}')
        a(f'buffer_store_dwordx4 {vr(r)}, v91, {sr(S_A)}, 0 offen offset:{32*(db-1)}' + sfx)
    elif db == 4 or not OPT['wst']:
        a(f'buffer_store_dwordx2 {vr(152+2*db,2)}, v{VQO}, {sr(S_A)}, 0 offen offset:{32*db}' + sfx)
ts(9)
if OPT['tsg']:
    a(f's_lshl_b32 s64, s2, 2\ns_add_u32 s64, s64, s{S_WAVE}\ns_lshl_b32 s64, s64, 6\ns_add_u32 s64, s64, {DIAG + 0x30000}\nv_lshlrev_b32 v1, 2, v0\ns_mov_b64 exec, 0xffff')
    a(f'buffer_store_dword v175, v1, {sr(S_WS)}, s64 offen\ns_mov_b64 exec, -1')
ts_dump()
a('s_endpgm')

LW = 66
CACC = 32; CA = [64, 128]; CB = [96, 160]
def conv_T():
    srd(a, S_A, P_SSM, 640*4096)
    srd(a, S_B, P_SSMD, 1280)
    a(f's_lshl_b32 s69, s67, 12\ns_add_u32 s70, s68, {TSZ}\nv_lshlrev_b32 v10, 4, v0')
    for phi in (0, 2):
        a(f's_add_u32 s71, s69, {2*phi}')
        a(f's_add_u32 m0, s68, {phi*CS + 32}\ns_nop 0')
        for i in range(4): a(f'buffer_load_dwordx4 v10, {sr(S_A)}, s71 offen offset:{i*1024}{NTS} lds')
    a(f'''v_lshrrev_b32 v1, 4, v0
    v_and_b32 v2, 15, v0
    v_add3_u32 v3, v1, v2, -16
    v_lshlrev_b32 v4, 1, v3
    v_add_u32 v4, s69, v4
    v_cmp_gt_i32 vcc, 0, v3
    s_lshl_b32 s71, s67, 1
    v_mov_b32 v7, s71
    v_cndmask_b32 v4, v4, -1, vcc
    buffer_load_ushort v5, v4, {sr(S_A)}, 0 offen
    buffer_load_ushort v7, v7, {sr(S_B)}, 0 offen''')
def conv_uT():
    a(f's_add_u32 s71, s69, {UT}\ns_mov_b32 m0, s70\ns_nop 0')
    for i in range(4): a(f'buffer_load_dwordx4 v10, {sr(S_WS)}, s71 offen offset:{i*1024} sc1 lds')
def conv_addr():
    a(f'''v_mul_u32_u24 v8, {CS}, v1
    v_add_u32 v8, s68, v8
    v_lshl_add_u32 v9, v2, 1, v8
    v_add_u32 v11, s68, v10
    v_mov_b32 v12, 0
    v_mov_b32 v13, 0
    v_lshl_add_u32 v14, v0, 3, s70
    ds_write_b64 v14, v[12:13] offset:4096
    v_add_u32 v3, 1, v2
    v_and_b32 v4, 3, v3
    v_sub_u32 v3, v3, v4
    v_lshl_add_u32 v3, v1, 3, v3
    v_mul_u32_u24 v4, {CS}, v4
    v_lshl_add_u32 v20, v3, 1, v4
    v_add_u32 v20, s68, v20
    v_lshlrev_b32 v3, 4, v1
    v_lshlrev_b32 v4, 5, v2
    v_sub_u32 v3, v3, v4
    v_add_u32 v3, {2*(2032-1792)}, v3
    v_add_u32 v21, s70, v3''')
    for i in range(32): a(f'v_mov_b32 v{CACC+i}, 0')
def conv_build():
    for i in range(4):
        b = 64 + 16 * i
        a(f'''ds_read_b128 {vr(b)}, v11 offset:{32 + i*1024}
        ds_read_b128 {vr(b+4)}, v11 offset:{2*CS + 32 + i*1024}
        ds_read_b64 {vr(b+10,2)}, v11 offset:{32 + i*1024 + 16}''')
    a('ds_write_b16 v9, v5\nv_lshlrev_b32 v7, 16, v7')
    for i in range(4):
        b = 64 + 16 * i
        a(f's_waitcnt lgkmcnt({min(15, 3*(3-i) + 1 + 2*i)})')
        for k in range(4): a(f'v_alignbit_b32 v{b+12+k}, v{b+4+k}, v{b+k}, 16')
        C = [b+2, b+3, b+10, b+11]
        for k in range(4): a(f'v_alignbit_b32 v{b+4+k}, v{C[k]}, v{b+4+k}, 16')
        a(f'ds_write_b128 v11, {vr(b+12)} offset:{CS + 32 + i*1024}\nds_write_b128 v11, {vr(b+4)} offset:{3*CS + 32 + i*1024}')

a('L_loader:')
if OPT['lprio']: a(f's_setprio {OPT["lprio"]}')
tsx(4)
a(f'''s_sub_u32 s{LW}, s{S_WAVE}, 4
v_lshrrev_b32 v3, 3, v0
s_lshl_b32 s67, s{LW}, 5
s_lshl_b32 s68, s{S_MT}, 7
s_add_u32 s67, s67, s68
v_bfe_u32 v4, v3, 1, 3
v_and_b32 v5, 7, v0
v_xor_b32 v4, v4, v5
v_add_u32 v3, s67, v3
v_mul_u32_u24 v3, 1280, v3
v_lshl_add_u32 v200, v4, 4, v3
v_xor_b32 v4, 4, v4
v_lshl_add_u32 v201, v4, 4, v3
v_add_u32 v201, {8*1280}, v201
v_add_u32 v202, {16*1280}, v200
v_add_u32 v203, {16*1280}, v201
v_bfe_u32 v3, v0, 2, 2
s_lshl_b32 s67, s{LW}, 4
v_add_u32 v3, s67, v3
v_mul_u32_u24 v3, 3072, v3
v_lshrrev_b32 v4, 4, v0
v_lshl_add_u32 v3, v4, 6, v3
v_and_b32 v4, 3, v0
v_lshl_add_u32 v3, v4, 4, v3
s_lshl_b32 s67, s{S_NT}, 8
v_add_u32 v204, s67, v3
v_add_u32 v205, {4*3072}, v204
v_xor_b32 v206, 32, v204
v_add_u32 v206, {8*3072}, v206
v_add_u32 v207, {4*3072}, v206
s_add_u32 s68, s{S_MT}, s{S_NT}
s_mul_i32 s69, s68, 6554
s_lshr_b32 s69, s69, 16
s_mul_i32 s69, s69, 10
s_sub_u32 s68, s68, s69''')
if OPT['nrot'] >= 100:
    cm, cn = (OPT['nrot'] // 10) % 10, OPT['nrot'] % 10
    a(f's_mul_i32 s68, s{S_MT}, {cm}\ns_mul_i32 s69, s{S_NT}, {cn}\ns_add_u32 s68, s68, s69\ns_mul_i32 s69, s68, 13108\ns_lshr_b32 s69, s69, 16\ns_mul_i32 s69, s69, 5\ns_sub_u32 s68, s68, s69\ns_lshl_b32 s68, s68, 1')
if OPT['nrot'] == 1: a('s_mov_b32 s68, 0')
if OPT['nrot'] == 2: a('s_and_b32 s68, s68, 1\ns_mul_i32 s68, s68, 5')
if OPT['nrot'] == 5: a('s_and_b32 s68, s68, 14')
if OPT['nrot'] == 3: a('s_mul_i32 s69, s68, 86\ns_lshr_b32 s69, s69, 8\ns_mul_i32 s69, s69, 3\ns_sub_u32 s68, s68, s69\ns_mul_i32 s68, s68, 3')
a(f'''s_lshl_b32 s69, s{LW}, 12
s_mov_b32 s71, 0
s_waitcnt lgkmcnt(0)
s_load_dword s{S_TAG}, s[{P_WS}:{P_WS+1}], {EPOCH}''')
tsx(5)
srd(a, S_X, P_Q, 2048*1280)
srd(a, S_WG, P_WG, 640*3072)
srd(a, S_WU, P_WU, 640*3072)
if OPT['bpre']: a('s_barrier')
def g1_issue():
    a(f's_lshl_b32 s72, s68, 7\ns_mul_i32 s73, s68, {64*3072}\ns_add_u32 s74, s71, s69')
    for j in range(4):
        a(f's_add_u32 m0, s74, {j*1024}\n' + ('s_add_u32 s68, s68, 1' if j == 0 else 's_nop 0'))
        a(f'buffer_load_dwordx4 v{200+j}, {sr(S_X)}, s72 offen{NTX} lds')
    for n in range(4):
        a(f's_add_u32 m0, s74, {16384 + n*1024}\ns_nop 0')
        a(f'buffer_load_dwordx4 v{204+n}, {sr(S_WG)}, s73 offen{NTG} lds')
        a(f's_add_u32 m0, s74, {32768 + n*1024}\ns_nop 0')
        a(f'buffer_load_dwordx4 v{204+n}, {sr(S_WU)}, s73 offen{NTG} lds')
    a(f'''s_cmp_ge_u32 s68, 10
    s_cselect_b32 s68, 0, s68
    s_add_u32 s71, s71, {STAGE}
    s_cmp_eq_u32 s71, {3*STAGE}
    s_cselect_b32 s71, 0, s71''')
tsx(6)
g1_issue()
tsx(7)
srd(a, S_WS, P_WS, WS_SIZE)
a(f'''v_lshlrev_b32 v15, 7, v0
v_add_u32 v16, {F1 + 0x2000}, v15
v_add_u32 v17, {F1 + 0x4000}, v15
v_add_u32 v18, {F1 + 0x6000}, v15
v_add_u32 v19, {F1 + 0x8000}, v15
v_add_u32 v15, {F1}, v15
v_lshl_add_u32 v3, v0, 2, 0
v_add_u32 v3, {CNT}, v3
v_mov_b32 v4, 0
ds_write_b32 v3, v4
v_mov_b32 v196, {CNT}
v_mov_b32 v199, 1
s_waitcnt lgkmcnt(0)''')
make_tag()
g1_issue()
a('s_mov_b32 s76, 0')
ts(1)
a('L_ld_loop:\ns_waitcnt vmcnt(12)')
a('s_barrier')
if TS == 1: a('s_memrealtime s[100:101]\ns_waitcnt lgkmcnt(0)\ns_mov_b32 m0, s76\ns_nop 0\nv_writelane_b32 v220, s100, m0')
g1_issue()
a('s_add_u32 s76, s76, 1\ns_cmp_lt_u32 s76, 8\ns_cbranch_scc1 L_ld_loop')
assert OPT['fl'] + 2 <= 7
a(f'''s_and_b32 s64, s2, 7
s_lshl_b32 s64, s64, 7
s_add_u32 s64, s64, {SUMW}
v_mov_b32 v15, s64
s_cmp_lg_u32 s{LW}, 2
s_cbranch_scc1 L_b8n''')
packed_lane(16, 64, F1)
a(f'''buffer_load_dwordx4 v[224:227], v16, {sr(S_WS)}, 0 offen sc1
buffer_load_dword v222, v15, {sr(S_WS)}, 0 offen sc1
s_waitcnt vmcnt(14)
s_branch L_b8
L_b8n:
s_waitcnt vmcnt(12)
L_b8:
s_barrier''')
ts(2)
if TS == 1:
    a(f's_lshl_b32 s64, s2, 2\ns_add_u32 s64, s64, s{LW}\ns_lshl_b32 s64, s64, 6\ns_add_u32 s64, s64, {DIAG + 0x20000}\nv_lshlrev_b32 v1, 2, v0\ns_mov_b64 exec, 0xff')
    a(f'buffer_store_dword v220, v1, {sr(S_WS)}, s64 offen\ns_mov_b64 exec, -1')
NT_ = 1 if TS == 1 else 0
a(f's_cmp_ge_u32 s{LW}, 2\ns_cbranch_scc1 L_ld67')
a(f'''s_and_b32 s67, s2, 7
s_mul_i32 s67, s67, 24
s_lshr_b32 s68, s2, 3
s_add_u32 s67, s67, s68
s_lshl_b32 s67, s67, 1
s_add_u32 s67, s67, s{LW}
s_mul_i32 s68, s{LW}, {CVSZ}
s_add_u32 s68, s68, {CVREG[0]}''')
if OPT['x'] & 1:
    a('s_waitcnt vmcnt(0)\ns_barrier')
    packed_off(71, 67, F3, 72); flag_store(71, 3, 4); a('s_branch L_join')
conv_T()
conv_addr()
a(f's_waitcnt vmcnt({10 + NT_})')
if OPT['ut8']:
    a(f'ds_read_b32 v197, v196 offset:{C_OK}\ns_waitcnt lgkmcnt(0)\nv_readfirstlane_b32 s57, v197\ns_nop 0\ns_cmp_eq_u32 s57, 0\ns_cbranch_scc1 L_cv_l')
    conv_uT()
    a('s_barrier\ns_branch L_cv_b\nL_cv_l:')
a('s_barrier')
lds_wait(196, 197, C_OK, 1, 1)
conv_uT()
a('L_cv_b:')
ts(4)
if OPT['cdel'] == 1: lds_wait(196, 197, C_H, 4, 2)
a('s_waitcnt vmcnt(4)')
conv_build()
if OPT['cdel'] == 2: lds_wait(196, 197, C_H, 4, 2)
a(f's_mov_b32 s74, {3 if OPT["helpc"] else 4}\ns_mov_b32 s75, {1 if OPT["helpc"] else 0}\ns_lshl_b32 s72, s{LW}, 2\nv_add_u32 v198, s72, v196\ns_waitcnt vmcnt(0) lgkmcnt(0)')
lds_add(198, 199, C_RD)
a('L_conv_main:\ns_waitcnt vmcnt(0)')
ts(6)
a(f's_setprio {OPT["prio"]}')
def conv_reads(fs):
    r = []
    def A(k): return [(f'A{k}{fs}', f'ds_read_b64 {vr(CA[fs]+4*k,2)}, v20 offset:{k*512}'), (f'A{k}{fs}', f'ds_read_b64 {vr(CA[fs]+4*k+2,2)}, v20 offset:{k*512+8}')]
    def B(d): return [(f'B{d}{fs}', f'ds_read_b128 {vr(CB[fs]+4*d)}, v21 offset:{(7-d)*512}')]
    r += A(0)
    for d in range(8): r += B(d)
    for k in range(1, 8): r += A(k)
    return r
lq = Q('lgkmcnt', 15)
for tag, ins in conv_reads(0): lq.issue(tag, ins)
a('s_mov_b32 s71, 0\n.p2align 3\nL_conv_loop:')
for fs in range(2):
    nxt = conv_reads(fs ^ 1)
    a('v_add_u32 v20, 64, v20\nv_add_u32 v21, 64, v21')
    n = 0
    for k in range(8):
        for q in range(k, 8):
            lq.need({f'A{k}{fs}', f'B{q-k}{fs}'})
            a(f'v_mfma_f32_16x16x32_bf16 {vr(CACC+4*q)}, {vr(CA[fs]+4*k)}, {vr(CB[fs]+4*(q-k))}, {vr(CACC+4*q)}')
            n += 1
            if n >= 9 and nxt:
                tag, ins = nxt.pop(0); lq.issue(tag, ins)
    assert not nxt
a('s_add_u32 s71, s71, 1\ns_cmp_lt_u32 s71, s74\ns_cbranch_scc1 L_conv_loop')
a('s_cmp_eq_u32 s75, 2\ns_cbranch_scc1 L_help_dump\ns_cmp_eq_u32 s75, 0\ns_cbranch_scc1 L_conv_ep')
lds_wait(198, 197, C_HD, 1, 1)
a(f's_mul_i32 s72, s{LW}, {PART[1] - PART[0]}\ns_add_u32 s72, s72, {PART[0]}\nv_add_u32 v3, s72, v10')
for q in range(8): a(f'ds_read_b128 {vr(128+4*q)}, v3 offset:{q*1024}')
for q in range(8):
    a(f's_waitcnt lgkmcnt({7-q})')
    for i in range(4): a(f'v_add_f32 v{CACC+4*q+i}, v{CACC+4*q+i}, v{128+4*q+i}')
a('L_conv_ep:')
ts(7)
a(f'''s_waitcnt lgkmcnt(0)
v_lshlrev_b32 v3, 3, v1
v_lshl_add_u32 v3, v2, 5, v3
v_sub_u32 v4, {2*(2044-1792)}, v3
v_add_u32 v4, s70, v4
v_add_u32 v3, s68, v3''')
for q in range(8): a(f'ds_read_b64 {vr(64+2*q,2)}, v4 offset:{(7-q)*512}')
for q in range(8):
    u = 64 + 2*q; y = CACC + 4*q; t = 96 + 4*q
    a(f'''s_waitcnt lgkmcnt(7)
    v_and_b32 v{t}, 0xffff0000, v{u+1}
    v_lshlrev_b32 v{t+1}, 16, v{u+1}
    v_and_b32 v{t+2}, 0xffff0000, v{u}
    v_lshlrev_b32 v{t+3}, 16, v{u}''')
    for i in range(4): a(f'v_fma_f32 v{y+i}, v{t+i}, v7, v{y+i}')
    a(f'v_cvt_pk_bf16_f32 v{u}, v{y}, v{y+1}\nv_cvt_pk_bf16_f32 v{u+1}, v{y+2}, v{y+3}')
    a(f'ds_write_b64 v3, {vr(u,2)} offset:{q*512}')
a(f's_add_u32 s71, s69, {Y2T}\ns_waitcnt lgkmcnt(0)')
for i in range(4): a(f'ds_read_b128 {vr(96+4*i)}, v11 offset:{i*1024}')
for i in range(4):
    a(f's_waitcnt lgkmcnt({3-i})')
    a(f'buffer_store_dwordx4 {vr(96+4*i)}, v10, {sr(S_WS)}, s71 offen offset:{i*1024} sc1')
lds_add(196, 199, C_CV)
packed_off(71, 67, F3, 72)
a('s_waitcnt vmcnt(0)')
flag_store(71, 3, 4)
ts(8)
a(f's_setprio 0\ns_cmp_lg_u32 s{LW}, 3\ns_cbranch_scc1 L_join')
lds_wait(196, 197, C_CV, 4, 2)
lds_wait(196, 197, C_OKW, 1, 2)
a('s_branch L_w7')
a('L_ld67:')
a(f's_waitcnt vmcnt({NT_})\ns_cmp_eq_u32 s{LW}, 3\ns_cbranch_scc1 L_ld7a')
for i in range(4): a(f'v_xor_b32 v{224+i}, s{S_TAG}, v{224+i}')
a('v_or3_b32 v224, v224, v225, v226\nv_or_b32 v224, v224, v227\nv_cmp_ne_u32 vcc, 0, v224\ns_cmp_eq_u64 vcc, 0\ns_cselect_b32 s72, 1, 0\ns_cbranch_scc0 L_w6a')
lds_add(196, 199, C_OK)
a(f'L_w6a:\nv_cmp_ne_u32 vcc, s{S_TAG}, v222\ns_cmp_eq_u64 vcc, 0\ns_cselect_b32 s73, 1, 0\ns_cbranch_scc0 L_w6b')
lds_add(196, 199, C_OKW)
a('L_w6b:\ns_barrier\ns_cmp_eq_u32 s72, 1\ns_cbranch_scc1 L_w6c')
poll4(16, 224, 2)
lds_add(196, 199, C_OK)
a('L_w6c:')
ts(4)
a('s_cmp_eq_u32 s73, 1\ns_cbranch_scc1 L_w6e')
poll([15], 20, 2)
lds_add(196, 199, C_OKW)
a('s_branch L_w6e\nL_ld7a:\ns_barrier\ns_branch L_ld7\nL_w6e:')
ts(5)
a(f's_cmp_lg_u32 s2, 0\ns_cbranch_scc1 L_help\ns_mov_b32 s71, {EPOCH}')
flag_store(71, 3, 4)
a('L_help:')
if not OPT['helpc']: a('s_branch L_join')
a(f'''s_mov_b32 s76, 0
s_mov_b32 s74, 1
s_mov_b32 s75, 2
v_lshrrev_b32 v1, 4, v0
v_and_b32 v2, 15, v0
v_lshlrev_b32 v10, 4, v0
v_add_u32 v3, 1, v2
v_and_b32 v4, 3, v3
v_sub_u32 v3, v3, v4
v_lshl_add_u32 v3, v1, 3, v3
v_mul_u32_u24 v4, {CS}, v4
v_lshl_add_u32 v22, v3, 1, v4
v_add_u32 v22, {CVREG[0] + 6*64}, v22
v_lshlrev_b32 v3, 4, v1
v_lshlrev_b32 v4, 5, v2
v_sub_u32 v3, v3, v4
v_add_u32 v23, {CVREG[0] + TSZ + 2*(2032-1792) + 6*64}, v3
v_mov_b32 v198, v196
v_add_u32 v24, {PART[0]}, v10
L_help_next:
v_mov_b32 v20, v22
v_mov_b32 v21, v23''')
for i in range(32): a(f'v_mov_b32 v{CACC+i}, 0')
lds_wait(198, 197, C_RD, 1, 1)
a('s_branch L_conv_main\nL_help_dump:')
lds_wait(196, 197, C_H, 4, 1)
for q in range(8): a(f'ds_write_b128 v24, {vr(CACC+4*q)} offset:{q*1024}')
a('s_waitcnt lgkmcnt(0)')
lds_add(198, 199, C_HD)
a(f'''v_add_u32 v198, 4, v198
v_add_u32 v22, {CVSZ}, v22
v_add_u32 v23, {CVSZ}, v23
v_add_u32 v24, {PART[1] - PART[0]}, v24
s_add_u32 s76, s76, 1
s_cmp_lt_u32 s76, 2
s_cbranch_scc1 L_help_next
s_setprio 0
s_branch L_join
L_ld7:''')
if not OPT['sta9']:
    lds_wait(196, 197, C_OKW, 1, 1)
a('s_mov_b32 s3, 1\ns_branch L_w7b')
a('L_w7:\ns_mov_b32 s3, 0\nL_w7b:')
g2_roles(67, 68, 78, 79, 64)
a(f'''v_lshlrev_b32 v10, 4, v0
v_add_u32 v11, 4096, v10
s_mul_i32 s75, s68, {48*5120}
s_add_u32 s75, s75, {WS_SIZE if OPT['x'] & 8 else WDP}''')
for _ in range(4): step12(78, 79, 64)
def stash(ldsbase):
    for i in range(2):
        a('s_mul_i32 s72, s78, 5120\ns_add_u32 s72, s72, s75')
        step12(78, 79, 64)
        for w in range(4):
            a(f's_mov_b32 m0, {ldsbase + w*10240 + i*5120}\ns_nop 0')
            for db in range(4): a(f'buffer_load_dwordx4 v10, {sr(S_WS)}, s72 offen offset:{db*1024} sc1 lds')
            a(f's_mov_b32 m0, {ldsbase + w*10240 + i*5120 + 4096}\ns_nop 0')
            a(f'buffer_load_dwordx4 v11, {sr(S_WS)}, s72 offen sc1 lds')
            if w < 3: a(f's_add_u32 s72, s72, {12*5120}')
a(f'''s_mul_i32 s68, s68, 80
s_lshl_b32 s69, s68, 4
''')
packed_lane(12, 20, F3)
a(f'''v_add_u32 v12, s69, v12
v_lshrrev_b32 v3, 3, v0
v_and_b32 v4, 7, v0
v_lshlrev_b32 v5, 4, v4
v_lshl_add_u32 v5, v3, 12, v5
v_and_b32 v6, 6, v3
v_xor_b32 v6, v6, v4
v_lshlrev_b32 v6, 4, v6
v_lshl_add_u32 v6, v3, 7, v6
v_add_u32 v6, {Y2L}, v6
s_lshl_b32 s69, s68, 12
s_lshl_b32 s70, s67, 7
s_add_u32 s69, s69, s70
s_add_u32 s69, s69, {Y2T}''')
if OPT['sta9']:
    a('s_cmp_eq_u32 s3, 0\ns_cbranch_scc1 L_w7c')
    lds_wait(196, 197, C_OKW, 1, 1)
    a('L_w7c:')
    stash(STA)
lds_wait(196, 197, C_H, 4, 2)
ts(4)
if not OPT['sta9']: stash(STA)
if OPT['lateb']:
    a('s_waitcnt vmcnt(0)')
    lds_add(196, 199, C_ST)
    lds_wait(196, 197, C_H, 8, 2)
    stash(STB)
else:
    stash(STB)
    a('s_waitcnt vmcnt(40)')
    lds_add(196, 199, C_ST)
a('s_waitcnt vmcnt(0)')
lds_add(196, 199, C_ST)
ts(5)
lds_wait(196, 197, C_H, 12, 4)
if not OPT['x'] & 4: poll4(12, 16, 4)
ts(1)
for i in range(10):
    a(f'buffer_load_dwordx4 {vr(16+4*i)}, v5, {sr(S_WS)}, s69 offen sc1')
    if i < 9: a(f's_add_u32 s69, s69, {8*4096}')
for i in range(10):
    a(f's_waitcnt vmcnt({9-i})')
    a(f'ds_write_b128 v6, {vr(16+4*i)} offset:{i*1024}')
ts(2)
a('L_join:\ns_waitcnt lgkmcnt(0)\ns_barrier')
ts(9)
ts_dump()
a('s_endpgm')

a('L_aux:')
WDL = 40960
GX = 104; GW = 132; G = 140
a(f'''s_and_b32 s3, s2, 7
s_lshl_b32 s3, s3, 3
s_bfe_u32 s64, s2, 0x30003
s_add_u32 s3, s3, s64
s_sub_u32 s{LW}, s{S_WAVE}, 4
v_lshlrev_b32 v8, 4, v0
v_lshlrev_b32 v9, 2, v0
v_add_u32 v3, {CNT}, v9
v_mov_b32 v4, 0
ds_write_b32 v3, v4
v_mov_b32 v196, {CNT}
v_mov_b32 v199, 1
s_mul_i32 s77, s{S_WAVE}, 4608''')
def aux_pf():
    if not OPT['apf']: return
    srd(a, S_WG, P_WG, 640*3072); srd(a, S_WU, P_WU, 640*3072); srd(a, S_X, P_Q, 2048*1280)
    a(f'''v_lshrrev_b32 v3, 3, v0
    v_mul_u32_u24 v3, 1280, v3
    v_and_b32 v4, 7, v0
    v_lshl_add_u32 v3, v4, 4, v3
    s_add_u32 s64, s{S_WAVE}, 2
    s_mul_i32 s65, s3, {32*1280}
    s_lshl_b32 s72, s64, 7
    s_add_u32 s65, s65, s72
    s_lshl_b32 s72, s64, 6
    s_add_u32 s72, s72, s3
    s_mul_i32 s72, s72, 3072''')
    for i in range(3):
        a(f'buffer_load_dwordx4 v[60:63], v8, {sr(S_WG)}, s72 offen offset:{1024*i}')
        a(f'buffer_load_dwordx4 v[60:63], v8, {sr(S_WU)}, s72 offen offset:{1024*i}')
    for i in range(4):
        a(f'buffer_load_dwordx4 v[60:63], v3, {sr(S_X)}, s65 offen\ns_add_u32 s65, s65, {8*1280}')
pass_setup_loads(3, S_WAVE, 77, 1, aux_pf)
def aux_wdg_loads():
    srd(a, S_WG, P_WD, 1536*1280); srd(a, S_WU, P_GW, 1280); srd(a, S_X, P_Q, 2048*1280)
    a(f's_lshl_b32 s79, s{S_WAVE}, 12\ns_add_u32 s79, s79, {WDL}')
    for i in range(2):
        a(f'''s_mul_i32 s64, s3, 15
        s_lshl_b32 s65, s{S_WAVE}, 1
        s_add_u32 s65, s65, {i}
        s_add_u32 s64, s64, s65
        s_mul_i32 s{68+2*i}, s64, 3277
        s_lshr_b32 s{68+2*i}, s{68+2*i}, 16
        s_mul_i32 s72, s{68+2*i}, 20
        s_sub_u32 s{69+2*i}, s64, s72
        s_cmp_ge_u32 s65, 15
        s_cselect_b32 s{68+2*i}, 100, s{68+2*i}
        s_mul_i32 s72, s{68+2*i}, {32*1280}
        s_lshl_b32 s73, s{69+2*i}, 6
        s_add_u32 s72, s72, s73
        s_add_u32 s73, s72, {16*1280}
        s_add_u32 m0, s79, {2048*i}
        s_nop 0
        buffer_load_dwordx4 v12, {sr(S_WG)}, s72 offen{NTW} lds
        s_add_u32 m0, s79, {2048*i + 1024}
        s_nop 0
        buffer_load_dwordx4 v12, {sr(S_WG)}, s73 offen{NTW} lds''')
    a(f'''s_lshl_b32 s76, s3, 3
s_add_u32 s76, s76, s{S_WAVE}
s_mul_i32 s67, s76, {4*1280}
s_add_u32 s72, s67, {3*1280}
buffer_load_dwordx4 {vr(GW)}, v8, {sr(S_WU)}, 0 offen
buffer_load_dword v{GW+4}, v9, {sr(S_WU)}, 0 offen offset:1024''')
    for i in range(4):
        so, o = (67, 1280 * i) if i < 3 else (72, 0)
        a(f'buffer_load_dwordx4 {vr(GX+6*i)}, v8, {sr(S_X)}, s{so} offen offset:{o}')
        a(f'buffer_load_dword v{GX+6*i+4}, v9, {sr(S_X)}, s{so} offen offset:{o+1024}')
a(f's_lshl_b32 s79, s{S_WAVE}, 12\ns_add_u32 s79, s79, {WDL}')
if not OPT['aord']: aux_wdg_loads()
if OPT['cpf']:
    a(f'''s_getpc_b64 s[72:73]
    L_pc:
    s_sub_u32 s72, s72, L_pc - {NAME}_kernel
    s_subb_u32 s73, s73, 0
    s_and_b32 s64, s3, 7
    s_mul_i32 s64, s64, (L_end - {NAME}_kernel) >> 10
    s_cmp_lg_u32 s{S_WAVE}, 7
    s_cselect_b32 s65, 0, ((L_end - {NAME}_kernel) >> 10) - 1
    v_min_u32 v3, s65, v0
    v_add_lshl_u32 v3, v3, s64, 7
    global_load_dword v39, v3, s[72:73]''')
NC = 1 if OPT['cpf'] else 0
ts(1)
srd(a, S_WS, P_WS, WS_SIZE)
pass_addr(3, S_WAVE, 77, 78)
a(f'''v_lshrrev_b32 v38, 2, v0
v_lshlrev_b32 v38, 6, v38
v_lshl_add_u32 v38, v18, 3, v38
v_add_u32 v38, s79, v38
s_waitcnt lgkmcnt(0)
s_barrier''')
make_tag()
a(f's_waitcnt vmcnt({(0 if OPT["aord"] else 14) + NC})')
ts(2)
pass_body(78, 67, 40)
if OPT['aord']: aux_wdg_loads()
def count_flag(coff, foff, L):
    a(f'''s_mov_b64 exec, 1
    ds_add_rtn_u32 v39, v196, v199 offset:{coff}
    s_mov_b64 exec, -1
    s_waitcnt lgkmcnt(0)
    v_readfirstlane_b32 s67, v39
    ''')
    packed_off(72, 3, foff, 73)
    a(f'''s_cmp_lg_u32 s67, 7
    s_cbranch_scc1 {L}''')
    flag_store(72, 1, 39)
    a(f'{L}:')
if OPT['aord']:
    a('s_waitcnt vmcnt(14)')
    count_flag(C_P, F1 + 24*128, 'L_ax_nf1')
    ts(3)
    a('s_waitcnt vmcnt(10)')
else:
    a(f's_waitcnt vmcnt({12 + NC})')
for i in range(4):
    o = 2048 * (i >> 1) + 32 * (i & 1)
    a(f'ds_read_b64_tr_b16 {vr(148+4*i,2)}, v38 offset:{o}\nds_read_b64_tr_b16 {vr(150+4*i,2)}, v38 offset:{o+1024}')
if OPT['aord']:
    a('s_waitcnt lgkmcnt(0)')
else:
    a('s_waitcnt vmcnt(0)')
    count_flag(C_P, F1 + 24*128, 'L_ax_nf1')
    ts(3)
for i in range(4):
    ks, pr = 68 + 2 * (i >> 1), 69 + 2 * (i >> 1)
    a(f'''s_lshl_b32 s64, s{pr}, 1
    s_add_u32 s64, s64, {i & 1}
    s_mul_i32 s65, s64, 13108
    s_lshr_b32 s65, s65, 16
    s_mul_i32 s72, s65, 5
    s_sub_u32 s64, s64, s72
    s_mul_i32 s65, s65, 48
    s_add_u32 s65, s65, s{ks}
    s_mul_i32 s65, s65, 5
    s_add_u32 s65, s65, s64
    s_lshl_b32 s65, s65, 10
    s_add_u32 s65, s65, {WDP}
    s_cmp_ge_u32 s{ks}, 48
    s_cselect_b32 s65, {WS_SIZE}, s65
    buffer_store_dwordx4 {vr(148+4*i)}, v8, {sr(S_WS)}, s65 offen sc1''')
if OPT['aord']: a('s_waitcnt vmcnt(4)')
gate_math(GX, GW, G)
a(f'''s_lshr_b32 s67, s76, 1
s_lshl_b32 s67, s67, 7
s_and_b32 s72, s76, 1
s_lshl_b32 s72, s72, 4
s_add_u32 s67, s67, s72
s_add_u32 s67, s67, {GATE}
v_mov_b32 v1, 0
s_mov_b32 exec_lo, 0
s_mov_b32 exec_hi, 0x80000000
buffer_store_dwordx4 {vr(G)}, v1, {sr(S_WS)}, s67 offen sc1
s_mov_b64 exec, -1
s_waitcnt vmcnt(0)''')
count_flag(C_P2, F1 + 32*128, 'L_ax_nf2')
stamp(3)
a(f's_cmp_lt_u32 s{S_WAVE}, 4\ns_cbranch_scc1 L_ax_c')
lds_wait(196, 197, C_P2, 8, 2)
a(f'''s_lshl_b32 s67, s3, 2
s_add_u32 s67, s67, s{LW}
s_add_u32 s67, s67, 384
s_mov_b32 s68, {CVREG[0]}
s_cmp_eq_u32 s{LW}, 1
s_cselect_b32 s68, {CVREG[1]}, s68
s_cmp_eq_u32 s{LW}, 2
s_cselect_b32 s68, {CVREG[2]}, s68
s_cmp_eq_u32 s{LW}, 3
s_cselect_b32 s68, {CVREG[3]}, s68''')
conv_T()
conv_addr()
a('s_waitcnt vmcnt(0)')
conv_build()
lds_wait(196, 197, C_OK, 1, 2)
conv_uT()
a('s_mov_b32 s74, 4\ns_mov_b32 s75, 0\ns_branch L_conv_main')
a('L_ax_c:')
a(f'''s_and_b32 s64, s3, 7
s_lshl_b32 s64, s64, 2
s_add_u32 s64, s64, s{S_WAVE}        ; 0..31
s_lshr_b32 s65, s3, 3                ; x
s_cmp_lg_u32 s{S_WAVE}, 0
s_cbranch_scc1 L_ax_c1
v_lshlrev_b32 v15, 7, v0
v_add_u32 v16, {F1 + 0x2000}, v15
v_add_u32 v17, {F1 + 0x4000}, v15
v_add_u32 v18, {F1 + 0x6000}, v15
v_add_u32 v19, {F1 + 0x8000}, v15
v_add_u32 v15, {F1}, v15''')
a(f's_lshl_b32 s73, s65, 7\ns_add_u32 s73, s73, {SUMU}\ns_and_b32 s72, s3, 7\ns_cmp_eq_u32 s72, 0\ns_cbranch_scc1 L_agg')
a('v_mov_b32 v15, s73\nv_add_u32 v16, 1024, v15')
if OPT['adir']:
    packed_lane(15, 64, F1)
    poll4(15, 20, OPT['asl'], 72)
else:
    poll([15], 20, OPT['asl'], 72)
lds_add(196, 199, C_OK)
poll([16], 20, OPT['asl'], 72)
lds_add(196, 199, C_OKW)
a('s_branch L_ax_c1\nL_agg:')
packed_lane(15, 64, F1)
packed_lane(16, 16, F1 + 32*128)
stamp(0)
poll4(15, 20, OPT['gsl'], 72)
stamp(1)
flag_store(73, 1, 2)
lds_add(196, 199, C_OK)
poll4(16, 20, OPT['gsl'], 72)
stamp(2)
a('s_add_u32 s73, s73, 1024')
flag_store(73, 1, 2)
lds_add(196, 199, C_OKW)
a('L_ax_c1:')
if OPT['pfe'] & 1:
    srd(a, S_A, P_SSM, 640*4096)
    a(f's_mul_i32 s67, s65, {48*4096}\ns_mul_i32 s72, s64, 6144\ns_add_u32 s67, s67, s72\ns_add_u32 s72, s67, 3072')
    for i in range(6): a(f'buffer_load_dwordx4 v[60:63], v8, {sr(S_A)}, s{67 if i < 3 else 72} offen offset:{(i%3)*1024}')
lds_wait(196, 197, C_OKW, 1, 2)
ts(4)
if OPT['pfe'] & 2:
    a(f'''s_and_b32 s73, s65, 4
    s_mul_i32 s73, s73, {48*5120}
    s_mul_i32 s74, s64, 30720
    s_add_u32 s73, s73, s74
    s_add_u32 s73, s73, {WDP}''')
    for i in range(30):
        a(f'buffer_load_dwordx4 v[60:63], v8, {sr(S_WS)}, s73 offen offset:{(i%3)*1024} sc1')
        if i % 3 == 2: a('s_add_u32 s73, s73, 3072')
if OPT['pfe'] & 4:
    a(f's_add_u32 s67, s67, {UT}\ns_add_u32 s72, s72, {UT}')
    for i in range(6): a(f'buffer_load_dwordx4 v[60:63], v8, {sr(S_WS)}, s{67 if i < 3 else 72} offen offset:{(i%3)*1024} sc1')
if OPT['pfe']:
    a('s_waitcnt vmcnt(0)')
    ts(1)
g2_setup()
a(f'v_mov_b32 v173, {CNT}\nv_mov_b32 v175, 1')
lds_add(173, 175, C_H)
a(f's_mov_b32 s73, {WS_SIZE}\ns_branch L_g2')
a('L_end:\ns_endpgm')
print(wrap(a.text(), grid=256, block=512, lds=LDS_TOTAL, vgpr=256, accum=256))
```
